```python
import torch

def _softmax(x, axis=-1):
    return torch.softmax(x, dim=axis)
def _gelu(x):
    return torch.nn.functional.gelu(x, approximate="tanh")
def _silu(x):
    return torch.nn.functional.silu(x)
def _sigmoid(x):
    return torch.sigmoid(x)
def _layernorm(x, axis=-1, eps=1e-5):
    m = x.mean(dim=axis, keepdim=True)
    v = x.var(dim=axis, keepdim=True, unbiased=False)
    return (x - m) / torch.sqrt(v + eps)
def _scatter_add(tgt, idx, src, axis=0):
    return tgt.clone().index_add_(axis, idx, src)
def _segment_sum(src, seg, n):
    out = torch.zeros((n,) + src.shape[1:], dtype=src.dtype)
    return out.index_add_(0, seg, src)
def _pad(x, pw):
    flat = tuple(v for pair in reversed(pw) for v in pair)
    return torch.nn.functional.pad(x, flat)

kernel_name = 'standalone__mixer_channel_mlp__prompt'

def setup_inputs():

    _w = (lambda a: (lambda t: t.to(torch.bfloat16) if t.is_floating_point() else t)(torch.as_tensor(a)))
    B, S, D, F = 1, 2048, 640, 1536
    return {
        "x": _w((lambda *s: torch.randn(*s, dtype=torch.bfloat16) * 0.05)(B, S, D)),
        "w1": _w((lambda *s: torch.randn(*s, dtype=torch.bfloat16) * 0.8)(D, F) * (D ** -0.5)),
        "b1": _w((lambda *s: torch.randn(*s, dtype=torch.bfloat16) * 0.4)(F)),
        "w2": _w((lambda *s: torch.randn(*s, dtype=torch.bfloat16) * 0.05)(F, D) * (F ** -0.5)),
        "b2": _w((lambda *s: torch.randn(*s, dtype=torch.bfloat16) * 0.05)(D)),
    }

def reference(x, w1, b1, w2, b2):
    y = _layernorm(x, axis=-1)
    h = _gelu(torch.einsum("bsd,df->bsf", y, w1) + b1)
    return torch.einsum("bsf,fd->bsd", h, w2) + b2
```

```python
import sys

NAME = "standalone__mixer_channel_mlp__prompt_kernel"

Y0 = 0
W0 = 4 << 20
H0 = 8 << 20
F0 = 16 << 20
T0 = 17 << 20
WS_BYTES = 18 << 20

LDS_W1 = 0
LDS_STAGE = 122880
LDS_BYTES = 122880 + 8192

SPIN_MAX = 20000


class Gen:
    def __init__(self, diag=False):
        self.L = []
        self.vm = 0
        self.vm_done = 0
        self.lg = 0
        self.lg_done = 0
        self.diag = diag
        self.nlab = 0
        self.nstamp = 0
        self.stampnames = []

    def e(self, s):
        for ln in s.split("\n"):
            self.L.append("    " + ln.strip())

    def label(self, name):
        self.L.append(name + ":")

    def newlab(self, p):
        self.nlab += 1
        return f"L_{p}{self.nlab}"

    def vmem(self, s):
        self.e(s)
        self.vm += 1
        return self.vm

    def ds(self, s):
        self.e(s)
        self.lg += 1
        return self.lg

    def wait(self, vm=None, lg=None):
        parts = []
        if vm is not None and vm > self.vm_done:
            n = self.vm - vm
            if n <= 63:
                parts.append(f"vmcnt({n})")
            else:
                parts.append("vmcnt(63)")
            self.vm_done = vm
        if lg is not None and lg > self.lg_done:
            n = self.lg - lg
            parts.append(f"lgkmcnt({min(n, 15)})")
            self.lg_done = lg
        if parts:
            self.e("s_waitcnt " + " ".join(parts))

    def nop(self, n):
        while n > 0:
            k = min(n, 16)
            self.e(f"s_nop {k-1}")
            n -= k

    def stamp(self, name=""):
        if not self.diag:
            return
        i = self.nstamp
        self.nstamp += 1
        self.stampnames.append(name)
        assert i < 64
        self.e(f"s_memtime s[94:95]\ns_waitcnt lgkmcnt(0)\nv_writelane_b32 v0, s94, {i}")
        self.lg_done = self.lg


def generate(diag=False, hd=False):
    g = Gen(diag)
    e = g.e
    SX, SW1, SB1, SW2, SB2, SO, SD, SWS = 4, 8, 12, 16, 20, 24, 28, 32
    sW = 36
    sMB, sFT, sQ, sMT, sNT, sPERM, sJY, sR1 = 37, 38, 39, 40, 41, 42, 43, 44
    sN = 45
    sT, sT2, sT3 = 46, 47, 48
    sCNT = 49
    sEX = 50
    sYB = 52
    sPW = 60
    sPH = 64
    sMI = 68
    sK1 = 72
    sONE = 73
    sHB = 74
    sIDX = 75
    vL = 1
    vL16 = 2
    vW1 = 3
    vFl = 6
    vPo = 7
    vPh = 8
    vHs = 9
    vC2 = 10
    vC1 = 12
    vF = 16
    vTmp = 20
    vT = 32
    ACC = 48
    Y = 96

    hdr = open("standalone__mixer_channel_mlp__prompt.s.ref").read().split("\n")
    head = []
    for ln in hdr:
        if ln.startswith("; @launch"):
            head.append(f"; @launch grid=(256,1,1) block=(256,1,1) lds={LDS_BYTES}")
            break
        head.append(ln)
    out = head + ['.amdgcn_target "amdgcn-amd-amdhsa--gfx950"', ".text", f".globl {NAME}", ".p2align 8",
                  f".type {NAME},@function", f"{NAME}:"]

    e("s_cmp_ge_u32 s2, 256\ns_cbranch_scc1 L_end")
    e("s_load_dwordx16 s[76:91], s[0:1], 0")
    if hd:
        e("s_memtime s[94:95]\ns_memrealtime s[96:97]")
    e(f"v_and_b32 v{vL}, 63, v0\nv_lshrrev_b32 v{vTmp}, 6, v0\nv_lshlrev_b32 v{vL16}, 4, v{vL}")
    e(f"v_readfirstlane_b32 s{sW}, v{vTmp}")
    e(f"s_and_b32 s{sT}, s2, 7\ns_lshr_b32 s{sIDX}, s2, 3")
    e(f"s_lshr_b32 s{sT2}, s{sT}, 1\ns_and_b32 s{sT3}, s{sT}, 1")
    e(f"s_lshr_b32 s{sR1}, s{sIDX}, 3\ns_lshl_b32 s{sMB}, s{sT2}, 2\ns_add_u32 s{sMB}, s{sMB}, s{sR1}")
    e(f"s_and_b32 s{sJY}, s{sIDX}, 7\ns_lshl_b32 s{sFT}, s{sT3}, 3\ns_add_u32 s{sFT}, s{sFT}, s{sJY}")
    e(f"s_lshl_b32 s{sQ}, s{sMB}, 4\ns_add_u32 s{sQ}, s{sQ}, s{sFT}")
    e(f"s_lshr_b32 s{sPERM}, s{sIDX}, 2\ns_lshl_b32 s{sMT}, s{sT2}, 3\ns_add_u32 s{sMT}, s{sMT}, s{sPERM}")
    e(f"s_and_b32 s{sNT}, s{sIDX}, 3\ns_lshl_b32 s{sT3}, s{sT3}, 2\ns_add_u32 s{sNT}, s{sNT}, s{sT3}")
    e(f"s_xor_b32 s{sPERM}, s{sPERM}, s{sIDX}\ns_and_b32 s{sPERM}, s{sPERM}, 3")
    e(f"s_mov_b32 s{sONE}, 0x3f803f80")
    e(f"v_lshrrev_b32 v{vTmp+2}, 5, v{vL}\nv_and_b32 v{vTmp+3}, 31, v{vL}")
    e(f"v_mul_u32_u24 v{vTmp+1}, 1280, v{vTmp+2}\nv_lshl_add_u32 v{vTmp+1}, v{vTmp+3}, 3, v{vTmp+1}")
    e(f"s_lshl_b32 s{sT}, s{sQ}, 3\ns_lshl_b32 s{sT2}, s{sW}, 1\ns_add_u32 s{sT}, s{sT}, s{sT2}\ns_mul_i32 s{sT}, s{sT}, 1280")
    e("s_waitcnt lgkmcnt(0)")
    for srd, k, nbytes in ((SX, 0, 2621440), (SW1, 1, 1966080), (SB1, 2, 3072), (SW2, 3, 1966080), (SB2, 4, 1280),
                           (SO, 5, 2621440), (SD, 6, 256), (SWS, 7, WS_BYTES)):
        e(f"s_mov_b32 s{srd}, s{76+2*k}\ns_mov_b32 s{srd+1}, s{77+2*k}\ns_mov_b32 s{srd+2}, {nbytes}\ns_mov_b32 s{srd+3}, 0x00020000")
        if k == 0:
            XR = Y
            xtok = []
            for j in range(5):
                xtok.append(g.vmem(f"buffer_load_dwordx2 v[{XR+2*j}:{XR+2*j+1}], v{vTmp+1}, s[{SX}:{SX+3}], s{sT} offen offset:{256*j}"))
    g.stamp("start")
    lab = g.newlab("nononce")
    e(f"s_or_b32 s{sT}, s2, s{sW}\ns_cmp_lg_u32 s{sT}, 0\ns_cbranch_scc1 {lab}")
    e(f"s_memrealtime s[{sT2}:{sT2+1}]" if sT2 % 2 == 0 else f"s_memrealtime s[{sEX}:{sEX+1}]")
    e("s_waitcnt lgkmcnt(0)")
    e(f"s_lshl_b32 s{sT}, s{sEX}, 4\ns_or_b32 s{sT}, s{sT}, 0x80000000\nv_mov_b32 v{vTmp+4}, s{sT}\nv_mov_b32 v{vTmp+5}, 0")
    e(f"s_mov_b64 s[{sEX}:{sEX+1}], exec\ns_mov_b64 exec, 1")
    e(f"buffer_store_dword v{vTmp+4}, v{vTmp+5}, s[{SD}:{SD+3}], 0 offen sc1")
    e(f"s_mov_b64 exec, s[{sEX}:{sEX+1}]")
    g.label(lab)
    e(f"s_mul_i32 s{sT2}, s{sQ}, 1366\ns_lshr_b32 s{sT2}, s{sT2}, 16")
    e(f"s_mul_i32 s{sT3}, s{sT2}, 48\ns_sub_u32 s{sT3}, s{sQ}, s{sT3}")
    e(f"s_mov_b32 s{sPW}, s{sT2}\ns_mov_b32 s{sPW+1}, s{sT3}")
    e(f"s_mul_i32 s{sT}, s{sT3}, {32*1280}\ns_lshl_b32 s{sT2}, s{sT2}, 8\ns_add_u32 s{sT}, s{sT}, s{sT2}\ns_lshl_b32 s{sT2}, s{sW}, 6\ns_add_u32 s{sT}, s{sT}, s{sT2}")
    e(f"v_lshrrev_b32 v{vTmp+4}, 2, v{vL}\nv_mul_u32_u24 v{vTmp+4}, 1280, v{vTmp+4}\nv_and_b32 v{vTmp+5}, 3, v{vL}\nv_lshl_add_u32 v{vTmp+4}, v{vTmp+5}, 4, v{vTmp+4}")
    e(f"s_lshl_b32 s{sT2}, s{sW}, 11\ns_add_u32 s{sPW+2}, s{sT2}, {LDS_STAGE}")
    e(f"s_mov_b32 m0, s{sPW+2}\ns_nop 0")
    g.vmem(f"buffer_load_dwordx4 v{vTmp+4}, s[{SW2}:{SW2+3}], s{sT} offen lds")
    e(f"s_add_u32 m0, s{sPW+2}, 1024\ns_add_u32 s{sT}, s{sT}, {16*1280}")
    w2ptok = g.vmem(f"buffer_load_dwordx4 v{vTmp+4}, s[{SW2}:{SW2+3}], s{sT} offen lds")
    e(f"v_mov_b32 v{vTmp+5}, 0")
    ntok = g.vmem(f"buffer_load_dword v{vF}, v{vTmp+5}, s[{SD}:{SD+3}], 0 offen sc1")

    for i in range(3):
        e(f"v_add_u32 v{vTmp+6}, {64*i}, v{vL}\nv_mul_u32_u24 v{vTmp+7}, 5462, v{vTmp+6}\nv_lshrrev_b32 v{vTmp+7}, 16, v{vTmp+7}")
        e(f"v_mul_u32_u24 v{vTmp+8}, 12, v{vTmp+7}\nv_sub_u32 v{vTmp+8}, v{vTmp+6}, v{vTmp+8}")
        e(f"v_mul_u32_u24 v{vTmp+7}, 3072, v{vTmp+7}\nv_lshl_add_u32 v{vW1+i}, v{vTmp+8}, 4, v{vTmp+7}")
    e(f"s_mul_i32 s{sK1}, s{sR1}, 10\ns_add_u32 s{sK1}, s{sK1}, s{sW}")
    e(f"s_mul_i32 s{sHB}, s{sFT}, 192")
    w1tok = []

    def w1_step():
        e(f"s_mul_i32 s{sT}, s{sK1}, {16*3072}\ns_add_u32 s{sT}, s{sT}, s{sHB}\ns_mul_i32 s{sT2}, s{sK1}, 3072")
        for i in range(3):
            e(f"s_add_u32 m0, s{sT2}, {LDS_W1 + i*1024}")
            if i == 0:
                e(f"s_add_u32 s{sK1}, s{sK1}, 4\ns_cmp_ge_u32 s{sK1}, 40\ns_cselect_b32 s{sT3}, 40, 0\ns_sub_u32 s{sK1}, s{sK1}, s{sT3}")
            else:
                e("s_nop 0")
            w1tok.append(g.vmem(f"buffer_load_dwordx4 v{vW1+i}, s[{SW1}:{SW1+3}], s{sT} offen lds"))

    g.stamp("pre_w1")
    w1_step()
    w1_step()
    g.stamp("w1_2steps")

    vYs = vTmp + 9
    e(f"v_lshrrev_b32 v{vTmp+6}, 2, v{vTmp+3}\nv_lshlrev_b32 v{vYs}, 10, v{vTmp+6}")
    e(f"v_bfe_u32 v{vTmp+6}, v{vTmp+3}, 1, 1\nv_lshl_add_u32 v{vYs}, v{vTmp+6}, 9, v{vYs}")
    e(f"v_lshl_add_u32 v{vYs}, v{vTmp+2}, 4, v{vYs}")
    e(f"v_and_b32 v{vTmp+6}, 1, v{vTmp+3}\nv_lshl_add_u32 v{vYs}, v{vTmp+6}, 3, v{vYs}")
    e(f"s_lshr_b32 s{sT}, s{sQ}, 2\ns_mul_i32 s{sT}, s{sT}, 40960\ns_and_b32 s{sT2}, s{sQ}, 3\ns_lshl_b32 s{sT2}, s{sT2}, 7\ns_add_u32 s{sT}, s{sT}, s{sT2}")
    e(f"s_lshl_b32 s{sT2}, s{sW}, 5\ns_add_u32 s{sYB}, s{sT}, s{sT2}")
    if Y0:
        e(f"s_add_u32 s{sYB}, s{sYB}, {Y0}")
    e(f"s_lshl_b32 s{sT}, s{sQ}, 7\ns_lshl_b32 s{sT2}, s{sW}, 2\ns_add_u32 s{sT}, s{sT}, s{sT2}\ns_add_u32 s{sT}, s{sT}, {F0}\nv_mov_b32 v{vFl}, s{sT}")
    vP = vTmp + 10
    e(f"v_lshrrev_b32 v{vTmp+6}, 5, v{vL}\nv_lshlrev_b32 v{vP}, 10, v{vTmp+6}")
    e(f"v_bfe_u32 v{vTmp+6}, v{vL}, 4, 1\nv_lshl_add_u32 v{vP}, v{vTmp+6}, 8, v{vP}")
    e(f"v_bfe_u32 v{vTmp+6}, v{vL}, 2, 2\nv_lshl_add_u32 v{vP}, v{vTmp+6}, 6, v{vP}")
    e(f"v_and_b32 v{vTmp+6}, 3, v{vL}\nv_lshl_add_u32 v{vP}, v{vTmp+6}, 3, v{vP}\nv_add_u32 v{vP}, s{sPW+2}, v{vP}")

    XF = Y + 12
    A0, A1, A2, A3 = Y + 32, Y + 33, Y + 34, Y + 35
    g.wait(vm=xtok[-1])
    g.stamp("x_arrived")
    e(f"v_mov_b32 v{A0}, 0\nv_mov_b32 v{A1}, 0")
    for j in range(10):
        a = A0 if j % 2 == 0 else A1
        e(f"v_dot2_f32_bf16 v{a}, v{XR+j}, s{sONE}, v{a}")
    for j in range(10):
        e(f"v_lshlrev_b32 v{XF+2*j}, 16, v{XR+j}\nv_and_b32 v{XF+2*j+1}, 0xffff0000, v{XR+j}")
    e(f"v_add_f32 v{A0}, v{A0}, v{A1}")

    def reduce32(a, t):
        for r in (8, 4, 2, 1):
            e("s_nop 1")
            e(f"v_add_f32_dpp v{a}, v{a}, v{a} row_ror:{r} row_mask:0xf bank_mask:0xf")
        e(f"v_mov_b32 v{t}, v{a}\ns_nop 1\nv_permlane16_swap_b32 v{a}, v{t}\ns_nop 1\nv_add_f32 v{a}, v{a}, v{t}")

    reduce32(A0, A1)
    e(f"v_mul_f32 v{A0}, 0x3acccccd, v{A0}")
    e(f"v_cvt_pk_bf16_f32 v{A2}, v{A0}, v{A0}\nv_lshlrev_b32 v{A2}, 16, v{A2}")
    e(f"v_sub_f32 v{A0}, v{A0}, v{A2}")
    e(f"v_mov_b32 v{A3}, v{A2}")
    S0 = Y + 36
    for j in range(10):
        e(f"v_pk_add_f32 v[{XF+2*j}:{XF+2*j+1}], v[{XF+2*j}:{XF+2*j+1}], v[{A2}:{A3}] neg_lo:[0,1] neg_hi:[0,1]")
    for j in range(10):
        s = S0 + 2 * (j % 2)
        if j < 2:
            e(f"v_pk_mul_f32 v[{s}:{s+1}], v[{XF+2*j}:{XF+2*j+1}], v[{XF+2*j}:{XF+2*j+1}]")
        else:
            e(f"v_pk_fma_f32 v[{s}:{s+1}], v[{XF+2*j}:{XF+2*j+1}], v[{XF+2*j}:{XF+2*j+1}], v[{s}:{s+1}]")
    e(f"v_pk_add_f32 v[{S0}:{S0+1}], v[{S0}:{S0+1}], v[{S0+2}:{S0+3}]\nv_add_f32 v{S0}, v{S0}, v{S0+1}")
    reduce32(S0, S0 + 1)
    e(f"v_mul_f32 v{S0}, 0x3acccccd, v{S0}")
    e(f"v_fma_f32 v{S0}, -v{A0}, v{A0}, v{S0}\nv_max_f32 v{S0}, 0, v{S0}")
    e(f"v_cvt_pk_bf16_f32 v{S0}, v{S0}, v{S0}\nv_lshlrev_b32 v{S0}, 16, v{S0}")
    e(f"v_add_f32 v{S0}, 0x3727c5ac, v{S0}")
    e(f"v_cvt_pk_bf16_f32 v{S0}, v{S0}, v{S0}\nv_lshlrev_b32 v{S0}, 16, v{S0}")
    e(f"v_sqrt_f32 v{S0}, v{S0}\ns_nop 0")
    e(f"v_cvt_pk_bf16_f32 v{S0}, v{S0}, v{S0}\nv_lshlrev_b32 v{S0}, 16, v{S0}")
    e(f"v_rcp_f32 v{S0}, v{S0}\ns_nop 0\nv_mov_b32 v{S0+1}, v{S0}")
    for j in range(10):
        e(f"v_pk_mul_f32 v[{XF+2*j}:{XF+2*j+1}], v[{XF+2*j}:{XF+2*j+1}], v[{S0}:{S0+1}]")
    for j in range(10):
        e(f"v_cvt_pk_bf16_f32 v{XR+j}, v{XF+2*j}, v{XF+2*j+1}")
    g.stamp("ln_done")
    for j in range(5):
        if j:
            e(f"s_add_u32 s{sYB}, s{sYB}, 8192")
        g.vmem(f"buffer_store_dwordx2 v[{XR+2*j}:{XR+2*j+1}], v{vYs}, s[{SWS}:{SWS+3}], s{sYB} offen sc1")
    PF = Y + 40
    g.stamp("y_stores_issued")
    g.wait(vm=w2ptok)
    for ee in range(2):
        for h in range(2):
            t = g.ds(f"ds_read_b64_tr_b16 v[{PF+4*ee+2*h}:{PF+4*ee+2*h+1}], v{vP} offset:{ee*32 + h*512}")
    lab = g.newlab("now2")
    for ee in range(2):
        e(f"s_lshl_b32 s{sT}, s{sPW}, 3\ns_lshl_b32 s{sT2}, s{sW}, 1\ns_add_u32 s{sT}, s{sT}, s{sT2}")
        if ee:
            e(f"s_add_u32 s{sT}, s{sT}, 1")
        e(f"s_mul_i32 s{sT2}, s{sT}, 13108\ns_lshr_b32 s{sT2}, s{sT2}, 16")
        e(f"s_mul_i32 s{sT3}, s{sT2}, 5\ns_sub_u32 s{sT}, s{sT}, s{sT3}")
        e(f"s_mul_i32 s{sT2}, s{sT2}, 48\ns_add_u32 s{sT2}, s{sT2}, s{sPW+1}\ns_mul_i32 s{sT2}, s{sT2}, 5\ns_add_u32 s{sT}, s{sT}, s{sT2}")
        e(f"s_lshl_b32 s{sT}, s{sT}, 10\ns_add_u32 s{sPH+ee}, s{sT}, {W0}")
    e(f"s_cmp_ge_u32 s{sQ}, 240\ns_cselect_b32 s{sPH}, {WS_BYTES}, s{sPH}\ns_cselect_b32 s{sPH+1}, {WS_BYTES}, s{sPH+1}")
    g.wait(lg=t)
    g.vmem(f"buffer_store_dwordx4 v[{PF}:{PF+3}], v{vL16}, s[{SWS}:{SWS+3}], s{sPH} offen sc1")
    preptok = g.vmem(f"buffer_store_dwordx4 v[{PF+4}:{PF+7}], v{vL16}, s[{SWS}:{SWS+3}], s{sPH+1} offen sc1")
    g.stamp("prep_stores_issued")
    for _ in range(3):
        w1_step()

    def spin(check_emit, load_emit, tok):
        g.wait(vm=tok)
        ok = g.newlab("ok")
        retry = g.newlab("retry")
        check_emit()
        e(f"s_cbranch_scc1 {ok}")
        e(f"s_mov_b32 s{sCNT}, {SPIN_MAX}")
        g.label(retry)
        e(f"s_sub_u32 s{sCNT}, s{sCNT}, 1\ns_cmp_eq_u32 s{sCNT}, 0\ns_cbranch_scc1 {ok}")
        e("s_sleep 1")
        load_emit()
        e("s_waitcnt vmcnt(0)")
        check_emit()
        e(f"s_cbranch_scc0 {retry}")
        g.label(ok)

    def nonce_load():
        e(f"buffer_load_dword v{vF}, v{vTmp+5}, s[{SD}:{SD+3}], 0 offen sc1")

    def nonce_check():
        e(f"v_readfirstlane_b32 s{sN}, v{vF}\ns_nop 3\ns_cmp_lg_u32 s{sN}, 0")

    g.stamp("w1_5steps")
    spin(nonce_check, nonce_load, ntok)
    g.stamp("nonce_ok")

    def publish(bits, tok):
        g.wait(vm=tok)
        e(f"s_or_b32 s{sT}, s{sN}, {bits}\nv_mov_b32 v{vTmp+11}, s{sT}")
        e(f"s_mov_b64 s[{sEX}:{sEX+1}], exec\ns_mov_b64 exec, 1")
        g.vmem(f"buffer_store_dword v{vTmp+11}, v{vFl}, s[{SWS}:{SWS+3}], 0 offen sc1")
        e(f"s_mov_b64 exec, s[{sEX}:{sEX+1}]")

    publish(1, preptok)
    g.stamp("prep_published")

    e(f"v_lshrrev_b32 v{vTmp+6}, 5, v{vL}\nv_lshlrev_b32 v{vTmp+6}, 3, v{vTmp+6}")
    BR = Y + 48
    for t in range(3):
        for q in range(4):
            k = t * 4 + q
            btok = g.vmem(f"buffer_load_dwordx2 v[{BR+2*k}:{BR+2*k+1}], v{vTmp+6}, s[{SB1}:{SB1+3}], s{sHB} offen offset:{t*64+q*16}")
    for _ in range(5):
        w1_step()
    assert len(w1tok) == 30
    g.stamp("w1_all_issued")

    e(f"v_cmp_le_u32 vcc, 12, v{vL}\ns_nop 1\nv_cndmask_b32 v{vTmp+7}, 0, 1, vcc")
    e(f"s_mul_i32 s{sT}, s{sNT}, 5\nv_lshl_add_u32 v{vTmp+8}, v{vTmp+7}, 2, s{sT}\nv_lshrrev_b32 v{vTmp+8}, 3, v{vTmp+8}")
    e(f"v_mul_u32_u24 v{vTmp+8}, 48, v{vTmp+8}")
    e(f"v_mul_u32_u24 v{vTmp+7}, 12, v{vTmp+7}\nv_sub_u32 v{vTmp+7}, v{vL}, v{vTmp+7}")
    e(f"s_mul_i32 s{sT}, s{sW}, 12\nv_add3_u32 v{vTmp+8}, v{vTmp+8}, v{vTmp+7}, s{sT}")
    e(f"s_lshl_b32 s{sT}, s{sMB}, 4\ns_lshl_b32 s{sT2}, s{sW}, 2\ns_add_u32 s{sT}, s{sT}, s{sT2}")
    e(f"v_and_b32 v{vTmp+7}, 3, v{vL}\nv_add_u32 v{vTmp+7}, s{sT}, v{vTmp+7}")
    e(f"v_cmp_le_u32 vcc, 24, v{vL}\ns_nop 1\nv_cndmask_b32 v{vPo}, v{vTmp+8}, v{vTmp+7}, vcc")
    e(f"v_lshlrev_b32 v{vPo}, 7, v{vPo}\nv_add_u32 v{vPo}, {F0}, v{vPo}")
    e(f"s_and_b32 s{sT}, s{sMT}, 1\ns_lshl_b32 s{sT}, s{sT}, 3\ns_add_u32 s{sT}, s{sT}, {F0}")
    e(f"v_lshlrev_b32 v{vPh}, 7, v{vTmp+7}\nv_add_u32 v{vPh}, s{sT}, v{vPh}")

    def prep_load():
        return f"buffer_load_dwordx4 v[{vF}:{vF+3}], v{vPo}, s[{SWS}:{SWS+3}], 0 offen sc1"

    def flag_eval(n, bit):
        m = 0xfffffff0 | bit
        for i in range(n):
            e(f"v_xor_b32 v{vF+i}, s{sN}, v{vF+i}\nv_and_b32 v{vF+i}, {m:#x}, v{vF+i}\nv_xor_b32 v{vF+i}, {bit}, v{vF+i}")
        for i in range(1, n):
            e(f"v_or_b32 v{vF}, v{vF}, v{vF+i}")
        e(f"v_cmp_eq_u32 vcc, 0, v{vF}")

    def y_check():
        flag_eval(4, 1)
        e(f"s_nop 1\ns_cmp_eq_u32 vcc_hi, -1")

    def w2_check():
        flag_eval(4, 1)
        e(f"s_nop 1\ns_cmp_eq_u64 vcc, -1")

    ptok = g.vmem(prep_load())

    e(f"v_lshrrev_b32 v{vTmp+7}, 5, v{vL}\nv_lshlrev_b32 v{vTmp+7}, 3, v{vTmp+7}\nv_bfe_u32 v{vTmp+8}, v{vL}, 2, 2\nv_add_u32 v{vTmp+7}, v{vTmp+7}, v{vTmp+8}")
    e(f"v_mul_u32_u24 v{vTmp+7}, 192, v{vTmp+7}\nv_bfe_u32 v{vTmp+8}, v{vL}, 4, 1\nv_lshl_add_u32 v{vTmp+7}, v{vTmp+8}, 5, v{vTmp+7}")
    e(f"v_and_b32 v{vTmp+8}, 3, v{vL}\nv_lshl_add_u32 v{vTmp+7}, v{vTmp+8}, 3, v{vTmp+7}")
    e(f"s_lshl_b32 s{sT2}, s{sMB}, 2\ns_add_u32 s{sT2}, s{sT2}, s{sW}\ns_mul_i32 s{sT2}, s{sT2}, 40960")
    if Y0:
        e(f"s_add_u32 s{sT2}, s{sT2}, {Y0}")
    for b in range(8):
        e(f"s_xor_b32 s{sT}, s{sJY}, {b}\ns_lshl_b32 s{sT3}, s{sT}, 10\ns_add_u32 s{sYB+b}, s{sT3}, s{sT2}")
        e(f"s_mul_i32 s{sT}, s{sT}, 3072\nv_add_u32 v{vT+b}, s{sT}, v{vTmp+7}\nv_add_u32 v{vT+8+b}, {3*24576}, v{vT+b}")
    for p in range(4):
        e(f"s_xor_b32 s{sT}, s{sPERM}, {p}\ns_mul_i32 s{sT}, s{sT}, 3\ns_mul_i32 s{sT2}, s{sW}, 12\ns_add_u32 s{sT}, s{sT}, s{sT2}")
        e(f"s_lshl_b32 s{sPH+p}, s{sT}, 10")
        e(f"s_mul_i32 s{sT2}, s{sNT}, 48\ns_add_u32 s{sT}, s{sT}, s{sT2}\ns_mul_i32 s{sT}, s{sT}, 5120\ns_add_u32 s{sPW+p}, s{sT}, {W0}")
    for i in range(4):
        e(f"s_add_u32 s{sT}, s{sW}, {i+1}\ns_and_b32 s{sT}, s{sT}, 3\ns_lshl_b32 s{sT2}, s{sMT}, 2\ns_add_u32 s{sT}, s{sT}, s{sT2}")
        e(f"s_mul_i32 s{sT}, s{sT}, 49152\ns_add_u32 s{sMI+i}, s{sT}, {H0}")
    e(f"v_bfe_u32 v{vTmp+8}, v{vL}, 4, 1\nv_mul_u32_u24 v{vHs}, 49152, v{vTmp+8}\nv_lshrrev_b32 v{vTmp+8}, 5, v{vL}\nv_lshl_add_u32 v{vHs}, v{vTmp+8}, 8, v{vHs}")
    e(f"v_and_b32 v{vTmp+8}, 15, v{vL}\nv_lshl_add_u32 v{vHs}, v{vTmp+8}, 4, v{vHs}")
    e(f"s_lshl_b32 s{sT}, s{sMB}, 3\ns_lshl_b32 s{sT2}, s{sW}, 1\ns_add_u32 s{sT}, s{sT}, s{sT2}\ns_mul_i32 s{sT}, s{sT}, 49152")
    e(f"s_mul_i32 s{sT2}, s{sFT}, 3072\ns_add_u32 s{sT}, s{sT}, s{sT2}\ns_add_u32 s{sHB}, s{sT}, {H0}")
    e(f"v_mov_b32 v{vC2}, 0xbdd2d3e8\nv_mov_b32 v{vC2+1}, 0xbdd2d3e8\nv_mov_b32 v{vC1}, 0xc0135761\nv_mov_b32 v{vC1+1}, 0xc0135761")
    e("v_mov_b32 v14, 1.0\nv_mov_b32 v15, 1.0")
    g.wait(vm=btok)
    for k in range(24):
        e(f"v_lshlrev_b32 v{ACC+2*k}, 16, v{BR+k}\nv_and_b32 v{ACC+2*k+1}, 0xffff0000, v{BR+k}")

    g.stamp("pre_ypoll")
    g.wait(vm=ptok)
    g.stamp("ypoll_returned")
    spin(y_check, lambda: e(prep_load()), ptok)
    g.stamp("y_flags_ok")

    yorder = [(a, 0) for a in range(5)] + [(a, b) for a in range(5) for b in range(1, 8)]
    ytok = {}

    def y_load(a, b):
        r = Y + 4 * (8 * a + b)
        if a == 0:
            so = f"s{sYB+b}"
        else:
            e(f"s_add_u32 s{sT}, s{sYB+b}, {a*8192}")
            so = f"s{sT}"
        ytok[(a, b)] = g.vmem(f"buffer_load_dwordx4 v[{r}:{r+3}], v{vL16}, s[{SWS}:{SWS+3}], {so} offen sc1")

    worder = [(t, 0, jj) for t in range(3) for jj in range(5)] + \
             [(t, p, jj) for t in range(3) for p in range(1, 4) for jj in range(5)]
    wreg = {k: 4 * i for i, k in enumerate(worder)}
    wtok = {}

    def w_load(t, p, jj):
        r = wreg[(t, p, jj)]
        off = t * 5120 + jj * 1024
        if off < 4096:
            so, imm = f"s{sPW+p}", off
        else:
            e(f"s_add_u32 s{sT}, s{sPW+p}, {off}")
            so, imm = f"s{sT}", 0
        wtok[(t, p, jj)] = g.vmem(f"buffer_load_dwordx4 a[{r}:{r+3}], v{vL16}, s[{SWS}:{SWS+3}], {so} offen offset:{imm} sc1")

    AHEAD = 12
    for s in yorder[:AHEAD]:
        y_load(*s)
    ptok2 = g.vmem(prep_load())
    g.stamp("y12_issued")
    g.wait(vm=w1tok[-1])
    e("s_barrier")
    g.stamp("w1_barrier")

    NBUF = 12
    FB = 192
    fr = {}

    def tr_issue(idx):
        a, b = yorder[idx]
        va = vT + b + (8 if a >= 3 else 0)
        ao = (a - 3 if a >= 3 else a) * 24576
        for t in range(3):
            r = FB + 4 * ((3 * idx + t) % NBUF)
            for h in range(2):
                tok = g.ds(f"ds_read_b64_tr_b16 a[{r+2*h}:{r+2*h+1}], v{va} offset:{ao + t*64 + h*768}")
            fr[(idx, t)] = (r, tok)

    stream = [("y", s) for s in yorder[AHEAD:]] + [("chk", None)] + [("w", s) for s in worder]

    def next_load(allow_w_idx=60):
        if not stream:
            return False
        k, s = stream[0]
        if k == "w" and wreg[s] // 4 >= allow_w_idx:
            return False
        stream.pop(0)
        if k == "y":
            y_load(*s)
        elif k == "chk":
            spin(w2_check, lambda: e(prep_load()), ptok2)
        else:
            w_load(*s)
        return True

    tr_issue(0)
    tr_issue(1)
    for idx in range(40):
        a, b = yorder[idx]
        yr = Y + 4 * (8 * a + b)
        for t in range(3):
            r, tok = fr[(idx, t)]
            g.wait(vm=ytok[(a, b)] if t == 0 else None, lg=tok)
            e(f"v_mfma_f32_32x32x16_bf16 v[{ACC+16*t}:{ACC+16*t+15}], a[{r}:{r+3}], v[{yr}:{yr+3}], v[{ACC+16*t}:{ACC+16*t+15}]")
            if t == 0:
                next_load(FB // 4)
            if t == 1 and idx % 3 == 2:
                next_load(FB // 4)
        if idx + 2 < 40:
            tr_issue(idx + 2)
        if idx in (0, 4, 9, 19, 29):
            g.stamp(f"g1_slot{idx}")
    g.stamp("gemm1_done")
    e("s_barrier")

    G = vTmp
    for t in range(3):
        base = ACC + 16 * t
        if t == 0:
            g.nop(12)
        for pr in range(8):
            z = base + 2 * pr
            tq = G + 4 * (pr % 2)
            e(f"v_pk_mul_f32 v[{tq}:{tq+1}], v[{z}:{z+1}], v[{z}:{z+1}]")
            e(f"v_pk_fma_f32 v[{tq}:{tq+1}], v[{tq}:{tq+1}], v[{vC2}:{vC2+1}], v[{vC1}:{vC1+1}]")
            e(f"v_pk_mul_f32 v[{tq}:{tq+1}], v[{tq}:{tq+1}], v[{z}:{z+1}]")
            e(f"v_exp_f32 v{tq}, v{tq}\nv_exp_f32 v{tq+1}, v{tq+1}\ns_nop 0")
            e(f"v_pk_add_f32 v[{tq}:{tq+1}], v[{tq}:{tq+1}], v[14:15]")
            e(f"v_rcp_f32 v{tq}, v{tq}\nv_rcp_f32 v{tq+1}, v{tq+1}\ns_nop 0")
            e(f"v_pk_mul_f32 v[{tq}:{tq+1}], v[{tq}:{tq+1}], v[{z}:{z+1}]")
            e(f"v_cvt_pk_bf16_f32 v{base+pr}, v{tq}, v{tq+1}")
            if pr % 2 == 1:
                next_load()
        g.vmem(f"buffer_store_dwordx4 v[{base}:{base+3}], v{vHs}, s[{SWS}:{SWS+3}], s{sHB} offen offset:{t*1024} sc1")
        htok = g.vmem(f"buffer_store_dwordx4 v[{base+4}:{base+7}], v{vHs}, s[{SWS}:{SWS+3}], s{sHB} offen offset:{t*1024+512} sc1")
        if t > 0:
            publish((2 << t) - 1, prev_htok)
        prev_htok = htok
        g.stamp(f"gelu{t}")
    g.stamp("gelu_done")
    for _ in range(6):
        next_load()
    publish(15, prev_htok)
    while next_load():
        pass
    g.stamp("w2_all_issued")

    ACC2 = 176
    HB = [96 + 4 * i for i in range(20)] + [32 + 4 * i for i in range(16)]
    hb_next = [0]
    htoks = {}

    def h_poll():
        return f"buffer_load_dwordx2 v[{vF}:{vF+1}], v{vPh}, s[{SWS}:{SWS+3}], 0 offen sc1"

    def h_check(t):
        def f():
            flag_eval(2, 2 << t)
            e("s_nop 1\ns_cmp_eq_u64 vcc, -1")
        return f

    def h_load(t, p, i):
        r = HB[hb_next[0] % len(HB)]
        hb_next[0] += 1
        e(f"s_add_u32 s{sT}, s{sPH+p}, s{sMI+i}")
        htoks[(t, p, i)] = (r, g.vmem(f"buffer_load_dwordx4 v[{r}:{r+3}], v{vL16}, s[{SWS}:{SWS+3}], s{sT} offen offset:{t*1024} sc1"))

    started = set()

    def mm(t, p, i):
        r, tok = htoks[(t, p, i)]
        for jj in range(5):
            g.wait(vm=max(tok, wtok[(t, p, jj)]))
            c = ACC2 + 20 * i + 4 * jj
            w = wreg[(t, p, jj)]
            cin = f"v[{c}:{c+3}]" if (i, jj) in started else "0"
            started.add((i, jj))
            e(f"v_mfma_f32_16x16x32_bf16 v[{c}:{c+3}], a[{w}:{w+3}], v[{r}:{r+3}], {cin}")

    e(f"v_lshrrev_b32 v{vTmp+10}, 4, v{vL}\nv_lshlrev_b32 v{vTmp+10}, 3, v{vTmp+10}\ns_mul_i32 s{sT2}, s{sNT}, 160")
    for jj in range(5):
        b2tok = g.vmem(f"buffer_load_dwordx2 v[{vTmp+2*jj}:{vTmp+2*jj+1}], v{vTmp+10}, s[{SB2}:{SB2+3}], s{sT2} offen offset:{jj*32}")

    tk = g.vmem(h_poll())
    spin(h_check(0), lambda: e(h_poll()), tk)
    g.stamp("h0_flag_ok")
    for i in range(4):
        h_load(0, 0, i)
    tk = g.vmem(h_poll())
    for p in range(1, 4):
        for i in range(4):
            h_load(0, p, i)
    spin(h_check(1), lambda: e(h_poll()), tk)
    g.stamp("h1_flag_ok")
    for i in range(4):
        h_load(1, 0, i)
    tk = g.vmem(h_poll())
    pend = [(1, p, i) for p in range(1, 4) for i in range(4)]
    for p in range(4):
        for i in range(4):
            mm(0, p, i)
            if pend:
                h_load(*pend.pop(0))
    g.stamp("g2_t0_done")
    spin(h_check(2), lambda: e(h_poll()), tk)
    g.stamp("h2_flag_ok")
    pend = [(2, p, i) for i in range(4) for p in range(4)]
    for _ in range(4):
        h_load(*pend.pop(0))
    for p in range(4):
        for i in range(4):
            mm(1, p, i)
            if pend:
                h_load(*pend.pop(0))
    g.stamp("g2_t1_done")
    for i in range(3):
        e(f"s_add_u32 s{sT}, s{sW}, {i+1}\ns_and_b32 s{sT}, s{sT}, 3\ns_mul_i32 s{sT}, s{sT}, 15360\ns_add_u32 s{sT}, s{sT}, {i*5120}\nv_add_u32 v{vF+i}, s{sT}, v{vL16}")
    e(f"s_mul_i32 s{sT}, s{sW}, 15360\nv_add_u32 v{vF+3}, s{sT}, v{vL16}")
    for i in range(4):
        for p in range(4):
            mm(2, p, i)
            if i > 0 and p >= 1:
                for jj in ((0, 1) if p == 1 else (2, 3) if p == 2 else (4,)):
                    c = ACC2 + 20 * (i - 1) + 4 * jj
                    g.ds(f"ds_write_b128 v{vF+i-1}, v[{c}:{c+3}] offset:{jj*1024}")
    g.stamp("gemm2_done")
    g.wait(lg=g.lg)
    e("s_barrier")
    g.stamp("red_barrier")
    R = 96
    rt = []
    for k in range(15):
        rt.append(g.ds(f"ds_read_b128 v[{R+4*k}:{R+4*k+3}], v{vF+3} offset:{k*1024}"))
    e(f"v_and_b32 v{vF}, 15, v{vL}\nv_mul_u32_u24 v{vF}, 1280, v{vF}\nv_add_u32 v{vF}, v{vF}, v{vTmp+10}")
    e(f"s_lshl_b32 s{sT}, s{sMT}, 6\ns_lshl_b32 s{sT3}, s{sW}, 4\ns_add_u32 s{sT}, s{sT}, s{sT3}\ns_mul_i32 s{sT}, s{sT}, 1280\ns_add_u32 s{sT}, s{sT}, s{sT2}")
    g.wait(vm=b2tok)
    C3 = ACC2 + 60
    BF = 160
    for jj in range(5):
        c = C3 + 4 * jj
        e(f"v_lshlrev_b32 v{BF}, 16, v{vTmp+2*jj}\nv_and_b32 v{BF+1}, 0xffff0000, v{vTmp+2*jj}\nv_lshlrev_b32 v{BF+2}, 16, v{vTmp+2*jj+1}\nv_and_b32 v{BF+3}, 0xffff0000, v{vTmp+2*jj+1}")
        e(f"v_pk_add_f32 v[{c}:{c+1}], v[{c}:{c+1}], v[{BF}:{BF+1}]\nv_pk_add_f32 v[{c+2}:{c+3}], v[{c+2}:{c+3}], v[{BF+2}:{BF+3}]")
    for i in range(3):
        for jj in range(5):
            k = 5 * i + jj
            c = C3 + 4 * jj
            g.wait(lg=rt[k])
            e(f"v_pk_add_f32 v[{c}:{c+1}], v[{c}:{c+1}], v[{R+4*k}:{R+4*k+1}]\nv_pk_add_f32 v[{c+2}:{c+3}], v[{c+2}:{c+3}], v[{R+4*k+2}:{R+4*k+3}]")
            if i == 2:
                e(f"v_cvt_pk_bf16_f32 v{c}, v{c}, v{c+1}\nv_cvt_pk_bf16_f32 v{c+1}, v{c+2}, v{c+3}")
                g.vmem(f"buffer_store_dwordx2 v[{c}:{c+1}], v{vF}, s[{SO}:{SO+3}], s{sT} offen offset:{jj*32}")
    if diag:
        g.stamp("out_issued")
        e("s_waitcnt vmcnt(0)")
        g.stamp("end")
        e(f"s_lshl_b32 s{sT}, s2, 2\ns_add_u32 s{sT}, s{sT}, s{sW}\ns_lshl_b32 s{sT}, s{sT}, 8\ns_add_u32 s{sT}, s{sT}, {T0}")
        e(f"v_lshlrev_b32 v{vF}, 2, v{vL}")
        e(f"buffer_store_dword v0, v{vF}, s[{SWS}:{SWS+3}], s{sT} offen")
        open("stampnames.txt", "w").write("\n".join(g.stampnames))
    if hd:
        e("s_waitcnt vmcnt(0)\ns_barrier\ns_memtime s[98:99]\ns_memrealtime s[100:101]\ns_waitcnt lgkmcnt(0)")
        e(f"s_cmp_lg_u32 s{sW}, 0\ns_cbranch_scc1 L_end\ns_sleep 127\ns_sleep 127\ns_sleep 127\ns_sleep 127")
        e(f"s_lshl_b32 s{sT}, s100, 4\ns_sub_u32 s{sT}, s{sT}, s{sN}\ns_and_b32 s{sT}, s{sT}, 0x7fffffff\ns_lshr_b32 s{sT}, s{sT}, 4\nv_mov_b32 v20, s{sT}")
        e(f"s_sub_u32 s{sT}, s98, s94\nv_mov_b32 v21, s{sT}")
        e(f"s_add_u32 s{sT}, s96, 4096\ns_lshl_b32 s{sT}, s{sT}, 4\ns_sub_u32 s{sT}, s{sT}, s{sN}\ns_and_b32 s{sT}, s{sT}, 0x7fffffff\ns_lshr_b32 s{sT}, s{sT}, 4\nv_mov_b32 v22, s{sT}")
        e(f"s_sub_u32 s{sT}, 8192, s{sT}\nv_mov_b32 v23, s{sT}")
        e(f"s_sub_u32 s{sT}, s100, s96\nv_mov_b32 v24, s{sT}")
        e("v_mov_b32 v25, 0\ns_mov_b64 exec, 1")
        for i in range(5):
            e(f"buffer_atomic_umax v{20+i}, v25, s[{SD}:{SD+3}], 0 offen offset:{4+4*i} sc1")
    g.label("L_end")
    e("s_endpgm")
    out += g.L
    out += ['.section .rodata,"a"', ".p2align 6", f".amdhsa_kernel {NAME}",
            "  .amdhsa_next_free_vgpr 512", "  .amdhsa_next_free_sgpr 102", "  .amdhsa_accum_offset 256",
            "  .amdhsa_group_segment_fixed_size 0", "  .amdhsa_kernarg_size 64", "  .amdhsa_user_sgpr_count 2",
            "  .amdhsa_user_sgpr_kernarg_segment_ptr 1", "  .amdhsa_system_sgpr_workgroup_id_x 1", ".end_amdhsa_kernel"]
    return "\n".join(out) + "\n"


if __name__ == "__main__":
    diag = "--diag" in sys.argv
    path = [a for a in sys.argv[1:] if not a.startswith("--")]
    path = path[0] if path else "standalone__mixer_channel_mlp__prompt.s"
    open(path, "w").write(generate(diag, "--hd" in sys.argv))
    print("wrote", path)
```

```python
import sys
from gen import Gen, NAME

Y0 = 0
W0 = 4 << 20
H0 = 8 << 20
F0 = 16 << 20
T0 = 17 << 20
WS_BYTES = 18 << 20

LDS_W1 = 0
LDS_STAGE = 122880
LDS_YX = 122880 + 8192
LDS_BYTES = LDS_YX + 80 * 144

SPIN_MAX = 20000
B_Y, B_W, B_H = 1, 2, 4


def generate(diag=False, hd=False, P=None):
    P = dict(dict(win1=7, w1pre=2, ahead=10, g1loads=48, lnw=1, postw=4), **(P or {}))
    g = Gen(diag)
    e = g.e
    SX, SW1, SB1, SW2, SB2, SO, SD, SWS = 4, 8, 12, 16, 20, 24, 28, 32
    sW = 36
    sMB, sFT, sQ, sMT, sNT, sPERM, sJY, sR1 = 37, 38, 39, 40, 41, 42, 43, 44
    sN = 45
    sT, sT2, sT3 = 46, 47, 48
    sCNT = 49
    sEX = 50
    sYB = 52
    sPW = 60
    sPH = 64
    sMI = 68
    sK1 = 72
    sONE = 73
    sHB = 74
    sIDX = 75
    sC1 = 76
    sCB, sS2, sSTG, sWA, sWB = 77, 78, 79, 80, 81
    vL, vL16 = 1, 2
    vW1 = 3
    vFl, vPo, vPh, vHs = 6, 7, 8, 9
    vC2, vC1, vOne = 10, 12, 14
    vF = 16
    vTmp = 20
    vT = 32
    ACC = 48
    Y = 96

    hdr = open("standalone__mixer_channel_mlp__prompt.s.ref").read().split("\n")
    head = []
    for ln in hdr:
        if ln.startswith("; @launch"):
            head.append(f"; @launch grid=(256,1,1) block=(256,1,1) lds={LDS_BYTES}")
            break
        head.append(ln)
    out = head + ['.amdgcn_target "amdgcn-amd-amdhsa--gfx950"', ".text", f".globl {NAME}", ".p2align 8",
                  f".type {NAME},@function", f"{NAME}:"]

    e("s_cmp_ge_u32 s2, 256\ns_cbranch_scc1 L_end")
    e("s_load_dwordx16 s[76:91], s[0:1], 0")
    if hd:
        e("s_memtime s[94:95]\ns_memrealtime s[96:97]")
    e(f"v_and_b32 v{vL}, 63, v0\nv_lshrrev_b32 v{vTmp}, 6, v0\nv_lshlrev_b32 v{vL16}, 4, v{vL}")
    e(f"v_readfirstlane_b32 s{sW}, v{vTmp}")
    e(f"s_and_b32 s{sT}, s2, 7\ns_lshr_b32 s{sIDX}, s2, 3")
    e(f"s_lshr_b32 s{sT2}, s{sT}, 1\ns_and_b32 s{sT3}, s{sT}, 1")
    e(f"s_lshr_b32 s{sR1}, s{sIDX}, 3\ns_lshl_b32 s{sMB}, s{sT2}, 2\ns_add_u32 s{sMB}, s{sMB}, s{sR1}")
    e(f"s_and_b32 s{sJY}, s{sIDX}, 7\ns_lshl_b32 s{sFT}, s{sT3}, 3\ns_add_u32 s{sFT}, s{sFT}, s{sJY}")
    e(f"s_lshl_b32 s{sQ}, s{sMB}, 4\ns_add_u32 s{sQ}, s{sQ}, s{sFT}")
    e(f"s_lshr_b32 s{sPERM}, s{sIDX}, 2\ns_lshl_b32 s{sMT}, s{sT2}, 3\ns_add_u32 s{sMT}, s{sMT}, s{sPERM}")
    e(f"s_and_b32 s{sNT}, s{sIDX}, 3\ns_lshl_b32 s{sT3}, s{sT3}, 2\ns_add_u32 s{sNT}, s{sNT}, s{sT3}")
    e(f"s_xor_b32 s{sPERM}, s{sPERM}, s{sIDX}\ns_and_b32 s{sPERM}, s{sPERM}, 3")
    e(f"s_mov_b32 s{sONE}, 0x3f803f80")
    vR, vI, vXo = vTmp + 2, vTmp + 3, vTmp + 1
    e(f"v_lshrrev_b32 v{vR}, 5, v{vL}\nv_and_b32 v{vI}, 31, v{vL}")
    e(f"v_mul_u32_u24 v{vXo}, 1280, v{vR}\nv_lshl_add_u32 v{vXo}, v{vI}, 3, v{vXo}")
    e(f"s_lshl_b32 s{sT}, s{sQ}, 3\ns_lshl_b32 s{sT2}, s{sW}, 1\ns_add_u32 s{sT}, s{sT}, s{sT2}\ns_mul_i32 s{sT}, s{sT}, 1280")
    for i in range(3):
        e(f"v_add_u32 v{vTmp+6}, {64*i}, v{vL}\nv_mul_u32_u24 v{vTmp+7}, 5462, v{vTmp+6}\nv_lshrrev_b32 v{vTmp+7}, 16, v{vTmp+7}")
        e(f"v_mul_u32_u24 v{vTmp+8}, 12, v{vTmp+7}\nv_sub_u32 v{vTmp+8}, v{vTmp+6}, v{vTmp+8}")
        e(f"v_mul_u32_u24 v{vTmp+7}, 3072, v{vTmp+7}\nv_lshl_add_u32 v{vW1+i}, v{vTmp+8}, 4, v{vTmp+7}")
    e(f"s_mul_i32 s{sK1}, s{sR1}, 10\ns_add_u32 s{sK1}, s{sK1}, s{sW}")
    e(f"v_mov_b32 v{vTmp+5}, 0")
    e("s_waitcnt lgkmcnt(0)")

    def srd(r, k, nbytes):
        e(f"s_mov_b32 s{r}, s{76+2*k}\ns_mov_b32 s{r+1}, s{77+2*k}\ns_mov_b32 s{r+2}, {nbytes}\ns_mov_b32 s{r+3}, 0x00020000")

    srd(SX, 0, 2621440)
    XR = Y
    xtok = [g.vmem(f"buffer_load_dwordx2 v[{XR+2*j}:{XR+2*j+1}], v{vXo}, s[{SX}:{SX+3}], s{sT} offen offset:{256*j}") for j in range(5)]
    srd(SD, 6, 256)
    lab = g.newlab("nononce")
    e(f"s_or_b32 s{sT}, s2, s{sW}\ns_cmp_lg_u32 s{sT}, 0\ns_cbranch_scc1 {lab}")
    e(f"s_memrealtime s[{sEX}:{sEX+1}]\ns_waitcnt lgkmcnt(0)")
    e(f"s_lshl_b32 s{sT}, s{sEX}, 5\ns_or_b32 s{sT}, s{sT}, 0x80000000\nv_mov_b32 v{vTmp+4}, s{sT}")
    e(f"s_mov_b64 s[{sEX}:{sEX+1}], exec\ns_mov_b64 exec, 1")
    e(f"buffer_store_dword v{vTmp+4}, v{vTmp+5}, s[{SD}:{SD+3}], 0 offen sc1")
    e(f"s_mov_b64 exec, s[{sEX}:{sEX+1}]")
    g.label(lab)
    srd(SW1, 1, 1966080)
    for r, k, n in ((SB1, 2, 3072), (SW2, 3, 1966080), (SB2, 4, 1280), (SO, 5, 2621440), (SWS, 7, WS_BYTES)):
        srd(r, k, n)
    e(f"s_mul_i32 s{sC1}, s{sFT}, 192")
    g.stamp("start")
    w1tok = []
    w1n = [0]

    def w1_one(win=None):
        i = w1n[0] % 3
        w1n[0] += 1
        if i == 0:
            e(f"s_mul_i32 s{sWA}, s{sK1}, {16*3072}\ns_add_u32 s{sWA}, s{sWA}, s{sC1}\ns_mul_i32 s{sWB}, s{sK1}, 3072")
            e(f"s_add_u32 s{sK1}, s{sK1}, 4\ns_cmp_ge_u32 s{sK1}, 40\ns_cselect_b32 s{sT3}, 40, 0\ns_sub_u32 s{sK1}, s{sK1}, s{sT3}")
        e(f"s_add_u32 m0, s{sWB}, {LDS_W1 + i*1024}")
        if win is not None and g.vm - (win - 1) > g.vm_done:
            g.wait(vm=g.vm - (win - 1))
        else:
            e("s_nop 0")
        w1tok.append(g.vmem(f"buffer_load_dwordx4 v{vW1+i}, s[{SW1}:{SW1+3}], s{sWA} offen lds"))

    for _ in range(3 * P["w1pre"]):
        w1_one()
    ntok = g.vmem(f"buffer_load_dword v{vF}, v{vTmp+5}, s[{SD}:{SD+3}], 0 offen sc1")
    BR = Y + 56
    e(f"v_lshlrev_b32 v{vTmp+8}, 3, v{vR}")
    for t in range(3):
        for q in range(4):
            k = t * 4 + q
            btok = g.vmem(f"buffer_load_dwordx2 v[{BR+2*k}:{BR+2*k+1}], v{vTmp+8}, s[{SB1}:{SB1+3}], s{sC1} offen offset:{t*64+q*16}")

    vYw, vYr, vYs = vTmp + 9, vTmp + 10, vTmp + 11
    e(f"v_lshrrev_b32 v{vTmp+6}, 1, v{vI}\nv_mul_u32_u24 v{vYw}, 144, v{vTmp+6}\nv_lshl_add_u32 v{vYw}, v{vR}, 4, v{vYw}")
    e(f"v_and_b32 v{vTmp+6}, 1, v{vI}\nv_lshl_add_u32 v{vYw}, v{vTmp+6}, 3, v{vYw}")
    e(f"s_lshl_b32 s{sT}, s{sW}, 5\ns_add_u32 s{sT}, s{sT}, {LDS_YX}\nv_add_u32 v{vYw}, s{sT}, v{vYw}")
    e(f"v_lshrrev_b32 v{vTmp+6}, 3, v{vL}\nv_and_b32 v{vTmp+7}, 7, v{vL}\nv_lshlrev_b32 v{vTmp+7}, 4, v{vTmp+7}")
    e(f"v_mul_u32_u24 v{vYr}, 144, v{vTmp+6}\nv_add_u32 v{vYr}, v{vYr}, v{vTmp+7}")
    e(f"s_mul_i32 s{sT}, s{sW}, {20*144}\ns_add_u32 s{sT}, s{sT}, {LDS_YX}\nv_add_u32 v{vYr}, s{sT}, v{vYr}")
    e(f"v_lshl_add_u32 v{vYs}, v{vTmp+6}, 9, v{vTmp+7}")
    vYs2 = vTmp + 4
    e(f"v_cmp_gt_u32 vcc, 32, v{vL}\nv_mov_b32 v{vTmp+6}, {WS_BYTES}\ns_nop 0\nv_cndmask_b32 v{vYs2}, v{vTmp+6}, v{vYs}, vcc")
    e(f"s_lshr_b32 s{sT}, s{sQ}, 2\ns_mul_i32 s{sT}, s{sT}, 40960\ns_and_b32 s{sT2}, s{sQ}, 3\ns_lshl_b32 s{sT2}, s{sT2}, 7\ns_add_u32 s{sT}, s{sT}, s{sT2}")
    e(f"s_mul_i32 s{sT2}, s{sW}, 10240\ns_add_u32 s{sYB}, s{sT}, s{sT2}")
    e(f"s_lshl_b32 s{sT}, s{sQ}, 7\ns_lshl_b32 s{sT2}, s{sW}, 2\ns_add_u32 s{sT}, s{sT}, s{sT2}\ns_add_u32 s{sT}, s{sT}, {F0}\nv_mov_b32 v{vFl}, s{sT}")

    XF = Y + 12
    A0, A1, A2, A3 = Y + 32, Y + 33, Y + 34, Y + 35
    e(f"v_mov_b32 v{A0}, 0\nv_mov_b32 v{A1}, 0")
    g.wait(vm=xtok[-1])
    g.stamp("x_arrived")
    for j in range(10):
        a = A0 if j % 2 == 0 else A1
        e(f"v_dot2_f32_bf16 v{a}, v{XR+j}, s{sONE}, v{a}")
    for j in range(3):
        e(f"v_lshlrev_b32 v{XF+2*j}, 16, v{XR+j}\nv_and_b32 v{XF+2*j+1}, 0xffff0000, v{XR+j}")
    e(f"v_add_f32 v{A0}, v{A0}, v{A1}")
    fill = [f"v_lshlrev_b32 v{XF+2*j}, 16, v{XR+j}\nv_and_b32 v{XF+2*j+1}, 0xffff0000, v{XR+j}" for j in range(3, 10)]

    def reduce32(a, t, fill):
        def pad():
            e(fill.pop(0) if fill else "s_nop 1")
        for r in (8, 4, 2, 1):
            pad()
            e(f"v_add_f32_dpp v{a}, v{a}, v{a} row_ror:{r} row_mask:0xf bank_mask:0xf")
        e(f"v_mov_b32 v{t}, v{a}")
        pad()
        e(f"v_permlane16_swap_b32 v{a}, v{t}")
        pad()
        e(f"v_add_f32 v{a}, v{a}, v{t}")

    lnw = lambda: [w1_one() for _ in range(P["lnw"])]
    lnw()
    reduce32(A0, A1, fill)
    for f in fill:
        e(f)
    lnw()
    e(f"v_mul_f32 v{A0}, 0x3acccccd, v{A0}")
    e(f"v_cvt_pk_bf16_f32 v{A2}, v{A0}, v{A0}\nv_lshlrev_b32 v{A2}, 16, v{A2}")
    e(f"v_sub_f32 v{A0}, v{A0}, v{A2}\nv_mov_b32 v{A3}, v{A2}")
    S0 = Y + 36
    for j in range(10):
        e(f"v_pk_add_f32 v[{XF+2*j}:{XF+2*j+1}], v[{XF+2*j}:{XF+2*j+1}], v[{A2}:{A3}] neg_lo:[0,1] neg_hi:[0,1]")
    for j in range(10):
        s = S0 + 2 * (j % 2)
        if j < 2:
            e(f"v_pk_mul_f32 v[{s}:{s+1}], v[{XF+2*j}:{XF+2*j+1}], v[{XF+2*j}:{XF+2*j+1}]")
        else:
            e(f"v_pk_fma_f32 v[{s}:{s+1}], v[{XF+2*j}:{XF+2*j+1}], v[{XF+2*j}:{XF+2*j+1}], v[{s}:{s+1}]")
    e(f"v_pk_add_f32 v[{S0}:{S0+1}], v[{S0}:{S0+1}], v[{S0+2}:{S0+3}]\nv_add_f32 v{S0}, v{S0}, v{S0+1}")
    lnw()
    reduce32(S0, S0 + 1, [])
    e(f"v_mul_f32 v{S0}, 0x3acccccd, v{S0}")
    e(f"v_fma_f32 v{S0}, -v{A0}, v{A0}, v{S0}\nv_max_f32 v{S0}, 0, v{S0}")
    e(f"v_cvt_pk_bf16_f32 v{S0}, v{S0}, v{S0}\nv_lshlrev_b32 v{S0}, 16, v{S0}")
    e(f"v_add_f32 v{S0}, 0x3727c5ac, v{S0}")
    e(f"v_cvt_pk_bf16_f32 v{S0}, v{S0}, v{S0}\nv_lshlrev_b32 v{S0}, 16, v{S0}")
    e(f"v_sqrt_f32 v{S0}, v{S0}\ns_nop 0")
    e(f"v_cvt_pk_bf16_f32 v{S0}, v{S0}, v{S0}\nv_lshlrev_b32 v{S0}, 16, v{S0}")
    e(f"v_rcp_f32 v{S0}, v{S0}\ns_nop 0\nv_mov_b32 v{S0+1}, v{S0}")
    for j in range(5):
        for jj in (2 * j, 2 * j + 1):
            e(f"v_pk_mul_f32 v[{XF+2*jj}:{XF+2*jj+1}], v[{XF+2*jj}:{XF+2*jj+1}], v[{S0}:{S0+1}]")
        for jj in (2 * j, 2 * j + 1):
            e(f"v_cvt_pk_bf16_f32 v{XR+jj}, v{XF+2*jj}, v{XF+2*jj+1}")
        t = g.ds(f"ds_write_b64 v{vYw}, v[{XR+2*j}:{XR+2*j+1}] offset:{16*j*144}")
    g.stamp("ln_done")
    g.wait(lg=t)
    e("s_barrier")
    YL = Y + 40
    rt = [g.ds(f"ds_read_b128 v[{YL+4*k}:{YL+4*k+3}], v{vYr} offset:{8*k*144}") for k in range(3)]
    for k in range(3):
        g.wait(lg=rt[k])
        if k:
            e(f"s_add_u32 s{sYB}, s{sYB}, 4096")
        ystok = g.vmem(f"buffer_store_dwordx4 v[{YL+4*k}:{YL+4*k+3}], v{vYs if k < 2 else vYs2}, s[{SWS}:{SWS+3}], s{sYB} offen sc1")
    g.stamp("y_stores_issued")

    def spin(check_emit, load_emit, tok):
        g.wait(vm=tok)
        ok = g.newlab("ok")
        retry = g.newlab("retry")
        check_emit()
        e(f"s_cbranch_scc1 {ok}")
        e(f"s_mov_b32 s{sCNT}, {SPIN_MAX}")
        g.label(retry)
        e(f"s_sub_u32 s{sCNT}, s{sCNT}, 1\ns_cmp_eq_u32 s{sCNT}, 0\ns_cbranch_scc1 {ok}")
        load_emit()
        e("s_waitcnt vmcnt(0)")
        check_emit()
        e(f"s_cbranch_scc0 {retry}")
        g.label(ok)

    def nonce_load():
        e(f"buffer_load_dword v{vF}, v{vTmp+5}, s[{SD}:{SD+3}], 0 offen sc1")

    def nonce_check():
        e(f"v_readfirstlane_b32 s{sN}, v{vF}\ns_nop 3\ns_cmp_lg_u32 s{sN}, 0")

    for _ in range(P["postw"]):
        w1_one()
    spin(nonce_check, nonce_load, ntok)

    def publish(bits, tok):
        e(f"s_or_b32 s{sT}, s{sN}, {bits}\nv_mov_b32 v{vTmp+8}, s{sT}")
        g.wait(vm=tok)
        e(f"s_mov_b64 exec, 1")
        g.vmem(f"buffer_store_dword v{vTmp+8}, v{vFl}, s[{SWS}:{SWS+3}], 0 offen sc1")
        e(f"s_mov_b64 exec, -1")

    publish(B_Y, ystok)
    g.stamp("y_published")

    setup = []
    S = setup.append
    S(f"v_cmp_le_u32 vcc, 12, v{vL}\ns_mul_i32 s{sT}, s{sNT}, 5\ns_nop 0\nv_cndmask_b32 v{vTmp+7}, 0, 1, vcc")
    S(f"v_lshl_add_u32 v{vTmp+6}, v{vTmp+7}, 2, s{sT}\nv_lshrrev_b32 v{vTmp+6}, 3, v{vTmp+6}\nv_mul_u32_u24 v{vTmp+6}, 48, v{vTmp+6}")
    S(f"v_mul_u32_u24 v{vTmp+7}, 12, v{vTmp+7}\nv_sub_u32 v{vTmp+7}, v{vL}, v{vTmp+7}\ns_mul_i32 s{sT}, s{sW}, 12\nv_add3_u32 v{vTmp+6}, v{vTmp+6}, v{vTmp+7}, s{sT}")
    S(f"v_cmp_gt_u32 vcc, 24, v{vL}\nv_readfirstlane_b32 s{sT}, v{vTmp+6}\ns_nop 1\nv_mov_b32 v{vTmp+7}, s{sT}\nv_cndmask_b32 v{vPo}, v{vTmp+7}, v{vTmp+6}, vcc")
    S(f"v_lshlrev_b32 v{vPo}, 7, v{vPo}\nv_add_u32 v{vPo}, {F0}, v{vPo}")
    S(f"s_lshl_b32 s{sT}, s{sMB}, 4\ns_lshl_b32 s{sT2}, s{sW}, 2\ns_add_u32 s{sT}, s{sT}, s{sT2}\nv_and_b32 v{vTmp+7}, 3, v{vL}\nv_add_u32 v{vTmp+7}, s{sT}, v{vTmp+7}")
    S(f"v_lshlrev_b32 v{vPh}, 7, v{vTmp+7}\nv_add_u32 v{vPh}, {F0}, v{vPh}")
    S(f"v_lshrrev_b32 v{vTmp+7}, 5, v{vL}\nv_lshlrev_b32 v{vTmp+7}, 3, v{vTmp+7}\nv_bfe_u32 v{vTmp+6}, v{vL}, 2, 2\nv_add_u32 v{vTmp+7}, v{vTmp+7}, v{vTmp+6}")
    S(f"v_mul_u32_u24 v{vTmp+7}, 192, v{vTmp+7}\nv_bfe_u32 v{vTmp+6}, v{vL}, 4, 1\nv_lshl_add_u32 v{vTmp+7}, v{vTmp+6}, 5, v{vTmp+7}")
    S(f"v_and_b32 v{vTmp+6}, 3, v{vL}\nv_lshl_add_u32 v{vTmp+7}, v{vTmp+6}, 3, v{vTmp+7}")
    S(f"s_lshl_b32 s{sCNT}, s{sMB}, 2\ns_add_u32 s{sCNT}, s{sCNT}, s{sW}\ns_mul_i32 s{sCNT}, s{sCNT}, 40960")
    for b in range(8):
        S(f"s_xor_b32 s{sT}, s{sJY}, {b}\ns_lshl_b32 s{sT2}, s{sT}, 10\ns_add_u32 s{sYB+b}, s{sT2}, s{sCNT}\n"
          f"s_mul_i32 s{sT}, s{sT}, 3072\nv_add_u32 v{vT+b}, s{sT}, v{vTmp+7}\nv_add_u32 v{vT+8+b}, {3*24576}, v{vT+b}")
    for p in range(4):
        S(f"s_xor_b32 s{sT}, s{sPERM}, {p}\ns_mul_i32 s{sT}, s{sT}, 3\ns_mul_i32 s{sT2}, s{sW}, 12\ns_add_u32 s{sT}, s{sT}, s{sT2}\ns_lshl_b32 s{sPH+p}, s{sT}, 10\n"
          f"s_mul_i32 s{sT2}, s{sNT}, 48\ns_add_u32 s{sT}, s{sT}, s{sT2}\ns_mul_i32 s{sT}, s{sT}, 5120\ns_add_u32 s{sPW+p}, s{sT}, {W0}")
    for i in range(4):
        S(f"s_add_u32 s{sT}, s{sW}, {i+1}\ns_and_b32 s{sT}, s{sT}, 3\ns_lshl_b32 s{sT2}, s{sMT}, 2\ns_add_u32 s{sT}, s{sT}, s{sT2}\n"
          f"s_mul_i32 s{sT}, s{sT}, 49152\ns_add_u32 s{sMI+i}, s{sT}, {H0}")
    S(f"v_bfe_u32 v{vTmp+6}, v{vL}, 4, 1\nv_mul_u32_u24 v{vHs}, 49152, v{vTmp+6}\nv_lshrrev_b32 v{vTmp+6}, 5, v{vL}\nv_lshl_add_u32 v{vHs}, v{vTmp+6}, 8, v{vHs}")
    S(f"v_and_b32 v{vTmp+6}, 15, v{vL}\nv_lshl_add_u32 v{vHs}, v{vTmp+6}, 4, v{vHs}")
    S(f"s_lshl_b32 s{sT}, s{sMB}, 3\ns_lshl_b32 s{sT2}, s{sW}, 1\ns_add_u32 s{sT}, s{sT}, s{sT2}\ns_mul_i32 s{sT}, s{sT}, 49152\n"
      f"s_mul_i32 s{sT2}, s{sFT}, 3072\ns_add_u32 s{sT}, s{sT}, s{sT2}\ns_add_u32 s{sHB}, s{sT}, {H0}")
    S(f"v_mov_b32 v{vC2}, 0xbdd2d3e8\nv_mov_b32 v{vC2+1}, 0xbdd2d3e8\nv_mov_b32 v{vC1}, 0xc0135761\nv_mov_b32 v{vC1+1}, 0xc0135761\nv_mov_b32 v{vOne}, 1.0\nv_mov_b32 v{vOne+1}, 1.0")
    vW2o, vP = vTmp + 10, vTmp + 11
    S(f"s_mul_i32 s{sCB}, s{sQ}, 1366\ns_lshr_b32 s{sCB}, s{sCB}, 16\ns_mul_i32 s{sT3}, s{sCB}, 48\ns_sub_u32 s{sS2}, s{sQ}, s{sT3}")
    S(f"v_lshrrev_b32 v{vW2o}, 2, v{vL}\nv_mul_u32_u24 v{vW2o}, 1280, v{vW2o}\nv_and_b32 v{vTmp+6}, 3, v{vL}\nv_lshl_add_u32 v{vW2o}, v{vTmp+6}, 4, v{vW2o}")
    S(f"s_lshl_b32 s{sT2}, s{sW}, 11\ns_add_u32 s{sSTG}, s{sT2}, {LDS_STAGE}")
    S(f"v_lshrrev_b32 v{vTmp+6}, 5, v{vL}\nv_lshlrev_b32 v{vP}, 10, v{vTmp+6}\nv_bfe_u32 v{vTmp+6}, v{vL}, 4, 1\nv_lshl_add_u32 v{vP}, v{vTmp+6}, 8, v{vP}")
    S(f"v_bfe_u32 v{vTmp+6}, v{vL}, 2, 2\nv_lshl_add_u32 v{vP}, v{vTmp+6}, 6, v{vP}\nv_and_b32 v{vTmp+6}, 3, v{vL}\nv_lshl_add_u32 v{vP}, v{vTmp+6}, 3, v{vP}\nv_add_u32 v{vP}, s{sSTG}, v{vP}")

    nrem = 30 - w1n[0]
    per = -(-len(setup) // max(1, nrem - 2))
    while w1n[0] < 30:
        for _ in range(per):
            if setup:
                e(setup.pop(0))
        w1_one(P["win1"])
    while setup:
        e(setup.pop(0))
    g.stamp("w1_all_issued")

    def y_poll():
        return f"buffer_load_dwordx4 v[{vF}:{vF+3}], v{vPh}, s[{SWS}:{SWS+3}], 0 offen sc1"

    def w_poll():
        return f"buffer_load_dwordx4 v[{vF}:{vF+3}], v{vPo}, s[{SWS}:{SWS+3}], 0 offen sc1"

    def flag_eval(regs, bit):
        m = 0xffffffe0 | bit
        e(f"s_or_b32 s{sT}, s{sN}, {bit}")
        for r in regs:
            e(f"v_xor_b32 v{r}, s{sT}, v{r}")
        for r in regs[1:]:
            e(f"v_or_b32 v{regs[0]}, v{regs[0]}, v{r}")
        e(f"v_and_b32 v{regs[0]}, {m:#x}, v{regs[0]}\nv_cmp_eq_u32 vcc, 0, v{regs[0]}\ns_nop 1\ns_cmp_eq_u64 vcc, -1")

    ptok = g.vmem(y_poll())
    e(f"s_mul_i32 s{sT}, s{sS2}, {32*1280}\ns_lshl_b32 s{sT2}, s{sCB}, 8\ns_add_u32 s{sT}, s{sT}, s{sT2}\ns_lshl_b32 s{sT2}, s{sW}, 6\ns_add_u32 s{sT}, s{sT}, s{sT2}")
    e(f"s_mov_b32 m0, s{sSTG}\ns_nop 0")
    g.vmem(f"buffer_load_dwordx4 v{vW2o}, s[{SW2}:{SW2+3}], s{sT} offen lds")
    e(f"s_add_u32 m0, s{sSTG}, 1024\ns_add_u32 s{sT}, s{sT}, {16*1280}")
    w2ptok = g.vmem(f"buffer_load_dwordx4 v{vW2o}, s[{SW2}:{SW2+3}], s{sT} offen lds")
    for ee, dst in ((0, sWA), (1, sWB)):
        e(f"s_lshl_b32 s{sT}, s{sCB}, 3\ns_lshl_b32 s{sT2}, s{sW}, 1\ns_add_u32 s{sT}, s{sT}, s{sT2}")
        if ee:
            e(f"s_add_u32 s{sT}, s{sT}, 1")
        e(f"s_mul_i32 s{sT2}, s{sT}, 13108\ns_lshr_b32 s{sT2}, s{sT2}, 16\ns_mul_i32 s{sT3}, s{sT2}, 5\ns_sub_u32 s{sT}, s{sT}, s{sT3}")
        e(f"s_mul_i32 s{sT2}, s{sT2}, 48\ns_add_u32 s{sT2}, s{sT2}, s{sS2}\ns_mul_i32 s{sT2}, s{sT2}, 5\ns_add_u32 s{sT}, s{sT}, s{sT2}")
        e(f"s_lshl_b32 s{sT}, s{sT}, 10\ns_add_u32 s{dst}, s{sT}, {W0}")
    e(f"s_cmp_ge_u32 s{sQ}, 240\ns_cselect_b32 s{sWA}, {WS_BYTES}, s{sWA}\ns_cselect_b32 s{sWB}, {WS_BYTES}, s{sWB}")
    g.wait(vm=btok)
    for k in range(24):
        e(f"v_lshlrev_b32 v{ACC+2*k}, 16, v{BR+k}\nv_and_b32 v{ACC+2*k+1}, 0xffff0000, v{BR+k}")
    F4 = [vF, vF + 1, vF + 2, vF + 3]
    spin(lambda: flag_eval(F4, B_Y), lambda: e(y_poll()), ptok)
    g.stamp("y_flags_ok")

    yorder = [(a, 0) for a in range(5)] + [(a, b) for a in range(5) for b in range(1, 8)]
    ytok = {}

    def y_load(a, b):
        r = Y + 4 * (8 * a + b)
        if a == 0:
            so = f"s{sYB+b}"
        else:
            e(f"s_add_u32 s{sT}, s{sYB+b}, {a*8192}")
            so = f"s{sT}"
        ytok[(a, b)] = g.vmem(f"buffer_load_dwordx4 v[{r}:{r+3}], v{vL16}, s[{SWS}:{SWS+3}], {so} offen sc1")

    worder = [(t, 0, jj) for t in range(3) for jj in range(5)] + \
             [(t, p, jj) for t in range(3) for p in range(1, 4) for jj in range(5)]
    wreg = {k: 4 * i for i, k in enumerate(worder)}
    wtok = {}

    def w_load(t, p, jj):
        r = wreg[(t, p, jj)]
        off = t * 5120 + jj * 1024
        if off < 4096:
            so, imm = f"s{sPW+p}", off
        else:
            e(f"s_add_u32 s{sT}, s{sPW+p}, {off}")
            so, imm = f"s{sT}", 0
        wtok[(t, p, jj)] = g.vmem(f"buffer_load_dwordx4 a[{r}:{r+3}], v{vL16}, s[{SWS}:{SWS+3}], {so} offen offset:{imm} sc1")

    AHEAD = P["ahead"]
    for s in yorder[:5]:
        y_load(*s)
    e("s_barrier")
    g.stamp("w1_barrier")
    PF = vTmp
    g.wait(vm=w2ptok)
    for ee in range(2):
        for h in range(2):
            t = g.ds(f"ds_read_b64_tr_b16 v[{PF+4*ee+2*h}:{PF+4*ee+2*h+1}], v{vP} offset:{ee*32 + h*512}")
    g.wait(lg=t)
    g.vmem(f"buffer_store_dwordx4 v[{PF}:{PF+3}], v{vL16}, s[{SWS}:{SWS+3}], s{sWA} offen sc1")
    w2stok = g.vmem(f"buffer_store_dwordx4 v[{PF+4}:{PF+7}], v{vL16}, s[{SWS}:{SWS+3}], s{sWB} offen sc1")
    for s in yorder[5:AHEAD]:
        y_load(*s)

    NBUF = 12
    FB = 192
    fr = {}

    def tr_issue(idx, t):
        a, b = yorder[idx]
        va = vT + b + (8 if a >= 3 else 0)
        ao = (a - 3 if a >= 3 else a) * 24576
        r = FB + 4 * ((3 * idx + t) % NBUF)
        for h in range(2):
            tok = g.ds(f"ds_read_b64_tr_b16 a[{r+2*h}:{r+2*h+1}], v{va} offset:{ao + t*64 + h*768}")
        fr[(idx, t)] = (r, tok)

    state = {}

    def do_wpoll():
        state["wp"] = g.vmem(w_poll())

    def do_wchk():
        spin(lambda: flag_eval(F4, B_W), lambda: e(w_poll()), state["wp"])

    ys = [("y", s) for s in yorder[AHEAD:]]
    stream = ys[:6] + [("f", lambda: publish(B_Y | B_W, w2stok))] + ys[6:-5] + [("f", do_wpoll)] + ys[-5:] + [("f", do_wchk)] + [("w", s) for s in worder]

    def next_load(allow_w_idx=60):
        while stream and stream[0][0] == "f":
            stream.pop(0)[1]()
        if not stream:
            return False
        k, s = stream[0]
        if k == "w" and wreg[s] // 4 >= allow_w_idx:
            return False
        stream.pop(0)
        if k == "y":
            y_load(*s)
        else:
            w_load(*s)
        return True

    for idx in (0, 1):
        for t in range(3):
            tr_issue(idx, t)
    nl = P["g1loads"] - AHEAD
    acc_l = 0
    for idx in range(40):
        a, b = yorder[idx]
        yr = Y + 4 * (8 * a + b)
        for t in range(3):
            r, tok = fr[(idx, t)]
            g.wait(vm=ytok[(a, b)] if t == 0 else None, lg=tok)
            e(f"v_mfma_f32_32x32x16_bf16 v[{ACC+16*t}:{ACC+16*t+15}], a[{r}:{r+3}], v[{yr}:{yr+3}], v[{ACC+16*t}:{ACC+16*t+15}]")
            if idx + 2 < 40:
                tr_issue(idx + 2, t)
            acc_l += nl
            while acc_l >= 100:
                acc_l -= 100
                next_load(FB // 4)
        if idx in (0, 4, 9, 19, 29):
            g.stamp(f"g1_slot{idx}")
    g.stamp("gemm1_done")
    e("s_barrier")

    G = vTmp
    hts = []
    for t in range(3):
        base = ACC + 16 * t
        if t == 0:
            next_load()
            g.nop(8)
        for pr in range(8):
            z = base + 2 * pr
            tq = G + 2 * (pr % 4)
            e(f"v_pk_mul_f32 v[{tq}:{tq+1}], v[{z}:{z+1}], v[{z}:{z+1}]")
            e(f"v_pk_fma_f32 v[{tq}:{tq+1}], v[{tq}:{tq+1}], v[{vC2}:{vC2+1}], v[{vC1}:{vC1+1}]")
            e(f"v_pk_mul_f32 v[{tq}:{tq+1}], v[{tq}:{tq+1}], v[{z}:{z+1}]")
            e(f"v_exp_f32 v{tq}, v{tq}\nv_exp_f32 v{tq+1}, v{tq+1}\ns_nop 0")
            e(f"v_pk_add_f32 v[{tq}:{tq+1}], v[{tq}:{tq+1}], v[{vOne}:{vOne+1}]")
            e(f"v_rcp_f32 v{tq}, v{tq}\nv_rcp_f32 v{tq+1}, v{tq+1}\ns_nop 0")
            e(f"v_pk_mul_f32 v[{tq}:{tq+1}], v[{tq}:{tq+1}], v[{z}:{z+1}]")
            e(f"v_cvt_pk_bf16_f32 v{base+pr}, v{tq}, v{tq+1}")
            if pr == 3:
                g.vmem(f"buffer_store_dwordx4 v[{base}:{base+3}], v{vHs}, s[{SWS}:{SWS+3}], s{sHB} offen offset:{t*1024} sc1")
            elif pr < 7:
                next_load()
        htok = g.vmem(f"buffer_store_dwordx4 v[{base+4}:{base+7}], v{vHs}, s[{SWS}:{SWS+3}], s{sHB} offen offset:{t*1024+512} sc1")
        hts.append(htok)
        g.stamp(f"gelu{t}")
    for t in range(3):
        publish(B_Y | B_W | ((B_H << (t + 1)) - B_H), hts[t])
        if t < 2:
            for _ in range(4):
                next_load()
    g.stamp("h_published")

    ACC2 = 176
    HB = [96 + 4 * i for i in range(20)] + [32 + 4 * i for i in range(16)]
    hb_next = [0]
    htoks = {}
    e(f"s_and_b32 s{sT}, s{sMT}, 1\ns_lshl_b32 s{sT}, s{sT}, 3\nv_add_u32 v{vPh}, s{sT}, v{vPh}")

    def h_poll():
        return f"buffer_load_dwordx2 v[{vF}:{vF+1}], v{vPh}, s[{SWS}:{SWS+3}], 0 offen sc1"

    def h_load(t, p, i):
        r = HB[hb_next[0] % len(HB)]
        hb_next[0] += 1
        e(f"s_add_u32 s{sT}, s{sPH+p}, s{sMI+i}")
        htoks[(t, p, i)] = (r, g.vmem(f"buffer_load_dwordx4 v[{r}:{r+3}], v{vL16}, s[{SWS}:{SWS+3}], s{sT} offen offset:{t*1024} sc1"))

    started = set()

    def mm(t, p, i):
        r, tok = htoks[(t, p, i)]
        for jj in range(5):
            g.wait(vm=max(tok, wtok[(t, p, jj)]))
            c = ACC2 + 20 * i + 4 * jj
            w = wreg[(t, p, jj)]
            cin = f"v[{c}:{c+3}]" if (i, jj) in started else "0"
            started.add((i, jj))
            e(f"v_mfma_f32_16x16x32_bf16 v[{c}:{c+3}], a[{w}:{w+3}], v[{r}:{r+3}], {cin}")

    e(f"v_lshrrev_b32 v{vTmp+10}, 4, v{vL}\nv_lshlrev_b32 v{vTmp+10}, 3, v{vTmp+10}\ns_mul_i32 s{sT2}, s{sNT}, 160")
    for jj in range(5):
        b2tok = g.vmem(f"buffer_load_dwordx2 v[{vTmp+2*jj}:{vTmp+2*jj+1}], v{vTmp+10}, s[{SB2}:{SB2+3}], s{sT2} offen offset:{jj*32}")
    F2 = [vF, vF + 1]
    C3 = ACC2 + 60

    def bias_init():
        g.wait(vm=b2tok)
        for jj in range(5):
            c = C3 + 4 * jj
            e(f"v_lshlrev_b32 v{c}, 16, v{vTmp+2*jj}\nv_and_b32 v{c+1}, 0xffff0000, v{vTmp+2*jj}\nv_lshlrev_b32 v{c+2}, 16, v{vTmp+2*jj+1}\nv_and_b32 v{c+3}, 0xffff0000, v{vTmp+2*jj+1}")
            started.add((3, jj))
    WIN = P.get('win2', 40)

    def paced():
        g.wait(vm=g.vm - (WIN - 1))
        return next_load()

    nleft = len(stream)
    for _ in range(max(0, nleft - 12)):
        paced()
    tk = g.vmem(h_poll())
    for _ in range(5):
        paced()
    spin(lambda: flag_eval(F2, B_H | (B_H << 1)), lambda: e(h_poll()), tk)
    g.stamp("h01_flag_ok")
    bias_init()
    for t in range(2):
        for i in range(4):
            g.wait(vm=g.vm - (WIN - 1))
            h_load(t, 0, i)
    while paced():
        pass
    tk = g.vmem(h_poll())
    g.stamp("w2_all_issued")
    pend = [(0, p, i) for p in range(1, 4) for i in range(4)]
    for _ in range(4):
        g.wait(vm=g.vm - (WIN - 1))
        h_load(*pend.pop(0))
    spin(lambda: flag_eval(F2, B_H << 2), lambda: e(h_poll()), tk)
    g.stamp("h2_flag_ok")
    pend = [(2, 0, i) for i in range(4)] + pend + [(1, p, i) for p in range(1, 4) for i in range(4)] + \
           [(2, p, i) for i in range(4) for p in range(1, 4)]
    order = [(0, 0, i) for i in range(4)] + [(1, 0, i) for i in range(4)] + [(0, 1, i) for i in range(4)] + [(2, 0, i) for i in range(4)] + \
            [(0, p, i) for p in (2, 3) for i in range(4)] + [(1, p, i) for p in range(1, 4) for i in range(4)]
    for k, o in enumerate(order):
        if pend:
            h_load(*pend.pop(0))
        mm(*o)
        if k == 15:
            g.stamp("g2_16")
    assert not pend, len(pend)
    g.stamp("g2_36")
    for i in range(3):
        e(f"s_add_u32 s{sT}, s{sW}, {i+1}\ns_and_b32 s{sT}, s{sT}, 3\ns_mul_i32 s{sT}, s{sT}, 15360\ns_add_u32 s{sT}, s{sT}, {i*5120}\nv_add_u32 v{vF+i}, s{sT}, v{vL16}")
    e(f"s_mul_i32 s{sT}, s{sW}, 15360\nv_add_u32 v{vF+3}, s{sT}, v{vL16}")
    for i in range(4):
        for p in range(1, 4):
            mm(2, p, i)
            if i > 0:
                for jj in ((0,) if p == 1 else (1, 2) if p == 2 else (3, 4)):
                    c = ACC2 + 20 * (i - 1) + 4 * jj
                    g.ds(f"ds_write_b128 v{vF+i-1}, v[{c}:{c+3}] offset:{jj*1024}")
    g.stamp("gemm2_done")
    g.wait(lg=g.lg)
    e("s_barrier")
    g.stamp("red_barrier")
    R = 96
    rt = [g.ds(f"ds_read_b128 v[{R+4*k}:{R+4*k+3}], v{vF+3} offset:{k*1024}") for k in range(15)]
    e(f"v_and_b32 v{vF}, 15, v{vL}\nv_mul_u32_u24 v{vF}, 1280, v{vF}\nv_add_u32 v{vF}, v{vF}, v{vTmp+10}")
    e(f"s_lshl_b32 s{sT}, s{sMT}, 6\ns_lshl_b32 s{sT3}, s{sW}, 4\ns_add_u32 s{sT}, s{sT}, s{sT3}\ns_mul_i32 s{sT}, s{sT}, 1280\ns_add_u32 s{sT}, s{sT}, s{sT2}")
    for i in range(3):
        for jj in range(5):
            k = 5 * i + jj
            c = C3 + 4 * jj
            g.wait(lg=rt[k])
            e(f"v_pk_add_f32 v[{c}:{c+1}], v[{c}:{c+1}], v[{R+4*k}:{R+4*k+1}]\nv_pk_add_f32 v[{c+2}:{c+3}], v[{c+2}:{c+3}], v[{R+4*k+2}:{R+4*k+3}]")
            if i == 2:
                e(f"v_cvt_pk_bf16_f32 v{c}, v{c}, v{c+1}\nv_cvt_pk_bf16_f32 v{c+1}, v{c+2}, v{c+3}")
                g.vmem(f"buffer_store_dwordx2 v[{c}:{c+1}], v{vF}, s[{SO}:{SO+3}], s{sT} offen offset:{jj*32}")
    if diag:
        g.stamp("out_issued")
        e("s_waitcnt vmcnt(0)")
        g.stamp("end")
        e(f"s_lshl_b32 s{sT}, s2, 2\ns_add_u32 s{sT}, s{sT}, s{sW}\ns_lshl_b32 s{sT}, s{sT}, 8\ns_add_u32 s{sT}, s{sT}, {T0}")
        e(f"v_lshlrev_b32 v{vF}, 2, v{vL}")
        e(f"buffer_store_dword v0, v{vF}, s[{SWS}:{SWS+3}], s{sT} offen")
        open("stampnames.txt", "w").write("\n".join(g.stampnames))
    if hd:
        e("s_waitcnt vmcnt(0)\ns_barrier\ns_memtime s[98:99]\ns_memrealtime s[100:101]\ns_waitcnt lgkmcnt(0)")
        e(f"s_cmp_lg_u32 s{sW}, 0\ns_cbranch_scc1 L_end\ns_sleep 127\ns_sleep 127")
        e(f"s_lshl_b32 s{sT}, s100, 5\ns_sub_u32 s{sT}, s{sT}, s{sN}\ns_and_b32 s{sT}, s{sT}, 0x7fffffff\ns_lshr_b32 s{sT}, s{sT}, 5\nv_mov_b32 v20, s{sT}")
        e(f"s_sub_u32 s{sT}, s98, s94\nv_mov_b32 v21, s{sT}")
        e(f"s_add_u32 s{sT}, s96, 4096\ns_lshl_b32 s{sT}, s{sT}, 5\ns_sub_u32 s{sT}, s{sT}, s{sN}\ns_and_b32 s{sT}, s{sT}, 0x7fffffff\ns_lshr_b32 s{sT}, s{sT}, 5\nv_mov_b32 v22, s{sT}")
        e(f"s_sub_u32 s{sT}, 8192, s{sT}\nv_mov_b32 v23, s{sT}")
        e("v_mov_b32 v25, 0\ns_mov_b64 exec, 1")
        for i in range(4):
            e(f"buffer_atomic_umax v{20+i}, v25, s[{SD}:{SD+3}], 0 offen offset:{4+4*i} sc1")
    g.label("L_end")
    e("s_endpgm")
    out += g.L
    out += ['.section .rodata,"a"', ".p2align 6", f".amdhsa_kernel {NAME}",
            "  .amdhsa_next_free_vgpr 512", "  .amdhsa_next_free_sgpr 102", "  .amdhsa_accum_offset 256",
            "  .amdhsa_group_segment_fixed_size 0", "  .amdhsa_kernarg_size 64", "  .amdhsa_user_sgpr_count 2",
            "  .amdhsa_user_sgpr_kernarg_segment_ptr 1", "  .amdhsa_system_sgpr_workgroup_id_x 1", ".end_amdhsa_kernel"]
    return "\n".join(out) + "\n"


if __name__ == "__main__":
    diag = "--diag" in sys.argv
    path = [a for a in sys.argv[1:] if not a.startswith("--")]
    path = path[0] if path else "standalone__mixer_channel_mlp__prompt.s"
    P = {}
    for a in sys.argv[1:]:
        if a.startswith("--p:"):
            k, v = a[4:].split("=")
            P[k] = int(v)
    open(path, "w").write(generate(diag, "--hd" in sys.argv, P))
    print("wrote", path)
```

```python
import sys
from gen import Gen, NAME

Y0 = 0
W0 = 4 << 20
H0 = 8 << 20
F0 = 16 << 20
T0 = 17 << 20
WS_BYTES = 18 << 20

LDS_W1 = 0
LDS_STAGE = 122880
LDS_YX = 122880 + 8192
LDS_BYTES = LDS_YX + 80 * 144

SPIN_MAX = 20000
B_P, B_H = 1, 2

DEF = dict(xw=3, lw=0, w1pre=6, lnw=0, postw=8, win1=8, ahead=8, wlead_at=24, xnt=1, last=3, gl=6, polllead=4, hpoll=10)


def generate(diag=False, hd=False, P=None):
    P = dict(DEF, **(P or {}))
    g = Gen(diag)
    e = g.e
    SX, SW1, SB1, SW2, SB2, SO, SD, SWS = 4, 8, 12, 16, 20, 24, 28, 32
    sW = 36
    sMB, sFT, sQ, sMT, sNT, sJ, sR1 = 37, 38, 39, 40, 41, 42, 43
    sN = 45
    sT, sT2, sT3 = 46, 47, 48
    sCNT = 49
    sEX = 50
    sYB = 44
    sMI = 52
    sK1, sONE, sHB, sIDX = 56, 57, 58, 59
    sC1, sCB, sS2, sWA, sWB, sWC, sWD = 60, 61, 62, 63, 64, 65, 66
    sYL, sU1, sU2 = 67, 92, 93
    sPW = 68
    sPH = 80
    vL, vL16 = 1, 2
    vW1 = 3
    vFl, vPo, vPh, vHs = 6, 7, 8, 9
    vC2, vC1, vOne = 10, 12, 14
    vF = 16
    vTmp = 20
    vT = 40
    ACC = 48
    Y = 96

    hdr = open("standalone__mixer_channel_mlp__prompt.s.ref").read().split("\n")
    head = []
    for ln in hdr:
        if ln.startswith("; @launch"):
            head.append(f"; @launch grid=(256,1,1) block=(256,1,1) lds={LDS_BYTES}")
            break
        head.append(ln)
    out = head + ['.amdgcn_target "amdgcn-amd-amdhsa--gfx950"', ".text", f".globl {NAME}", ".p2align 8",
                  f".type {NAME},@function", f"{NAME}:"]
    NT = " nt" if P["xnt"] else ""
    STP = ["sc1", "sc0 sc1", "sc1 nt", "", "nt"][P.get("stp", 0)]

    e("s_cmp_ge_u32 s2, 256\ns_cbranch_scc1 L_end")
    e("s_load_dwordx16 s[76:91], s[0:1], 0")
    if hd:
        e("s_memtime s[94:95]\ns_memrealtime s[96:97]")
    e(f"v_and_b32 v{vL}, 63, v0\nv_lshrrev_b32 v{vTmp}, 6, v0\nv_lshlrev_b32 v{vL16}, 4, v{vL}")
    e(f"v_readfirstlane_b32 s{sW}, v{vTmp}")
    e(f"s_and_b32 s{sT}, s2, 7\ns_lshr_b32 s{sIDX}, s2, 3")
    e(f"s_lshr_b32 s{sT2}, s{sT}, 1\ns_and_b32 s{sT3}, s{sT}, 1")
    e(f"s_lshr_b32 s{sR1}, s{sIDX}, 3\ns_lshl_b32 s{sMB}, s{sT2}, 2\ns_add_u32 s{sMB}, s{sMB}, s{sR1}")
    e(f"s_and_b32 s{sT}, s{sIDX}, 7\ns_lshl_b32 s{sFT}, s{sT3}, 3\ns_add_u32 s{sFT}, s{sFT}, s{sT}")
    e(f"s_lshl_b32 s{sQ}, s{sMB}, 4\ns_add_u32 s{sQ}, s{sQ}, s{sFT}")
    e(f"s_lshr_b32 s{sJ}, s{sIDX}, 2\ns_lshl_b32 s{sMT}, s{sT2}, 3\ns_add_u32 s{sMT}, s{sMT}, s{sJ}")
    e(f"s_and_b32 s{sNT}, s{sIDX}, 3\ns_lshl_b32 s{sT3}, s{sT3}, 2\ns_add_u32 s{sNT}, s{sNT}, s{sT3}")
    vXo, vR, vI = vTmp + 1, vTmp + 2, vTmp + 3
    e(f"v_lshrrev_b32 v{vR}, 5, v{vL}\nv_and_b32 v{vI}, 31, v{vL}")
    e(f"v_mul_u32_u24 v{vXo}, 1280, v{vR}\nv_lshl_add_u32 v{vXo}, v{vI}, 3, v{vXo}")
    e(f"s_lshl_b32 s{sT}, s{sQ}, 3\ns_lshl_b32 s{sT2}, s{sW}, 1\ns_add_u32 s{sT}, s{sT}, s{sT2}\ns_mul_i32 s{sT}, s{sT}, 1280")
    vW2o = vTmp + 12
    e(f"s_mul_i32 s{sCB}, s{sQ}, 1366\ns_lshr_b32 s{sCB}, s{sCB}, 16\ns_mul_i32 s{sT3}, s{sCB}, 48\ns_sub_u32 s{sS2}, s{sQ}, s{sT3}")
    e(f"v_lshrrev_b32 v{vW2o}, 4, v{vL}\nv_mul_u32_u24 v{vW2o}, 1280, v{vW2o}\nv_and_b32 v{vTmp+6}, 15, v{vL}\nv_lshl_add_u32 v{vW2o}, v{vTmp+6}, 4, v{vW2o}")
    e(f"s_lshl_b32 s{sWA}, s{sS2}, 5\ns_lshl_b32 s{sT2}, s{sW}, 3\ns_add_u32 s{sWA}, s{sWA}, s{sT2}\ns_mul_i32 s{sWA}, s{sWA}, 1280\ns_lshl_b32 s{sT2}, s{sCB}, 8\ns_add_u32 s{sWA}, s{sWA}, s{sT2}")
    e(f"s_lshl_b32 s{sT2}, s{sW}, 11\ns_add_u32 m0, s{sT2}, {LDS_STAGE}")
    e(f"v_mov_b32 v{vTmp+5}, 0")
    e("s_waitcnt lgkmcnt(0)")

    def srd(r, k, nbytes):
        e(f"s_mov_b32 s{r}, s{76+2*k}\ns_mov_b32 s{r+1}, s{77+2*k}\ns_mov_b32 s{r+2}, {nbytes}\ns_mov_b32 s{r+3}, 0x00020000")

    srd(SX, 0, 2621440)
    XR = Y
    xtok = [g.vmem(f"buffer_load_dwordx2 v[{XR+2*j}:{XR+2*j+1}], v{vXo}, s[{SX}:{SX+3}], s{sT} offen offset:{256*j}{NT}") for j in range(5)]
    if P.get("cpf"):
        lab = g.newlab("nopf")
        e(f"s_and_b32 s{sT2}, s{sIDX}, {P['cpf']-1}\ns_cmp_lg_u32 s{sT2}, 0\ns_cbranch_scc1 {lab}")
        e(f"s_getpc_b64 s[{sEX}:{sEX+1}]\ns_lshl_b32 s{sT2}, s{sW}, 13\ns_add_u32 s{sEX}, s{sEX}, s{sT2}\ns_addc_u32 s{sEX+1}, s{sEX+1}, 0")
        e(f"v_lshlrev_b32 v{vTmp+15}, 7, v{vL}")
        e(f"s_cmp_ge_u32 s{sW}, 3\ns_cbranch_scc1 {lab}")
        e(f"global_load_dword v{vTmp+16}, v{vTmp+15}, s[{sEX}:{sEX+1}]")
        g.label(lab)
    srd(SW2, 3, 1966080)
    g.vmem(f"buffer_load_dwordx4 v{vW2o}, s[{SW2}:{SW2+3}], s{sWA} offen{NT} lds")
    e(f"s_add_u32 m0, m0, 1024\ns_add_u32 s{sWA}, s{sWA}, {4*1280}")
    w2ptok = g.vmem(f"buffer_load_dwordx4 v{vW2o}, s[{SW2}:{SW2+3}], s{sWA} offen{NT} lds")
    srd(SD, 6, 256)
    lab = g.newlab("nononce")
    e(f"s_or_b32 s{sT}, s2, s{sW}\ns_cmp_lg_u32 s{sT}, 0\ns_cbranch_scc1 {lab}")
    e(f"s_memrealtime s[{sEX}:{sEX+1}]\ns_waitcnt lgkmcnt(0)")
    e(f"s_lshl_b32 s{sT}, s{sEX}, 2\ns_or_b32 s{sT}, s{sT}, 0x80000000\nv_mov_b32 v{vTmp+4}, s{sT}")
    e(f"s_mov_b64 exec, 1")
    e(f"buffer_store_dword v{vTmp+4}, v{vTmp+5}, s[{SD}:{SD+3}], 0 offen sc1")
    e(f"s_mov_b64 exec, -1")
    g.label(lab)
    for r, k, n in ((SW1, 1, 1966080), (SB1, 2, 3072), (SB2, 4, 1280), (SO, 5, 2621440), (SWS, 7, WS_BYTES)):
        srd(r, k, n)
    g.stamp("start")
    for i in range(3):
        e(f"v_add_u32 v{vTmp+6}, {64*i}, v{vL}\nv_mul_u32_u24 v{vTmp+7}, 5462, v{vTmp+6}\nv_lshrrev_b32 v{vTmp+7}, 16, v{vTmp+7}")
        e(f"v_mul_u32_u24 v{vTmp+8}, 12, v{vTmp+7}\nv_sub_u32 v{vTmp+8}, v{vTmp+6}, v{vTmp+8}")
        e(f"v_mul_u32_u24 v{vTmp+7}, 3072, v{vTmp+7}\nv_lshl_add_u32 v{vW1+i}, v{vTmp+8}, 4, v{vTmp+7}")
    e(f"s_mul_i32 s{sK1}, s{sR1}, 10\ns_add_u32 s{sK1}, s{sK1}, s{sW}\ns_mul_i32 s{sC1}, s{sFT}, 192\ns_mov_b32 s{sONE}, 0x3f803f80")
    w1tok = []
    w1n = [0]

    def w1_one(win=None):
        if w1n[0] >= 30:
            return
        i = w1n[0] % 3
        w1n[0] += 1
        if i == 0:
            e(f"s_mul_i32 s{sWC}, s{sK1}, {16*3072}\ns_add_u32 s{sWC}, s{sWC}, s{sC1}\ns_mul_i32 s{sWD}, s{sK1}, 3072")
            e(f"s_add_u32 s{sK1}, s{sK1}, 4\ns_cmp_ge_u32 s{sK1}, 40\ns_cselect_b32 s{sT3}, 40, 0\ns_sub_u32 s{sK1}, s{sK1}, s{sT3}")
        e(f"s_add_u32 m0, s{sWD}, {LDS_W1 + i*1024}")
        if win is not None and g.vm - (win - 1) > g.vm_done:
            g.wait(vm=g.vm - (win - 1))
        else:
            e("s_nop 0")
        w1tok.append(g.vmem(f"buffer_load_dwordx4 v{vW1+i}, s[{SW1}:{SW1+3}], s{sWC} offen lds"))

    for _ in range(P["w1pre"]):
        w1_one()

    vYw, vYr, vYs, vYs2, vP = vTmp + 9, vTmp + 10, vTmp + 11, vTmp + 4, vTmp + 13
    e(f"v_lshrrev_b32 v{vTmp+6}, 1, v{vI}\nv_mul_u32_u24 v{vYw}, 144, v{vTmp+6}\nv_lshl_add_u32 v{vYw}, v{vR}, 4, v{vYw}")
    e(f"v_and_b32 v{vTmp+6}, 1, v{vI}\nv_lshl_add_u32 v{vYw}, v{vTmp+6}, 3, v{vYw}")
    e(f"s_lshl_b32 s{sT}, s{sW}, 5\ns_add_u32 s{sT}, s{sT}, {LDS_YX}\nv_add_u32 v{vYw}, s{sT}, v{vYw}")
    e(f"v_lshrrev_b32 v{vTmp+6}, 3, v{vL}\nv_and_b32 v{vTmp+7}, 7, v{vL}\nv_lshlrev_b32 v{vTmp+7}, 4, v{vTmp+7}")
    e(f"v_mul_u32_u24 v{vYr}, 144, v{vTmp+6}\nv_add_u32 v{vYr}, v{vYr}, v{vTmp+7}")
    e(f"s_mul_i32 s{sT}, s{sW}, {20*144}\ns_add_u32 s{sT}, s{sT}, {LDS_YX}\nv_add_u32 v{vYr}, s{sT}, v{vYr}")
    e(f"v_lshl_add_u32 v{vYs}, v{vTmp+6}, 9, v{vTmp+7}")
    e(f"v_cmp_gt_u32 vcc, 32, v{vL}\nv_mov_b32 v{vTmp+6}, {WS_BYTES}\ns_nop 0\nv_cndmask_b32 v{vYs2}, v{vTmp+6}, v{vYs}, vcc")
    e(f"s_lshr_b32 s{sT}, s{sQ}, 2\ns_mul_i32 s{sT}, s{sT}, 40960\ns_and_b32 s{sT2}, s{sQ}, 3\ns_lshl_b32 s{sT2}, s{sT2}, 7\ns_add_u32 s{sT}, s{sT}, s{sT2}")
    e(f"s_mul_i32 s{sT2}, s{sW}, 10240\ns_add_u32 s{sYB}, s{sT}, s{sT2}")
    e(f"s_lshl_b32 s{sT}, s{sQ}, 7\ns_lshl_b32 s{sT2}, s{sW}, 2\ns_add_u32 s{sT}, s{sT}, s{sT2}\ns_add_u32 s{sT}, s{sT}, {F0}\nv_mov_b32 v{vFl}, s{sT}")
    e(f"v_lshlrev_b32 v{vP}, 12, v{vR}\nv_bfe_u32 v{vTmp+6}, v{vL}, 4, 1\nv_lshl_add_u32 v{vP}, v{vTmp+6}, 10, v{vP}")
    e(f"v_bfe_u32 v{vTmp+6}, v{vL}, 2, 2\nv_lshl_add_u32 v{vP}, v{vTmp+6}, 8, v{vP}\nv_and_b32 v{vTmp+6}, 3, v{vL}\nv_lshl_add_u32 v{vP}, v{vTmp+6}, 3, v{vP}")
    e(f"s_lshl_b32 s{sT}, s{sW}, 6\ns_add_u32 s{sT}, s{sT}, {LDS_STAGE}\nv_add_u32 v{vP}, s{sT}, v{vP}")
    for ee, dst in ((0, sWA), (1, sWB)):
        e(f"s_lshl_b32 s{sT}, s{sCB}, 3\ns_lshl_b32 s{sT2}, s{sW}, 1\ns_add_u32 s{sT}, s{sT}, s{sT2}")
        if ee:
            e(f"s_add_u32 s{sT}, s{sT}, 1")
        e(f"s_mul_i32 s{sT2}, s{sT}, 13108\ns_lshr_b32 s{sT2}, s{sT2}, 16\ns_mul_i32 s{sT3}, s{sT2}, 5\ns_sub_u32 s{sT}, s{sT}, s{sT3}")
        e(f"s_mul_i32 s{sT2}, s{sT2}, 48\ns_add_u32 s{sT2}, s{sT2}, s{sS2}\ns_mul_i32 s{sT2}, s{sT2}, 5\ns_add_u32 s{sT}, s{sT}, s{sT2}")
        e(f"s_lshl_b32 s{sT}, s{sT}, 10\ns_add_u32 s{dst}, s{sT}, {W0}")
    e(f"s_cmp_ge_u32 s{sQ}, {0 if P.get('now') else 240}\ns_cselect_b32 s{sWA}, {WS_BYTES}, s{sWA}\ns_cselect_b32 s{sWB}, {WS_BYTES}, s{sWB}")
    if P.get('noy'):
        e(f"s_mov_b32 s{sYB}, {WS_BYTES}")

    setup = []
    S = setup.append
    S(f"v_cmp_le_u32 vcc, 12, v{vL}\ns_mul_i32 s{sT}, s{sNT}, 5\ns_nop 0\nv_cndmask_b32 v{vTmp+7}, 0, 1, vcc")
    S(f"v_lshl_add_u32 v{vTmp+6}, v{vTmp+7}, 2, s{sT}\nv_lshrrev_b32 v{vTmp+6}, 3, v{vTmp+6}\nv_mul_u32_u24 v{vTmp+6}, 48, v{vTmp+6}")
    S(f"v_mul_u32_u24 v{vTmp+7}, 12, v{vTmp+7}\nv_sub_u32 v{vTmp+7}, v{vL}, v{vTmp+7}\ns_mul_i32 s{sT}, s{sW}, 12\nv_add3_u32 v{vTmp+6}, v{vTmp+6}, v{vTmp+7}, s{sT}")
    S(f"v_cmp_gt_u32 vcc, 24, v{vL}\nv_readfirstlane_b32 s{sT}, v{vTmp+6}\ns_nop 1\nv_mov_b32 v{vTmp+7}, s{sT}\nv_cndmask_b32 v{vPo}, v{vTmp+7}, v{vTmp+6}, vcc")
    S(f"v_lshlrev_b32 v{vPo}, 7, v{vPo}\nv_add_u32 v{vPo}, {F0}, v{vPo}")
    S(f"s_lshl_b32 s{sT}, s{sMB}, 4\ns_lshl_b32 s{sT2}, s{sW}, 2\ns_add_u32 s{sT}, s{sT}, s{sT2}\nv_and_b32 v{vTmp+7}, 3, v{vL}\nv_add_u32 v{vTmp+7}, s{sT}, v{vTmp+7}")
    S(f"v_lshlrev_b32 v{vPh}, 7, v{vTmp+7}\nv_add_u32 v{vPh}, {F0}, v{vPh}")
    S(f"v_lshlrev_b32 v{vTmp+7}, 3, v{vR}\nv_bfe_u32 v{vTmp+6}, v{vL}, 2, 2\nv_add_u32 v{vTmp+7}, v{vTmp+7}, v{vTmp+6}")
    S(f"v_mul_u32_u24 v{vTmp+7}, 192, v{vTmp+7}\nv_bfe_u32 v{vTmp+6}, v{vL}, 4, 1\nv_lshl_add_u32 v{vTmp+7}, v{vTmp+6}, 5, v{vTmp+7}")
    S(f"v_and_b32 v{vTmp+6}, 3, v{vL}\nv_lshl_add_u32 v{vT}, v{vTmp+6}, 3, v{vTmp+7}\nv_add_u32 v{vT+1}, {20*3072}, v{vT}")
    S(f"s_lshl_b32 s{sYL}, s{sMB}, 2\ns_add_u32 s{sYL}, s{sYL}, s{sW}\ns_mul_i32 s{sYL}, s{sYL}, 40960")
    S(f"s_mul_i32 s{sCNT}, s{sJ}, 3\ns_lshr_b32 s{sCNT}, s{sCNT}, 1\ns_mul_i32 s{sU1}, s{sW}, 12\ns_mul_i32 s{sU2}, s{sNT}, 48\ns_add_u32 s{sU2}, s{sU2}, s{sU1}")
    for sg in range(12):
        S(f"s_add_u32 s{sT}, s{sCNT}, s{sU1}\ns_lshl_b32 s{sPH+sg}, s{sT}, 10\ns_add_u32 s{sT}, s{sCNT}, s{sU2}\ns_mul_i32 s{sT}, s{sT}, 5120\ns_add_u32 s{sPW+sg}, s{sT}, {W0}\n"
          f"s_add_u32 s{sCNT}, s{sCNT}, 1\ns_cmp_eq_u32 s{sCNT}, 12\ns_cselect_b32 s{sCNT}, 0, s{sCNT}")
    for i in range(4):
        S(f"s_add_u32 s{sT}, s{sW}, {i+1}\ns_and_b32 s{sT}, s{sT}, 3\ns_lshl_b32 s{sT2}, s{sMT}, 2\ns_add_u32 s{sT}, s{sT}, s{sT2}\n"
          f"s_mul_i32 s{sT}, s{sT}, 49152\ns_add_u32 s{sMI+i}, s{sT}, {H0}")
    S(f"v_bfe_u32 v{vTmp+6}, v{vL}, 4, 1\nv_mul_u32_u24 v{vHs}, 49152, v{vTmp+6}\nv_lshl_add_u32 v{vHs}, v{vR}, 8, v{vHs}")
    S(f"v_and_b32 v{vTmp+6}, 15, v{vL}\nv_lshl_add_u32 v{vHs}, v{vTmp+6}, 4, v{vHs}")
    S(f"s_lshl_b32 s{sT}, s{sMB}, 3\ns_lshl_b32 s{sT2}, s{sW}, 1\ns_add_u32 s{sT}, s{sT}, s{sT2}\ns_mul_i32 s{sT}, s{sT}, 49152\n"
      f"s_mul_i32 s{sT2}, s{sFT}, 3072\ns_add_u32 s{sT}, s{sT}, s{sT2}\ns_add_u32 s{sHB}, s{sT}, {H0}")
    S(f"v_mov_b32 v{vC2}, 0xbdd2d3e8\nv_mov_b32 v{vC2+1}, 0xbdd2d3e8\nv_mov_b32 v{vC1}, 0xc0135761\nv_mov_b32 v{vC1+1}, 0xc0135761\nv_mov_b32 v{vOne}, 1.0\nv_mov_b32 v{vOne+1}, 1.0")
    while setup:
        e(setup.pop(0))
    XF = Y + 12
    A0, A1, A2, A3 = Y + 32, Y + 33, Y + 34, Y + 35
    e(f"v_mov_b32 v{A0}, 0\nv_mov_b32 v{A1}, 0")
    g.stamp("setup_done")
    g.wait(vm=xtok[-1])
    g.stamp("x_arrived")
    for _ in range(P["xw"]):
        w1_one()
    for j in range(10):
        a = A0 if j % 2 == 0 else A1
        e(f"v_dot2_f32_bf16 v{a}, v{XR+j}, s{sONE}, v{a}")
    for j in range(3):
        e(f"v_lshlrev_b32 v{XF+2*j}, 16, v{XR+j}\nv_and_b32 v{XF+2*j+1}, 0xffff0000, v{XR+j}")
    e(f"v_add_f32 v{A0}, v{A0}, v{A1}")
    fill = [f"v_lshlrev_b32 v{XF+2*j}, 16, v{XR+j}\nv_and_b32 v{XF+2*j+1}, 0xffff0000, v{XR+j}" for j in range(3, 10)]

    def reduce32(a, t, fill):
        def pad():
            e(fill.pop(0) if fill else "s_nop 1")
        for r in (8, 4, 2, 1):
            pad()
            e(f"v_add_f32_dpp v{a}, v{a}, v{a} row_ror:{r} row_mask:0xf bank_mask:0xf")
        e(f"v_mov_b32 v{t}, v{a}")
        pad()
        e(f"v_permlane16_swap_b32 v{a}, v{t}")
        pad()
        e(f"v_add_f32 v{a}, v{a}, v{t}")

    lnw = lambda: [w1_one() for _ in range(P["lnw"])]
    lnw()
    reduce32(A0, A1, fill)
    for f in fill:
        e(f)
    lnw()
    e(f"v_mul_f32 v{A0}, 0x3acccccd, v{A0}")
    e(f"v_cvt_pk_bf16_f32 v{A2}, v{A0}, v{A0}\nv_lshlrev_b32 v{A2}, 16, v{A2}")
    e(f"v_sub_f32 v{A0}, v{A0}, v{A2}\nv_mov_b32 v{A3}, v{A2}")
    S0 = Y + 36
    for j in range(10):
        e(f"v_pk_add_f32 v[{XF+2*j}:{XF+2*j+1}], v[{XF+2*j}:{XF+2*j+1}], v[{A2}:{A3}] neg_lo:[0,1] neg_hi:[0,1]")
    for j in range(10):
        s = S0 + 2 * (j % 2)
        if j < 2:
            e(f"v_pk_mul_f32 v[{s}:{s+1}], v[{XF+2*j}:{XF+2*j+1}], v[{XF+2*j}:{XF+2*j+1}]")
        else:
            e(f"v_pk_fma_f32 v[{s}:{s+1}], v[{XF+2*j}:{XF+2*j+1}], v[{XF+2*j}:{XF+2*j+1}], v[{s}:{s+1}]")
    e(f"v_pk_add_f32 v[{S0}:{S0+1}], v[{S0}:{S0+1}], v[{S0+2}:{S0+3}]\nv_add_f32 v{S0}, v{S0}, v{S0+1}")
    ntok = g.vmem(f"buffer_load_dword v{vF}, v{vTmp+5}, s[{SD}:{SD+3}], 0 offen sc1")
    lnw()
    reduce32(S0, S0 + 1, [])
    e(f"v_mul_f32 v{S0}, 0x3acccccd, v{S0}")
    e(f"v_fma_f32 v{S0}, -v{A0}, v{A0}, v{S0}\nv_max_f32 v{S0}, 0, v{S0}")
    e(f"v_cvt_pk_bf16_f32 v{S0}, v{S0}, v{S0}\nv_lshlrev_b32 v{S0}, 16, v{S0}")
    e(f"v_add_f32 v{S0}, 0x3727c5ac, v{S0}")
    e(f"v_cvt_pk_bf16_f32 v{S0}, v{S0}, v{S0}\nv_lshlrev_b32 v{S0}, 16, v{S0}")
    e(f"v_sqrt_f32 v{S0}, v{S0}\ns_nop 0")
    e(f"v_cvt_pk_bf16_f32 v{S0}, v{S0}, v{S0}\nv_lshlrev_b32 v{S0}, 16, v{S0}")
    e(f"v_rcp_f32 v{S0}, v{S0}\ns_nop 0\nv_mov_b32 v{S0+1}, v{S0}")
    for j in range(5):
        for jj in (2 * j, 2 * j + 1):
            e(f"v_pk_mul_f32 v[{XF+2*jj}:{XF+2*jj+1}], v[{XF+2*jj}:{XF+2*jj+1}], v[{S0}:{S0+1}]")
        for jj in (2 * j, 2 * j + 1):
            e(f"v_cvt_pk_bf16_f32 v{XR+jj}, v{XF+2*jj}, v{XF+2*jj+1}")
        t = g.ds(f"ds_write_b64 v{vYw}, v[{XR+2*j}:{XR+2*j+1}] offset:{16*j*144}")
    g.stamp("ln_done")
    for _ in range(P["lw"]):
        w1_one()
    g.wait(vm=w2ptok, lg=t)
    e("s_barrier")
    g.stamp("ln_barrier")
    YL = Y + 40
    PF = Y + 52
    rt = [g.ds(f"ds_read_b128 v[{YL+4*k}:{YL+4*k+3}], v{vYr} offset:{8*k*144}") for k in range(3)]
    for ee in range(2):
        for h in range(2):
            t = g.ds(f"ds_read_b64_tr_b16 v[{PF+4*ee+2*h}:{PF+4*ee+2*h+1}], v{vP} offset:{ee*32 + h*2048}")
    for k in range(3):
        g.wait(lg=rt[k])
        if k:
            e(f"s_add_u32 s{sYB}, s{sYB}, 4096")
        g.vmem(f"buffer_store_dwordx4 v[{YL+4*k}:{YL+4*k+3}], v{vYs if k < 2 else vYs2}, s[{SWS}:{SWS+3}], s{sYB} offen {STP}")
    g.wait(lg=t)
    g.vmem(f"buffer_store_dwordx4 v[{PF}:{PF+3}], v{vL16}, s[{SWS}:{SWS+3}], s{sWA} offen {STP}")
    pstok = g.vmem(f"buffer_store_dwordx4 v[{PF+4}:{PF+7}], v{vL16}, s[{SWS}:{SWS+3}], s{sWB} offen {STP}")
    g.stamp("prep_stores_issued")

    def spin(check_emit, load_emit, tok):
        g.wait(vm=tok)
        ok = g.newlab("ok")
        retry = g.newlab("retry")
        check_emit()
        e(f"s_cbranch_scc1 {ok}")
        e(f"s_mov_b32 s{sCNT}, {SPIN_MAX}")
        g.label(retry)
        e(f"s_sub_u32 s{sCNT}, s{sCNT}, 1\ns_cmp_eq_u32 s{sCNT}, 0\ns_cbranch_scc1 {ok}")
        load_emit()
        e("s_waitcnt vmcnt(0)")
        check_emit()
        e(f"s_cbranch_scc0 {retry}")
        g.label(ok)

    for _ in range(P["postw"]):
        w1_one()
    spin(lambda: e(f"v_readfirstlane_b32 s{sN}, v{vF}\ns_nop 3\ns_cmp_lg_u32 s{sN}, 0"),
         lambda: e(f"buffer_load_dword v{vF}, v{vTmp+5}, s[{SD}:{SD+3}], 0 offen sc1"), ntok)

    g.stamp("nonce_ok")

    def publish(bits, tok):
        e(f"s_or_b32 s{sT}, s{sN}, {bits}\nv_mov_b32 v{vTmp+18}, s{sT}")
        g.wait(vm=tok)
        e(f"s_mov_b64 exec, 1")
        g.vmem(f"buffer_store_dword v{vTmp+18}, v{vFl}, s[{SWS}:{SWS+3}], 0 offen sc1")
        e(f"s_mov_b64 exec, -1")

    publish(B_P, pstok)
    g.stamp("prep_published")
    BR = Y + 64
    e(f"v_lshlrev_b32 v{vTmp+8}, 3, v{vR}")
    for t in range(3):
        for q in range(4):
            k = t * 4 + q
            btok = g.vmem(f"buffer_load_dwordx2 v[{BR+2*k}:{BR+2*k+1}], v{vTmp+8}, s[{SB1}:{SB1+3}], s{sC1} offen offset:{t*64+q*16}")

    def y_poll():
        return f"buffer_load_dwordx4 v[{vF}:{vF+3}], v{vPh}, s[{SWS}:{SWS+3}], 0 offen sc1"

    def w_poll():
        return f"buffer_load_dwordx4 v[{vF}:{vF+3}], v{vPo}, s[{SWS}:{SWS+3}], 0 offen sc1"

    def flag_eval(regs, bit):
        m = 0xfffffffc | bit
        e(f"s_or_b32 s{sT}, s{sN}, {bit}")
        for r in regs:
            e(f"v_xor_b32 v{r}, s{sT}, v{r}")
        for r in regs[1:]:
            e(f"v_or_b32 v{regs[0]}, v{regs[0]}, v{r}")
        e(f"v_and_b32 v{regs[0]}, {m:#x}, v{regs[0]}\nv_cmp_eq_u32 vcc, 0, v{regs[0]}\ns_nop 1\ns_cmp_eq_u64 vcc, -1")

    while w1n[0] < 30 - P["polllead"]:
        w1_one()
    ptok = g.vmem(y_poll())
    while w1n[0] < 30:
        w1_one()
    g.stamp("w1_all_issued")
    g.wait(vm=btok)
    for k in range(24):
        e(f"v_lshlrev_b32 v{ACC+2*k}, 16, v{BR+k}\nv_and_b32 v{ACC+2*k+1}, 0xffff0000, v{BR+k}")
    F4 = [vF, vF + 1, vF + 2, vF + 3]
    spin(lambda: flag_eval(F4, B_P), lambda: e(y_poll()), ptok)
    g.stamp("y_flags_ok")

    ytok = {}

    def y_load(s):
        r = Y + 4 * s
        if s and s % 4 == 0:
            e(f"s_add_u32 s{sYL}, s{sYL}, 4096")
        ytok[s] = g.vmem(f"buffer_load_dwordx4 v[{r}:{r+3}], v{vL16}, s[{SWS}:{SWS+3}], s{sYL} offen offset:{(s%4)*1024} sc1")

    worder = [(sg, jj) for sg in range(12) for jj in range(5)]
    wreg = {k: 4 * i for i, k in enumerate(worder)}
    wtok = {}

    def w_load(sg, jj):
        r = wreg[(sg, jj)]
        if jj < 4:
            so, imm = f"s{sPW+sg}", jj * 1024
        else:
            e(f"s_add_u32 s{sT}, s{sPW+sg}, 4096")
            so, imm = f"s{sT}", 0
        wtok[(sg, jj)] = g.vmem(f"buffer_load_dwordx4 a[{r}:{r+3}], v{vL16}, s[{SWS}:{SWS+3}], {so} offen offset:{imm} sc1")

    AHEAD = P["ahead"]
    for s in range(AHEAD):
        y_load(s)
    g.wait(vm=w1tok[-1])
    e("s_barrier")
    g.stamp("w1_barrier")

    NBUF = 12
    FB = 192
    fr = {}

    def tr_issue(s, t):
        va = vT + (1 if s >= 20 else 0)
        r = FB + 4 * ((3 * s + t) % NBUF)
        for h in range(2):
            tok = g.ds(f"ds_read_b64_tr_b16 a[{r+2*h}:{r+2*h+1}], v{va} offset:{(s%20)*3072 + t*64 + h*768}")
        fr[(s, t)] = (r, tok)

    state = {}
    ys = [("y", s) for s in range(AHEAD, 40)]
    wl = [("w", k) for k in worder]
    k0 = max(0, P["wlead_at"] - AHEAD)
    stream = ys[:max(0, k0 - 6)] + [("f", lambda: state.__setitem__("wp", g.vmem(w_poll())))] + ys[max(0, k0 - 6):k0] + \
        [("f", lambda: spin(lambda: flag_eval(F4, B_P), lambda: e(w_poll()), state["wp"]))]
    rest = ys[k0:]
    leads = wl[:10]
    while rest or leads:
        if rest:
            stream.append(rest.pop(0))
        if rest and len(rest) > 2 * len(leads):
            stream.append(rest.pop(0))
        if leads:
            stream.append(leads.pop(0))
    stream += wl[10:]

    def next_load(allow_w_idx=60):
        while stream and stream[0][0] == "f":
            stream.pop(0)[1]()
        if not stream:
            return False
        k, s = stream[0]
        if k == "w" and wreg[s] // 4 >= allow_w_idx:
            return False
        stream.pop(0)
        if k == "y":
            y_load(s)
        else:
            w_load(*s)
        return True

    for s in (0, 1):
        for t in range(3):
            tr_issue(s, t)
    for s in range(40):
        yr = Y + 4 * s
        while (min(39, s + AHEAD) not in ytok):
            next_load(FB // 4)
        for t in range(3):
            r, tok = fr[(s, t)]
            g.wait(vm=ytok[s] if t == 0 else None, lg=tok)
            e(f"v_mfma_f32_32x32x16_bf16 v[{ACC+16*t}:{ACC+16*t+15}], a[{r}:{r+3}], v[{yr}:{yr+3}], v[{ACC+16*t}:{ACC+16*t+15}]")
            if s + 2 < 40:
                tr_issue(s + 2, t)
            if s + AHEAD >= 40 and t == 1:
                next_load(FB // 4)
        if s in (0, 9, 19, 29):
            g.stamp(f"g1_slot{s}")
    g.stamp("gemm1_done")

    G = vTmp
    hts = []
    next_load()
    next_load()
    g.nop(8)
    for t in range(3):
        base = ACC + 16 * t
        for half in range(2):
            prs = range(4 * half, 4 * half + 4)
            Z = {pr: base + 2 * pr for pr in prs}
            Tq = {pr: G + 2 * (pr % 8) for pr in prs}
            for pr in prs:
                e(f"v_pk_mul_f32 v[{Tq[pr]}:{Tq[pr]+1}], v[{Z[pr]}:{Z[pr]+1}], v[{Z[pr]}:{Z[pr]+1}]")
            for pr in prs:
                e(f"v_pk_fma_f32 v[{Tq[pr]}:{Tq[pr]+1}], v[{Tq[pr]}:{Tq[pr]+1}], v[{vC2}:{vC2+1}], v[{vC1}:{vC1+1}]")
            for pr in prs:
                e(f"v_pk_mul_f32 v[{Tq[pr]}:{Tq[pr]+1}], v[{Tq[pr]}:{Tq[pr]+1}], v[{Z[pr]}:{Z[pr]+1}]")
            next_load()
            for pr in prs:
                e(f"v_exp_f32 v{Tq[pr]}, v{Tq[pr]}\nv_exp_f32 v{Tq[pr]+1}, v{Tq[pr]+1}")
            for pr in prs:
                e(f"v_pk_add_f32 v[{Tq[pr]}:{Tq[pr]+1}], v[{Tq[pr]}:{Tq[pr]+1}], v[{vOne}:{vOne+1}]")
            next_load()
            for pr in prs:
                e(f"v_rcp_f32 v{Tq[pr]}, v{Tq[pr]}\nv_rcp_f32 v{Tq[pr]+1}, v{Tq[pr]+1}")
            for pr in prs:
                e(f"v_pk_mul_f32 v[{Tq[pr]}:{Tq[pr]+1}], v[{Tq[pr]}:{Tq[pr]+1}], v[{Z[pr]}:{Z[pr]+1}]")
            for pr in prs:
                e(f"v_cvt_pk_bf16_f32 v{base+8*half+(pr%4)}, v{Tq[pr]}, v{Tq[pr]+1}")
            o = base + 8 * half
            htok = g.vmem(f"buffer_store_dwordx4 v[{o}:{o+3}], v{vHs}, s[{SWS}:{SWS+3}], s{sHB} offen offset:{t*1024+half*512} sc1")
            next_load()
        g.stamp(f"gelu{t}")
    for _ in range(P["gl"]):
        next_load()
    publish(B_P | B_H, htok)
    g.stamp("h_published")
    e("s_barrier")

    ACC2 = 176
    HB = [96 + 4 * i for i in range(20)] + [44 + 4 * i for i in range(13)]
    hb_next = [0]
    htoks = {}
    e(f"s_and_b32 s{sT}, s{sMT}, 1\ns_lshl_b32 s{sT}, s{sT}, 3\nv_add_u32 v{vPh}, s{sT}, v{vPh}")

    def h_poll():
        return f"buffer_load_dwordx2 v[{vF}:{vF+1}], v{vPh}, s[{SWS}:{SWS+3}], 0 offen sc1"

    def h_load(sg, i):
        r = HB[hb_next[0] % len(HB)]
        hb_next[0] += 1
        e(f"s_add_u32 s{sT}, s{sPH+sg}, s{sMI+i}")
        htoks[(sg, i)] = (r, g.vmem(f"buffer_load_dwordx4 v[{r}:{r+3}], v{vL16}, s[{SWS}:{SWS+3}], s{sT} offen sc1"))

    started = set()

    def mm(sg, i):
        r, tok = htoks[(sg, i)]
        for jj in range(5):
            g.wait(vm=max(tok, wtok[(sg, jj)]))
            c = ACC2 + 20 * i + 4 * jj
            w = wreg[(sg, jj)]
            cin = f"v[{c}:{c+3}]" if (i, jj) in started else "0"
            started.add((i, jj))
            e(f"v_mfma_f32_16x16x32_bf16 v[{c}:{c+3}], a[{w}:{w+3}], v[{r}:{r+3}], {cin}")

    vB2o = vTmp + 10
    e(f"v_lshrrev_b32 v{vB2o}, 4, v{vL}\nv_lshlrev_b32 v{vB2o}, 3, v{vB2o}\ns_mul_i32 s{sT2}, s{sNT}, 160")
    for jj in range(5):
        b2tok = g.vmem(f"buffer_load_dwordx2 v[{vTmp+2*jj}:{vTmp+2*jj+1}], v{vB2o}, s[{SB2}:{SB2+3}], s{sT2} offen offset:{jj*32}")
    F2 = [vF, vF + 1]
    C3 = ACC2 + 60
    vRW = vTmp + 12
    for i in range(3):
        e(f"s_add_u32 s{sT}, s{sW}, {i+1}\ns_and_b32 s{sT}, s{sT}, 3\ns_mul_i32 s{sT}, s{sT}, 15360\ns_add_u32 s{sT}, s{sT}, {i*5120}\nv_add_u32 v{vRW+i}, s{sT}, v{vL16}")
    e(f"s_mul_i32 s{sT}, s{sW}, 15360\nv_add_u32 v{vRW+3}, s{sT}, v{vL16}")
    e(f"v_and_b32 v{vRW+4}, 15, v{vL}\nv_mul_u32_u24 v{vRW+4}, 1280, v{vRW+4}\nv_add_u32 v{vRW+4}, v{vRW+4}, v{vB2o}")
    e(f"s_lshl_b32 s{sT}, s{sMT}, 6\ns_lshl_b32 s{sT3}, s{sW}, 4\ns_add_u32 s{sT}, s{sT}, s{sT3}\ns_mul_i32 s{sT}, s{sT}, 1280\ns_add_u32 s{sHB}, s{sT}, s{sT2}")
    nleft = len(stream)
    for _ in range(max(0, nleft - P['hpoll'])):
        next_load()
    tk = g.vmem(h_poll())
    while next_load():
        pass
    g.stamp("w2_all_issued")
    g.wait(vm=b2tok)
    for jj in range(5):
        c = C3 + 4 * jj
        e(f"v_lshlrev_b32 v{c}, 16, v{vTmp+2*jj}\nv_and_b32 v{c+1}, 0xffff0000, v{vTmp+2*jj}\nv_lshlrev_b32 v{c+2}, 16, v{vTmp+2*jj+1}\nv_and_b32 v{c+3}, 0xffff0000, v{vTmp+2*jj+1}")
        started.add((3, jj))
    spin(lambda: flag_eval(F2, B_H), lambda: e(h_poll()), tk)
    g.stamp("h_flag_ok")
    LAST = P["last"]
    order = [(sg, i) for sg in range(12 - LAST) for i in range(4)] + [(sg, i) for i in range(4) for sg in range(12 - LAST, 12)]
    HA = 10
    for o in order[:HA]:
        h_load(*o)
    for k, o in enumerate(order):
        if k + HA < len(order):
            h_load(*order[k + HA])
        mm(*o)
        kk = k - 4 * (12 - LAST)
        if kk >= LAST:
            i, p = divmod(kk, LAST)
            jjs = [jj for jj in range(5) if jj * LAST // 5 == p]
            for jj in jjs:
                c = ACC2 + 20 * (i - 1) + 4 * jj
                g.ds(f"ds_write_b128 v{vRW+i-1}, v[{c}:{c+3}] offset:{jj*1024}")
        if k in (0, 15, 31):
            g.stamp(f"g2_{k}")
    g.stamp("gemm2_done")
    g.wait(lg=g.lg)
    e("s_barrier")
    g.stamp("red_barrier")
    R = 96
    rt = {}
    for jj in range(5):
        for i in range(3):
            k = 5 * i + jj
            rt[k] = g.ds(f"ds_read_b128 v[{R+4*k}:{R+4*k+3}], v{vRW+3} offset:{k*1024}")
    for jj in range(5):
        c = C3 + 4 * jj
        for i in range(3):
            k = 5 * i + jj
            g.wait(lg=rt[k])
            e(f"v_pk_add_f32 v[{c}:{c+1}], v[{c}:{c+1}], v[{R+4*k}:{R+4*k+1}]\nv_pk_add_f32 v[{c+2}:{c+3}], v[{c+2}:{c+3}], v[{R+4*k+2}:{R+4*k+3}]")
        e(f"v_cvt_pk_bf16_f32 v{c}, v{c}, v{c+1}\nv_cvt_pk_bf16_f32 v{c+1}, v{c+2}, v{c+3}")
        g.vmem(f"buffer_store_dwordx2 v[{c}:{c+1}], v{vRW+4}, s[{SO}:{SO+3}], s{sHB} offen offset:{jj*32}")
    if diag:
        g.stamp("out_issued")
        e("s_waitcnt vmcnt(0)")
        g.stamp("end")
        e(f"s_lshl_b32 s{sT}, s2, 2\ns_add_u32 s{sT}, s{sT}, s{sW}\ns_lshl_b32 s{sT}, s{sT}, 8\ns_add_u32 s{sT}, s{sT}, {T0}")
        e(f"v_lshlrev_b32 v{vF}, 2, v{vL}")
        e(f"buffer_store_dword v0, v{vF}, s[{SWS}:{SWS+3}], s{sT} offen")
        open("stampnames.txt", "w").write("\n".join(g.stampnames))
    if hd:
        e("s_waitcnt vmcnt(0)\ns_barrier\ns_memtime s[98:99]\ns_memrealtime s[100:101]\ns_waitcnt lgkmcnt(0)")
        e(f"s_cmp_lg_u32 s{sW}, 0\ns_cbranch_scc1 L_end\ns_sleep 127\ns_sleep 127")
        e(f"s_lshl_b32 s{sT}, s100, 2\ns_sub_u32 s{sT}, s{sT}, s{sN}\ns_and_b32 s{sT}, s{sT}, 0x7fffffff\ns_lshr_b32 s{sT}, s{sT}, 2\nv_mov_b32 v20, s{sT}")
        e(f"s_sub_u32 s{sT}, s98, s94\nv_mov_b32 v21, s{sT}")
        e(f"s_add_u32 s{sT}, s96, 4096\ns_lshl_b32 s{sT}, s{sT}, 2\ns_sub_u32 s{sT}, s{sT}, s{sN}\ns_and_b32 s{sT}, s{sT}, 0x7fffffff\ns_lshr_b32 s{sT}, s{sT}, 2\nv_mov_b32 v22, s{sT}")
        e(f"s_sub_u32 s{sT}, 8192, s{sT}\nv_mov_b32 v23, s{sT}")
        e("v_mov_b32 v25, 0\ns_mov_b64 exec, 1")
        for i in range(4):
            e(f"buffer_atomic_umax v{20+i}, v25, s[{SD}:{SD+3}], 0 offen offset:{4+4*i} sc1")
    g.label("L_end")
    e("s_endpgm")
    out += g.L
    if P.get("cpf"):
        out += [".fill 2048, 4, 0xbf800000"]
    out += ['.section .rodata,"a"', ".p2align 6", f".amdhsa_kernel {NAME}",
            "  .amdhsa_next_free_vgpr 512", "  .amdhsa_next_free_sgpr 102", "  .amdhsa_accum_offset 256",
            "  .amdhsa_group_segment_fixed_size 0", "  .amdhsa_kernarg_size 64", "  .amdhsa_user_sgpr_count 2",
            "  .amdhsa_user_sgpr_kernarg_segment_ptr 1", "  .amdhsa_system_sgpr_workgroup_id_x 1", ".end_amdhsa_kernel"]
    return "\n".join(out) + "\n"


if __name__ == "__main__":
    diag = "--diag" in sys.argv
    path = [a for a in sys.argv[1:] if not a.startswith("--")]
    path = path[0] if path else "standalone__mixer_channel_mlp__prompt.s"
    P = {}
    for a in sys.argv[1:]:
        if a.startswith("--p:"):
            k, v = a[4:].split("=")
            P[k] = int(v)
    open(path, "w").write(generate(diag, "--hd" in sys.argv, P))
    print("wrote", path)
```

```python
import sys
from gen import Gen, NAME

Y0 = 0
W0 = 4 << 20
H0 = 8 << 20
F0 = 16 << 20
T0 = 17 << 20
WS_BYTES = 18 << 20

LDS_W1 = 0
LDS_STAGE = 122880
LDS_YX = 122880 + 8192
LDS_BYTES = LDS_YX + 80 * 144

SPIN_MAX = 20000
B_P, B_H = 1, 2

DEF = dict(xw=3, lw=0, w1pre=6, lnw=0, postw=8, win1=8, ahead=8, wlead_at=24, xnt=1, last=3, gl=6, polllead=4, hpoll=10)


def generate(diag=False, hd=False, P=None):
    P = dict(DEF, **(P or {}))
    g = Gen(diag)
    e = g.e
    SX, SW1, SB1, SW2, SB2, SO, SD, SWS = 4, 8, 12, 16, 20, 24, 28, 32
    sW = 36
    sMB, sFT, sQ, sMT, sNT, sJ, sR1 = 37, 38, 39, 40, 41, 42, 43
    sN = 45
    sT, sT2, sT3 = 46, 47, 48
    sCNT = 49
    sEX = 50
    sYB = 44
    sMI = 52
    sK1, sONE, sHB, sIDX = 56, 57, 58, 59
    sC1, sCB, sS2, sWA, sWB, sWC, sWD = 60, 61, 62, 63, 64, 65, 66
    sYL, sU1, sU2 = 67, 92, 93
    sPW = 68
    sPH = 80
    vL, vL16 = 1, 2
    vW1 = 3
    vFl, vPo, vPh, vHs = 6, 7, 8, 9
    vC2, vC1, vOne = 10, 12, 14
    vF = 16
    vTmp = 20
    vT = 40
    ACC = 48
    Y = 96

    hdr = open("standalone__mixer_channel_mlp__prompt.s.ref").read().split("\n")
    head = []
    for ln in hdr:
        if ln.startswith("; @launch"):
            head.append(f"; @launch grid=(256,1,1) block=(256,1,1) lds={LDS_BYTES}")
            break
        head.append(ln)
    out = head + ['.amdgcn_target "amdgcn-amd-amdhsa--gfx950"', ".text", f".globl {NAME}", ".p2align 8",
                  f".type {NAME},@function", f"{NAME}:"]
    NT = " nt" if P["xnt"] else ""
    STP = ["sc1", "sc0 sc1", "sc1 nt", "", "nt"][P.get("stp", 0)]

    e("s_cmp_ge_u32 s2, 256\ns_cbranch_scc1 L_end")
    e("s_load_dwordx16 s[76:91], s[0:1], 0")
    if hd:
        e("s_memtime s[94:95]\ns_memrealtime s[96:97]")
    e(f"v_and_b32 v{vL}, 63, v0\nv_lshrrev_b32 v{vTmp}, 6, v0\nv_lshlrev_b32 v{vL16}, 4, v{vL}")
    e(f"v_readfirstlane_b32 s{sW}, v{vTmp}")
    e(f"s_and_b32 s{sT}, s2, 7\ns_lshr_b32 s{sIDX}, s2, 3")
    e(f"s_lshr_b32 s{sT2}, s{sT}, 1\ns_and_b32 s{sT3}, s{sT}, 1")
    e(f"s_lshr_b32 s{sR1}, s{sIDX}, 3\ns_lshl_b32 s{sMB}, s{sT2}, 2\ns_add_u32 s{sMB}, s{sMB}, s{sR1}")
    e(f"s_and_b32 s{sT}, s{sIDX}, 7\ns_lshl_b32 s{sFT}, s{sT3}, 3\ns_add_u32 s{sFT}, s{sFT}, s{sT}")
    e(f"s_lshl_b32 s{sQ}, s{sMB}, 4\ns_add_u32 s{sQ}, s{sQ}, s{sFT}")
    e(f"s_lshr_b32 s{sJ}, s{sIDX}, 2\ns_lshl_b32 s{sMT}, s{sT2}, 3\ns_add_u32 s{sMT}, s{sMT}, s{sJ}")
    e(f"s_and_b32 s{sNT}, s{sIDX}, 3\ns_lshl_b32 s{sT3}, s{sT3}, 2\ns_add_u32 s{sNT}, s{sNT}, s{sT3}")
    vXo, vR, vI = vTmp + 1, vTmp + 2, vTmp + 3
    e(f"v_lshrrev_b32 v{vR}, 5, v{vL}\nv_and_b32 v{vI}, 31, v{vL}")
    e(f"v_mul_u32_u24 v{vXo}, 1280, v{vR}\nv_lshl_add_u32 v{vXo}, v{vI}, 3, v{vXo}")
    e(f"s_lshl_b32 s{sT}, s{sQ}, 3\ns_lshl_b32 s{sT2}, s{sW}, 1\ns_add_u32 s{sT}, s{sT}, s{sT2}\ns_mul_i32 s{sT}, s{sT}, 1280")
    vW2o = vTmp + 12
    e(f"s_mul_i32 s{sCB}, s{sQ}, 1366\ns_lshr_b32 s{sCB}, s{sCB}, 16\ns_mul_i32 s{sT3}, s{sCB}, 48\ns_sub_u32 s{sS2}, s{sQ}, s{sT3}")
    e(f"v_lshrrev_b32 v{vW2o}, 4, v{vL}\nv_mul_u32_u24 v{vW2o}, 1280, v{vW2o}\nv_and_b32 v{vTmp+6}, 15, v{vL}\nv_lshl_add_u32 v{vW2o}, v{vTmp+6}, 4, v{vW2o}")
    e(f"s_lshl_b32 s{sWA}, s{sS2}, 5\ns_lshl_b32 s{sT2}, s{sW}, 3\ns_add_u32 s{sWA}, s{sWA}, s{sT2}\ns_mul_i32 s{sWA}, s{sWA}, 1280\ns_lshl_b32 s{sT2}, s{sCB}, 8\ns_add_u32 s{sWA}, s{sWA}, s{sT2}")
    e(f"s_lshl_b32 s{sT2}, s{sW}, 11\ns_add_u32 m0, s{sT2}, {LDS_STAGE}")
    e(f"v_mov_b32 v{vTmp+5}, 0")
    e("s_waitcnt lgkmcnt(0)")

    def srd(r, k, nbytes):
        e(f"s_mov_b32 s{r}, s{76+2*k}\ns_mov_b32 s{r+1}, s{77+2*k}\ns_mov_b32 s{r+2}, {nbytes}\ns_mov_b32 s{r+3}, 0x00020000")

    srd(SX, 0, 2621440)
    XR = Y
    xtok = [g.vmem(f"buffer_load_dwordx2 v[{XR+2*j}:{XR+2*j+1}], v{vXo}, s[{SX}:{SX+3}], s{sT} offen offset:{256*j}{NT}") for j in range(5)]
    if P.get("cpf"):
        lab = g.newlab("nopf")
        e(f"s_and_b32 s{sT2}, s{sIDX}, {P['cpf']-1}\ns_cmp_lg_u32 s{sT2}, 0\ns_cbranch_scc1 {lab}")
        e(f"s_getpc_b64 s[{sEX}:{sEX+1}]\ns_lshl_b32 s{sT2}, s{sW}, 13\ns_add_u32 s{sEX}, s{sEX}, s{sT2}\ns_addc_u32 s{sEX+1}, s{sEX+1}, 0")
        e(f"v_lshlrev_b32 v{vTmp+15}, 7, v{vL}")
        e(f"s_cmp_ge_u32 s{sW}, 3\ns_cbranch_scc1 {lab}")
        e(f"global_load_dword v{vTmp+16}, v{vTmp+15}, s[{sEX}:{sEX+1}]")
        g.label(lab)
    srd(SW2, 3, 1966080)
    g.vmem(f"buffer_load_dwordx4 v{vW2o}, s[{SW2}:{SW2+3}], s{sWA} offen{NT} lds")
    e(f"s_add_u32 m0, m0, 1024\ns_add_u32 s{sWA}, s{sWA}, {4*1280}")
    w2ptok = g.vmem(f"buffer_load_dwordx4 v{vW2o}, s[{SW2}:{SW2+3}], s{sWA} offen{NT} lds")
    srd(SD, 6, 256)
    lab = g.newlab("nononce")
    e(f"s_or_b32 s{sT}, s2, s{sW}\ns_cmp_lg_u32 s{sT}, 0\ns_cbranch_scc1 {lab}")
    e(f"s_memrealtime s[{sEX}:{sEX+1}]\ns_waitcnt lgkmcnt(0)")
    e(f"s_lshl_b32 s{sT}, s{sEX}, 2\ns_or_b32 s{sT}, s{sT}, 0x80000000\nv_mov_b32 v{vTmp+4}, s{sT}")
    e(f"s_mov_b64 exec, 1")
    e(f"buffer_store_dword v{vTmp+4}, v{vTmp+5}, s[{SD}:{SD+3}], 0 offen sc1")
    e(f"s_mov_b64 exec, -1")
    g.label(lab)
    for r, k, n in ((SW1, 1, 1966080), (SB1, 2, 3072), (SB2, 4, 1280), (SO, 5, 2621440), (SWS, 7, WS_BYTES)):
        srd(r, k, n)
    g.stamp("start")
    for i in range(3):
        e(f"v_add_u32 v{vTmp+6}, {64*i}, v{vL}\nv_mul_u32_u24 v{vTmp+7}, 5462, v{vTmp+6}\nv_lshrrev_b32 v{vTmp+7}, 16, v{vTmp+7}")
        e(f"v_mul_u32_u24 v{vTmp+8}, 12, v{vTmp+7}\nv_sub_u32 v{vTmp+8}, v{vTmp+6}, v{vTmp+8}")
        e(f"v_mul_u32_u24 v{vTmp+7}, 3072, v{vTmp+7}\nv_lshl_add_u32 v{vW1+i}, v{vTmp+8}, 4, v{vTmp+7}")
    e(f"s_mul_i32 s{sK1}, s{sR1}, 10\ns_add_u32 s{sK1}, s{sK1}, s{sW}\ns_mul_i32 s{sC1}, s{sFT}, 192\ns_mov_b32 s{sONE}, 0x3f803f80")
    w1tok = []
    w1n = [0]

    def w1_one(win=None):
        if w1n[0] >= 30:
            return
        i = w1n[0] % 3
        w1n[0] += 1
        if i == 0:
            e(f"s_mul_i32 s{sWC}, s{sK1}, {16*3072}\ns_add_u32 s{sWC}, s{sWC}, s{sC1}\ns_mul_i32 s{sWD}, s{sK1}, 3072")
            e(f"s_add_u32 s{sK1}, s{sK1}, 4\ns_cmp_ge_u32 s{sK1}, 40\ns_cselect_b32 s{sT3}, 40, 0\ns_sub_u32 s{sK1}, s{sK1}, s{sT3}")
        e(f"s_add_u32 m0, s{sWD}, {LDS_W1 + i*1024}")
        if win is not None and g.vm - (win - 1) > g.vm_done:
            g.wait(vm=g.vm - (win - 1))
        else:
            e("s_nop 0")
        w1tok.append(g.vmem(f"buffer_load_dwordx4 v{vW1+i}, s[{SW1}:{SW1+3}], s{sWC} offen lds"))

    for _ in range(P["w1pre"]):
        w1_one()

    vYw, vYr, vYs, vYs2, vP = vTmp + 9, vTmp + 10, vTmp + 11, vTmp + 4, vTmp + 13
    e(f"v_lshrrev_b32 v{vTmp+6}, 1, v{vI}\nv_mul_u32_u24 v{vYw}, 144, v{vTmp+6}\nv_lshl_add_u32 v{vYw}, v{vR}, 4, v{vYw}")
    e(f"v_and_b32 v{vTmp+6}, 1, v{vI}\nv_lshl_add_u32 v{vYw}, v{vTmp+6}, 3, v{vYw}")
    e(f"s_lshl_b32 s{sT}, s{sW}, 5\ns_add_u32 s{sT}, s{sT}, {LDS_YX}\nv_add_u32 v{vYw}, s{sT}, v{vYw}")
    e(f"v_lshrrev_b32 v{vTmp+6}, 3, v{vL}\nv_and_b32 v{vTmp+7}, 7, v{vL}\nv_lshlrev_b32 v{vTmp+7}, 4, v{vTmp+7}")
    e(f"v_mul_u32_u24 v{vYr}, 144, v{vTmp+6}\nv_add_u32 v{vYr}, v{vYr}, v{vTmp+7}")
    e(f"s_mul_i32 s{sT}, s{sW}, {20*144}\ns_add_u32 s{sT}, s{sT}, {LDS_YX}\nv_add_u32 v{vYr}, s{sT}, v{vYr}")
    e(f"v_lshl_add_u32 v{vYs}, v{vTmp+6}, 9, v{vTmp+7}")
    e(f"v_cmp_gt_u32 vcc, 32, v{vL}\nv_mov_b32 v{vTmp+6}, {WS_BYTES}\ns_nop 0\nv_cndmask_b32 v{vYs2}, v{vTmp+6}, v{vYs}, vcc")
    e(f"s_lshr_b32 s{sT}, s{sQ}, 2\ns_mul_i32 s{sT}, s{sT}, 40960\ns_and_b32 s{sT2}, s{sQ}, 3\ns_lshl_b32 s{sT2}, s{sT2}, 7\ns_add_u32 s{sT}, s{sT}, s{sT2}")
    e(f"s_mul_i32 s{sT2}, s{sW}, 10240\ns_add_u32 s{sYB}, s{sT}, s{sT2}")
    e(f"s_lshl_b32 s{sT}, s{sQ}, 7\ns_lshl_b32 s{sT2}, s{sW}, 2\ns_add_u32 s{sT}, s{sT}, s{sT2}\ns_add_u32 s{sT}, s{sT}, {F0}\nv_mov_b32 v{vFl}, s{sT}")
    e(f"v_lshlrev_b32 v{vP}, 12, v{vR}\nv_bfe_u32 v{vTmp+6}, v{vL}, 4, 1\nv_lshl_add_u32 v{vP}, v{vTmp+6}, 10, v{vP}")
    e(f"v_bfe_u32 v{vTmp+6}, v{vL}, 2, 2\nv_lshl_add_u32 v{vP}, v{vTmp+6}, 8, v{vP}\nv_and_b32 v{vTmp+6}, 3, v{vL}\nv_lshl_add_u32 v{vP}, v{vTmp+6}, 3, v{vP}")
    e(f"s_lshl_b32 s{sT}, s{sW}, 6\ns_add_u32 s{sT}, s{sT}, {LDS_STAGE}\nv_add_u32 v{vP}, s{sT}, v{vP}")
    for ee, dst in ((0, sWA), (1, sWB)):
        e(f"s_lshl_b32 s{sT}, s{sCB}, 3\ns_lshl_b32 s{sT2}, s{sW}, 1\ns_add_u32 s{sT}, s{sT}, s{sT2}")
        if ee:
            e(f"s_add_u32 s{sT}, s{sT}, 1")
        e(f"s_mul_i32 s{sT2}, s{sT}, 13108\ns_lshr_b32 s{sT2}, s{sT2}, 16\ns_mul_i32 s{sT3}, s{sT2}, 5\ns_sub_u32 s{sT}, s{sT}, s{sT3}")
        e(f"s_mul_i32 s{sT2}, s{sT2}, 48\ns_add_u32 s{sT2}, s{sT2}, s{sS2}\ns_mul_i32 s{sT2}, s{sT2}, 5\ns_add_u32 s{sT}, s{sT}, s{sT2}")
        e(f"s_lshl_b32 s{sT}, s{sT}, 10\ns_add_u32 s{dst}, s{sT}, {W0}")
    e(f"s_cmp_ge_u32 s{sQ}, {0 if P.get('now') else 240}\ns_cselect_b32 s{sWA}, {WS_BYTES}, s{sWA}\ns_cselect_b32 s{sWB}, {WS_BYTES}, s{sWB}")
    if P.get('noy'):
        e(f"s_mov_b32 s{sYB}, {WS_BYTES}")

    setup = []
    S = setup.append
    S(f"v_cmp_le_u32 vcc, 12, v{vL}\ns_mul_i32 s{sT}, s{sNT}, 5\ns_nop 0\nv_cndmask_b32 v{vTmp+7}, 0, 1, vcc")
    S(f"v_lshl_add_u32 v{vTmp+6}, v{vTmp+7}, 2, s{sT}\nv_lshrrev_b32 v{vTmp+6}, 3, v{vTmp+6}\nv_mul_u32_u24 v{vTmp+6}, 48, v{vTmp+6}")
    S(f"v_mul_u32_u24 v{vTmp+7}, 12, v{vTmp+7}\nv_sub_u32 v{vTmp+7}, v{vL}, v{vTmp+7}\ns_mul_i32 s{sT}, s{sW}, 12\nv_add3_u32 v{vTmp+6}, v{vTmp+6}, v{vTmp+7}, s{sT}")
    S(f"v_cmp_gt_u32 vcc, 24, v{vL}\nv_readfirstlane_b32 s{sT}, v{vTmp+6}\ns_nop 1\nv_mov_b32 v{vTmp+7}, s{sT}\nv_cndmask_b32 v{vPo}, v{vTmp+7}, v{vTmp+6}, vcc")
    S(f"v_lshlrev_b32 v{vPo}, 7, v{vPo}\nv_add_u32 v{vPo}, {F0}, v{vPo}")
    S(f"s_lshl_b32 s{sT}, s{sMB}, 4\ns_lshl_b32 s{sT2}, s{sW}, 2\ns_add_u32 s{sT}, s{sT}, s{sT2}\nv_and_b32 v{vTmp+7}, 3, v{vL}\nv_add_u32 v{vTmp+7}, s{sT}, v{vTmp+7}")
    S(f"v_lshlrev_b32 v{vPh}, 7, v{vTmp+7}\nv_add_u32 v{vPh}, {F0}, v{vPh}")
    S(f"v_lshlrev_b32 v{vTmp+7}, 3, v{vR}\nv_bfe_u32 v{vTmp+6}, v{vL}, 2, 2\nv_add_u32 v{vTmp+7}, v{vTmp+7}, v{vTmp+6}")
    S(f"v_mul_u32_u24 v{vTmp+7}, 192, v{vTmp+7}\nv_bfe_u32 v{vTmp+6}, v{vL}, 4, 1\nv_lshl_add_u32 v{vTmp+7}, v{vTmp+6}, 5, v{vTmp+7}")
    S(f"v_and_b32 v{vTmp+6}, 3, v{vL}\nv_lshl_add_u32 v{vT}, v{vTmp+6}, 3, v{vTmp+7}\nv_add_u32 v{vT+1}, {20*3072}, v{vT}")
    S(f"s_lshl_b32 s{sYL}, s{sMB}, 2\ns_add_u32 s{sYL}, s{sYL}, s{sW}\ns_mul_i32 s{sYL}, s{sYL}, 40960")
    S(f"s_mul_i32 s{sCNT}, s{sJ}, 3\ns_lshr_b32 s{sCNT}, s{sCNT}, 1\ns_mul_i32 s{sU1}, s{sW}, 12\ns_mul_i32 s{sU2}, s{sNT}, 48\ns_add_u32 s{sU2}, s{sU2}, s{sU1}")
    for sg in range(12):
        S(f"s_add_u32 s{sT}, s{sCNT}, s{sU1}\ns_lshl_b32 s{sPH+sg}, s{sT}, 10\ns_add_u32 s{sT}, s{sCNT}, s{sU2}\ns_mul_i32 s{sT}, s{sT}, 5120\ns_add_u32 s{sPW+sg}, s{sT}, {W0}\n"
          f"s_add_u32 s{sCNT}, s{sCNT}, 1\ns_cmp_eq_u32 s{sCNT}, 12\ns_cselect_b32 s{sCNT}, 0, s{sCNT}")
    for i in range(4):
        S(f"s_add_u32 s{sT}, s{sW}, {i+1}\ns_and_b32 s{sT}, s{sT}, 3\ns_lshl_b32 s{sT2}, s{sMT}, 2\ns_add_u32 s{sT}, s{sT}, s{sT2}\n"
          f"s_mul_i32 s{sT}, s{sT}, 49152\ns_add_u32 s{sMI+i}, s{sT}, {H0}")
    S(f"v_bfe_u32 v{vTmp+6}, v{vL}, 4, 1\nv_mul_u32_u24 v{vHs}, 49152, v{vTmp+6}\nv_lshl_add_u32 v{vHs}, v{vR}, 8, v{vHs}")
    S(f"v_and_b32 v{vTmp+6}, 15, v{vL}\nv_lshl_add_u32 v{vHs}, v{vTmp+6}, 4, v{vHs}")
    S(f"s_lshl_b32 s{sT}, s{sMB}, 3\ns_lshl_b32 s{sT2}, s{sW}, 1\ns_add_u32 s{sT}, s{sT}, s{sT2}\ns_mul_i32 s{sT}, s{sT}, 49152\n"
      f"s_mul_i32 s{sT2}, s{sFT}, 3072\ns_add_u32 s{sT}, s{sT}, s{sT2}\ns_add_u32 s{sHB}, s{sT}, {H0}")
    S(f"v_mov_b32 v{vC2}, 0xbdd2d3e8\nv_mov_b32 v{vC2+1}, 0xbdd2d3e8\nv_mov_b32 v{vC1}, 0xc0135761\nv_mov_b32 v{vC1+1}, 0xc0135761\nv_mov_b32 v{vOne}, 1.0\nv_mov_b32 v{vOne+1}, 1.0")
    while setup:
        e(setup.pop(0))
    XF = Y + 12
    A0, A1, A2, A3 = Y + 32, Y + 33, Y + 34, Y + 35
    e(f"v_mov_b32 v{A0}, 0\nv_mov_b32 v{A1}, 0")
    g.stamp("setup_done")
    g.wait(vm=xtok[-1])
    g.stamp("x_arrived")
    for _ in range(P["xw"]):
        w1_one()
    for j in range(10):
        a = A0 if j % 2 == 0 else A1
        e(f"v_dot2_f32_bf16 v{a}, v{XR+j}, s{sONE}, v{a}")
    for j in range(3):
        e(f"v_lshlrev_b32 v{XF+2*j}, 16, v{XR+j}\nv_and_b32 v{XF+2*j+1}, 0xffff0000, v{XR+j}")
    e(f"v_add_f32 v{A0}, v{A0}, v{A1}")
    fill = [f"v_lshlrev_b32 v{XF+2*j}, 16, v{XR+j}\nv_and_b32 v{XF+2*j+1}, 0xffff0000, v{XR+j}" for j in range(3, 10)]

    def reduce32(a, t, fill):
        def pad():
            e(fill.pop(0) if fill else "s_nop 1")
        for r in (8, 4, 2, 1):
            pad()
            e(f"v_add_f32_dpp v{a}, v{a}, v{a} row_ror:{r} row_mask:0xf bank_mask:0xf")
        e(f"v_mov_b32 v{t}, v{a}")
        pad()
        e(f"v_permlane16_swap_b32 v{a}, v{t}")
        pad()
        e(f"v_add_f32 v{a}, v{a}, v{t}")

    lnw = lambda: [w1_one() for _ in range(P["lnw"])]
    lnw()
    reduce32(A0, A1, fill)
    for f in fill:
        e(f)
    lnw()
    e(f"v_mul_f32 v{A0}, 0x3acccccd, v{A0}")
    e(f"v_cvt_pk_bf16_f32 v{A2}, v{A0}, v{A0}\nv_lshlrev_b32 v{A2}, 16, v{A2}")
    e(f"v_sub_f32 v{A0}, v{A0}, v{A2}\nv_mov_b32 v{A3}, v{A2}")
    S0 = Y + 36
    for j in range(10):
        e(f"v_pk_add_f32 v[{XF+2*j}:{XF+2*j+1}], v[{XF+2*j}:{XF+2*j+1}], v[{A2}:{A3}] neg_lo:[0,1] neg_hi:[0,1]")
    for j in range(10):
        s = S0 + 2 * (j % 2)
        if j < 2:
            e(f"v_pk_mul_f32 v[{s}:{s+1}], v[{XF+2*j}:{XF+2*j+1}], v[{XF+2*j}:{XF+2*j+1}]")
        else:
            e(f"v_pk_fma_f32 v[{s}:{s+1}], v[{XF+2*j}:{XF+2*j+1}], v[{XF+2*j}:{XF+2*j+1}], v[{s}:{s+1}]")
    e(f"v_pk_add_f32 v[{S0}:{S0+1}], v[{S0}:{S0+1}], v[{S0+2}:{S0+3}]\nv_add_f32 v{S0}, v{S0}, v{S0+1}")
    ntok = g.vmem(f"buffer_load_dword v{vF}, v{vTmp+5}, s[{SD}:{SD+3}], 0 offen sc1")
    lnw()
    reduce32(S0, S0 + 1, [])
    e(f"v_mul_f32 v{S0}, 0x3acccccd, v{S0}")
    e(f"v_fma_f32 v{S0}, -v{A0}, v{A0}, v{S0}\nv_max_f32 v{S0}, 0, v{S0}")
    e(f"v_cvt_pk_bf16_f32 v{S0}, v{S0}, v{S0}\nv_lshlrev_b32 v{S0}, 16, v{S0}")
    e(f"v_add_f32 v{S0}, 0x3727c5ac, v{S0}")
    e(f"v_cvt_pk_bf16_f32 v{S0}, v{S0}, v{S0}\nv_lshlrev_b32 v{S0}, 16, v{S0}")
    e(f"v_sqrt_f32 v{S0}, v{S0}\ns_nop 0")
    e(f"v_cvt_pk_bf16_f32 v{S0}, v{S0}, v{S0}\nv_lshlrev_b32 v{S0}, 16, v{S0}")
    e(f"v_rcp_f32 v{S0}, v{S0}\ns_nop 0\nv_mov_b32 v{S0+1}, v{S0}")
    for j in range(5):
        for jj in (2 * j, 2 * j + 1):
            e(f"v_pk_mul_f32 v[{XF+2*jj}:{XF+2*jj+1}], v[{XF+2*jj}:{XF+2*jj+1}], v[{S0}:{S0+1}]")
        for jj in (2 * j, 2 * j + 1):
            e(f"v_cvt_pk_bf16_f32 v{XR+jj}, v{XF+2*jj}, v{XF+2*jj+1}")
        t = g.ds(f"ds_write_b64 v{vYw}, v[{XR+2*j}:{XR+2*j+1}] offset:{16*j*144}")
    g.stamp("ln_done")
    for _ in range(P["lw"]):
        w1_one()
    g.wait(vm=w2ptok, lg=t)
    e("s_barrier")
    g.stamp("ln_barrier")
    YL = Y + 40
    PF = Y + 52
    rt = [g.ds(f"ds_read_b128 v[{YL+4*k}:{YL+4*k+3}], v{vYr} offset:{8*k*144}") for k in range(3)]
    for ee in range(2):
        for h in range(2):
            t = g.ds(f"ds_read_b64_tr_b16 v[{PF+4*ee+2*h}:{PF+4*ee+2*h+1}], v{vP} offset:{ee*32 + h*2048}")
    for k in range(3):
        g.wait(lg=rt[k])
        if k:
            e(f"s_add_u32 s{sYB}, s{sYB}, 4096")
        g.vmem(f"buffer_store_dwordx4 v[{YL+4*k}:{YL+4*k+3}], v{vYs if k < 2 else vYs2}, s[{SWS}:{SWS+3}], s{sYB} offen {STP}")
    g.wait(lg=t)
    g.vmem(f"buffer_store_dwordx4 v[{PF}:{PF+3}], v{vL16}, s[{SWS}:{SWS+3}], s{sWA} offen {STP}")
    pstok = g.vmem(f"buffer_store_dwordx4 v[{PF+4}:{PF+7}], v{vL16}, s[{SWS}:{SWS+3}], s{sWB} offen {STP}")
    g.stamp("prep_stores_issued")

    def spin(check_emit, load_emit, tok):
        g.wait(vm=tok)
        ok = g.newlab("ok")
        retry = g.newlab("retry")
        check_emit()
        e(f"s_cbranch_scc1 {ok}")
        e(f"s_mov_b32 s{sCNT}, {SPIN_MAX}")
        g.label(retry)
        e(f"s_sub_u32 s{sCNT}, s{sCNT}, 1\ns_cmp_eq_u32 s{sCNT}, 0\ns_cbranch_scc1 {ok}")
        load_emit()
        e("s_waitcnt vmcnt(0)")
        check_emit()
        e(f"s_cbranch_scc0 {retry}")
        g.label(ok)

    for _ in range(P["postw"]):
        w1_one()
    spin(lambda: e(f"v_readfirstlane_b32 s{sN}, v{vF}\ns_nop 3\ns_cmp_lg_u32 s{sN}, 0"),
         lambda: e(f"buffer_load_dword v{vF}, v{vTmp+5}, s[{SD}:{SD+3}], 0 offen sc1"), ntok)

    g.stamp("nonce_ok")

    def publish(bits, tok):
        e(f"s_or_b32 s{sT}, s{sN}, {bits}\nv_mov_b32 v{vTmp+18}, s{sT}")
        g.wait(vm=tok)
        e(f"s_mov_b64 exec, 1")
        g.vmem(f"buffer_store_dword v{vTmp+18}, v{vFl}, s[{SWS}:{SWS+3}], 0 offen sc1")
        e(f"s_mov_b64 exec, -1")

    publish(B_P, pstok)
    g.stamp("prep_published")
    BR = Y + 64
    e(f"v_lshlrev_b32 v{vTmp+8}, 3, v{vR}")
    for t in range(3):
        for q in range(4):
            k = t * 4 + q
            btok = g.vmem(f"buffer_load_dwordx2 v[{BR+2*k}:{BR+2*k+1}], v{vTmp+8}, s[{SB1}:{SB1+3}], s{sC1} offen offset:{t*64+q*16}")

    def y_poll():
        return f"buffer_load_dwordx4 v[{vF}:{vF+3}], v{vPh}, s[{SWS}:{SWS+3}], 0 offen sc1"

    def w_poll():
        return f"buffer_load_dwordx4 v[{vF}:{vF+3}], v{vPo}, s[{SWS}:{SWS+3}], 0 offen sc1"

    def flag_eval(regs, bit):
        m = 0xfffffffc | bit
        e(f"s_or_b32 s{sT}, s{sN}, {bit}")
        for r in regs:
            e(f"v_xor_b32 v{r}, s{sT}, v{r}")
        for r in regs[1:]:
            e(f"v_or_b32 v{regs[0]}, v{regs[0]}, v{r}")
        e(f"v_and_b32 v{regs[0]}, {m:#x}, v{regs[0]}\nv_cmp_eq_u32 vcc, 0, v{regs[0]}\ns_nop 1\ns_cmp_eq_u64 vcc, -1")

    while w1n[0] < 30 - P["polllead"]:
        w1_one()
    ptok = g.vmem(y_poll())
    while w1n[0] < 30:
        w1_one()
    g.stamp("w1_all_issued")
    g.wait(vm=btok)
    for k in range(24):
        e(f"v_lshlrev_b32 v{ACC+2*k}, 16, v{BR+k}\nv_and_b32 v{ACC+2*k+1}, 0xffff0000, v{BR+k}")
    F4 = [vF, vF + 1, vF + 2, vF + 3]
    spin(lambda: flag_eval(F4, B_P), lambda: e(y_poll()), ptok)
    g.stamp("y_flags_ok")

    ytok = {}

    def y_load(s):
        r = Y + 4 * s
        if s and s % 4 == 0:
            e(f"s_add_u32 s{sYL}, s{sYL}, 4096")
        ytok[s] = g.vmem(f"buffer_load_dwordx4 v[{r}:{r+3}], v{vL16}, s[{SWS}:{SWS+3}], s{sYL} offen offset:{(s%4)*1024} sc1")

    worder = [(sg, jj) for sg in range(12) for jj in range(5)]
    wreg = {k: 4 * i for i, k in enumerate(worder)}
    wtok = {}

    def w_load(sg, jj):
        r = wreg[(sg, jj)]
        if jj < 4:
            so, imm = f"s{sPW+sg}", jj * 1024
        else:
            e(f"s_add_u32 s{sT}, s{sPW+sg}, 4096")
            so, imm = f"s{sT}", 0
        wtok[(sg, jj)] = g.vmem(f"buffer_load_dwordx4 a[{r}:{r+3}], v{vL16}, s[{SWS}:{SWS+3}], {so} offen offset:{imm} sc1")

    AHEAD = P["ahead"]
    for s in range(AHEAD):
        y_load(s)
    g.wait(vm=w1tok[-1])
    e("s_barrier")
    g.stamp("w1_barrier")

    NBUF = 12
    FB = 192
    fr = {}

    def tr_issue(s, t):
        va = vT + (1 if s >= 20 else 0)
        r = FB + 4 * ((3 * s + t) % NBUF)
        for h in range(2):
            tok = g.ds(f"ds_read_b64_tr_b16 a[{r+2*h}:{r+2*h+1}], v{va} offset:{(s%20)*3072 + t*64 + h*768}")
        fr[(s, t)] = (r, tok)

    state = {}
    ys = [("y", s) for s in range(AHEAD, 40)]
    wl = [("w", k) for k in worder]
    k0 = max(0, P["wlead_at"] - AHEAD)
    stream = ys[:max(0, k0 - 6)] + [("f", lambda: state.__setitem__("wp", g.vmem(w_poll())))] + ys[max(0, k0 - 6):k0] + \
        [("f", lambda: spin(lambda: flag_eval(F4, B_P), lambda: e(w_poll()), state["wp"]))]
    rest = ys[k0:]
    leads = wl[:10]
    while rest or leads:
        if rest:
            stream.append(rest.pop(0))
        if rest and len(rest) > 2 * len(leads):
            stream.append(rest.pop(0))
        if leads:
            stream.append(leads.pop(0))
    stream += wl[10:]

    def next_load(allow_w_idx=60):
        while stream and stream[0][0] == "f":
            stream.pop(0)[1]()
        if not stream:
            return False
        k, s = stream[0]
        if k == "w" and wreg[s] // 4 >= allow_w_idx:
            return False
        stream.pop(0)
        if k == "y":
            y_load(s)
        else:
            w_load(*s)
        return True

    for s in (0, 1):
        for t in range(3):
            tr_issue(s, t)
    for s in range(40):
        yr = Y + 4 * s
        while (min(39, s + AHEAD) not in ytok):
            next_load(FB // 4)
        for t in range(3):
            r, tok = fr[(s, t)]
            g.wait(vm=ytok[s] if t == 0 else None, lg=tok)
            e(f"v_mfma_f32_32x32x16_bf16 v[{ACC+16*t}:{ACC+16*t+15}], a[{r}:{r+3}], v[{yr}:{yr+3}], v[{ACC+16*t}:{ACC+16*t+15}]")
            if s + 2 < 40:
                tr_issue(s + 2, t)
            if s + AHEAD >= 40 and t == 1:
                next_load(FB // 4)
        if s in (0, 9, 19, 29):
            g.stamp(f"g1_slot{s}")
    g.stamp("gemm1_done")

    G = vTmp
    hts = []
    next_load()
    next_load()
    g.nop(8)
    for t in range(3):
        base = ACC + 16 * t
        for half in range(2):
            prs = range(4 * half, 4 * half + 4)
            Z = {pr: base + 2 * pr for pr in prs}
            Tq = {pr: G + 2 * (pr % 8) for pr in prs}
            for pr in prs:
                e(f"v_pk_mul_f32 v[{Tq[pr]}:{Tq[pr]+1}], v[{Z[pr]}:{Z[pr]+1}], v[{Z[pr]}:{Z[pr]+1}]")
            for pr in prs:
                e(f"v_pk_fma_f32 v[{Tq[pr]}:{Tq[pr]+1}], v[{Tq[pr]}:{Tq[pr]+1}], v[{vC2}:{vC2+1}], v[{vC1}:{vC1+1}]")
            for pr in prs:
                e(f"v_pk_mul_f32 v[{Tq[pr]}:{Tq[pr]+1}], v[{Tq[pr]}:{Tq[pr]+1}], v[{Z[pr]}:{Z[pr]+1}]")
            next_load()
            for pr in prs:
                e(f"v_exp_f32 v{Tq[pr]}, v{Tq[pr]}\nv_exp_f32 v{Tq[pr]+1}, v{Tq[pr]+1}")
            for pr in prs:
                e(f"v_pk_add_f32 v[{Tq[pr]}:{Tq[pr]+1}], v[{Tq[pr]}:{Tq[pr]+1}], v[{vOne}:{vOne+1}]")
            next_load()
            for pr in prs:
                e(f"v_rcp_f32 v{Tq[pr]}, v{Tq[pr]}\nv_rcp_f32 v{Tq[pr]+1}, v{Tq[pr]+1}")
            for pr in prs:
                e(f"v_pk_mul_f32 v[{Tq[pr]}:{Tq[pr]+1}], v[{Tq[pr]}:{Tq[pr]+1}], v[{Z[pr]}:{Z[pr]+1}]")
            for pr in prs:
                e(f"v_cvt_pk_bf16_f32 v{base+8*half+(pr%4)}, v{Tq[pr]}, v{Tq[pr]+1}")
            o = base + 8 * half
            htok = g.vmem(f"buffer_store_dwordx4 v[{o}:{o+3}], v{vHs}, s[{SWS}:{SWS+3}], s{sHB} offen offset:{t*1024+half*512} sc1")
            next_load()
        g.stamp(f"gelu{t}")
    for _ in range(P["gl"]):
        next_load()
    publish(B_P | B_H, htok)
    g.stamp("h_published")
    e("s_barrier")

    ACC2 = 176
    HB = [96 + 4 * i for i in range(20)] + [44 + 4 * i for i in range(13)]
    hb_next = [0]
    htoks = {}
    e(f"s_and_b32 s{sT}, s{sMT}, 1\ns_lshl_b32 s{sT}, s{sT}, 3\nv_add_u32 v{vPh}, s{sT}, v{vPh}")

    def h_poll():
        return f"buffer_load_dwordx2 v[{vF}:{vF+1}], v{vPh}, s[{SWS}:{SWS+3}], 0 offen sc1"

    def h_load(sg, i):
        r = HB[hb_next[0] % len(HB)]
        hb_next[0] += 1
        e(f"s_add_u32 s{sT}, s{sPH+sg}, s{sMI+i}")
        htoks[(sg, i)] = (r, g.vmem(f"buffer_load_dwordx4 v[{r}:{r+3}], v{vL16}, s[{SWS}:{SWS+3}], s{sT} offen sc1"))

    started = set()

    def mm(sg, i):
        r, tok = htoks[(sg, i)]
        for jj in range(5):
            g.wait(vm=max(tok, wtok[(sg, jj)]))
            c = ACC2 + 20 * i + 4 * jj
            w = wreg[(sg, jj)]
            cin = f"v[{c}:{c+3}]" if (i, jj) in started else "0"
            started.add((i, jj))
            e(f"v_mfma_f32_16x16x32_bf16 v[{c}:{c+3}], a[{w}:{w+3}], v[{r}:{r+3}], {cin}")

    vB2o = vTmp + 10
    e(f"v_lshrrev_b32 v{vB2o}, 4, v{vL}\nv_lshlrev_b32 v{vB2o}, 3, v{vB2o}\ns_mul_i32 s{sT2}, s{sNT}, 160")
    for jj in range(5):
        b2tok = g.vmem(f"buffer_load_dwordx2 v[{vTmp+2*jj}:{vTmp+2*jj+1}], v{vB2o}, s[{SB2}:{SB2+3}], s{sT2} offen offset:{jj*32}")
    F2 = [vF, vF + 1]
    C3 = ACC2 + 60
    vRW = vTmp + 12
    for i in range(3):
        e(f"s_add_u32 s{sT}, s{sW}, {i+1}\ns_and_b32 s{sT}, s{sT}, 3\ns_mul_i32 s{sT}, s{sT}, 15360\ns_add_u32 s{sT}, s{sT}, {i*5120}\nv_add_u32 v{vRW+i}, s{sT}, v{vL16}")
    e(f"s_mul_i32 s{sT}, s{sW}, 15360\nv_add_u32 v{vRW+3}, s{sT}, v{vL16}")
    e(f"v_and_b32 v{vRW+4}, 15, v{vL}\nv_mul_u32_u24 v{vRW+4}, 1280, v{vRW+4}\nv_add_u32 v{vRW+4}, v{vRW+4}, v{vB2o}")
    e(f"s_lshl_b32 s{sT}, s{sMT}, 6\ns_lshl_b32 s{sT3}, s{sW}, 4\ns_add_u32 s{sT}, s{sT}, s{sT3}\ns_mul_i32 s{sT}, s{sT}, 1280\ns_add_u32 s{sHB}, s{sT}, s{sT2}")
    nleft = len(stream)
    for _ in range(max(0, nleft - P['hpoll'])):
        next_load()
    tk = g.vmem(h_poll())
    while next_load():
        pass
    g.stamp("w2_all_issued")
    g.wait(vm=b2tok)
    for jj in range(5):
        c = C3 + 4 * jj
        e(f"v_lshlrev_b32 v{c}, 16, v{vTmp+2*jj}\nv_and_b32 v{c+1}, 0xffff0000, v{vTmp+2*jj}\nv_lshlrev_b32 v{c+2}, 16, v{vTmp+2*jj+1}\nv_and_b32 v{c+3}, 0xffff0000, v{vTmp+2*jj+1}")
        started.add((3, jj))
    spin(lambda: flag_eval(F2, B_H), lambda: e(h_poll()), tk)
    g.stamp("h_flag_ok")
    LAST = P["last"]
    order = [(sg, i) for sg in range(12 - LAST) for i in range(4)] + [(sg, i) for i in range(4) for sg in range(12 - LAST, 12)]
    HA = 10
    for o in order[:HA]:
        h_load(*o)
    for k, o in enumerate(order):
        if k + HA < len(order):
            h_load(*order[k + HA])
        mm(*o)
        kk = k - 4 * (12 - LAST)
        if kk >= LAST:
            i, p = divmod(kk, LAST)
            jjs = [jj for jj in range(5) if jj * LAST // 5 == p]
            for jj in jjs:
                c = ACC2 + 20 * (i - 1) + 4 * jj
                g.ds(f"ds_write_b128 v{vRW+i-1}, v[{c}:{c+3}] offset:{jj*1024}")
        if k in (0, 15, 31):
            g.stamp(f"g2_{k}")
    g.stamp("gemm2_done")
    g.wait(lg=g.lg)
    e("s_barrier")
    g.stamp("red_barrier")
    R = 96
    rt = {}
    for jj in range(5):
        for i in range(3):
            k = 5 * i + jj
            rt[k] = g.ds(f"ds_read_b128 v[{R+4*k}:{R+4*k+3}], v{vRW+3} offset:{k*1024}")
    for jj in range(5):
        c = C3 + 4 * jj
        for i in range(3):
            k = 5 * i + jj
            g.wait(lg=rt[k])
            e(f"v_pk_add_f32 v[{c}:{c+1}], v[{c}:{c+1}], v[{R+4*k}:{R+4*k+1}]\nv_pk_add_f32 v[{c+2}:{c+3}], v[{c+2}:{c+3}], v[{R+4*k+2}:{R+4*k+3}]")
        e(f"v_cvt_pk_bf16_f32 v{c}, v{c}, v{c+1}\nv_cvt_pk_bf16_f32 v{c+1}, v{c+2}, v{c+3}")
        g.vmem(f"buffer_store_dwordx2 v[{c}:{c+1}], v{vRW+4}, s[{SO}:{SO+3}], s{sHB} offen offset:{jj*32}")
    if diag:
        g.stamp("out_issued")
        e("s_waitcnt vmcnt(0)")
        g.stamp("end")
        e(f"s_lshl_b32 s{sT}, s2, 2\ns_add_u32 s{sT}, s{sT}, s{sW}\ns_lshl_b32 s{sT}, s{sT}, 8\ns_add_u32 s{sT}, s{sT}, {T0}")
        e(f"v_lshlrev_b32 v{vF}, 2, v{vL}")
        e(f"buffer_store_dword v0, v{vF}, s[{SWS}:{SWS+3}], s{sT} offen")
        open("stampnames.txt", "w").write("\n".join(g.stampnames))
    if hd:
        e("s_waitcnt vmcnt(0)\ns_barrier\ns_memtime s[98:99]\ns_memrealtime s[100:101]\ns_waitcnt lgkmcnt(0)")
        e(f"s_cmp_lg_u32 s{sW}, 0\ns_cbranch_scc1 L_end\ns_sleep 127\ns_sleep 127")
        e(f"s_lshl_b32 s{sT}, s100, 2\ns_sub_u32 s{sT}, s{sT}, s{sN}\ns_and_b32 s{sT}, s{sT}, 0x7fffffff\ns_lshr_b32 s{sT}, s{sT}, 2\nv_mov_b32 v20, s{sT}")
        e(f"s_sub_u32 s{sT}, s98, s94\nv_mov_b32 v21, s{sT}")
        e(f"s_add_u32 s{sT}, s96, 4096\ns_lshl_b32 s{sT}, s{sT}, 2\ns_sub_u32 s{sT}, s{sT}, s{sN}\ns_and_b32 s{sT}, s{sT}, 0x7fffffff\ns_lshr_b32 s{sT}, s{sT}, 2\nv_mov_b32 v22, s{sT}")
        e(f"s_sub_u32 s{sT}, 8192, s{sT}\nv_mov_b32 v23, s{sT}")
        e("v_mov_b32 v25, 0\ns_mov_b64 exec, 1")
        for i in range(4):
            e(f"buffer_atomic_umax v{20+i}, v25, s[{SD}:{SD+3}], 0 offen offset:{4+4*i} sc1")
    if P.get("fixt"):
        g.label("L_hold")
        e(f"s_memrealtime s[100:101]\ns_waitcnt lgkmcnt(0)\ns_lshl_b32 s{sT}, s100, 2\ns_sub_u32 s{sT}, s{sT}, s{sN}\ns_and_b32 s{sT}, s{sT}, 0x7fffffff\ns_lshr_b32 s{sT}, s{sT}, 2")
        e(f"s_cmp_lt_u32 s{sT}, {P['fixt']}\ns_cbranch_scc1 L_hold")
    g.label("L_end")
    e("s_endpgm")
    out += g.L
    if P.get("cpf"):
        out += [".fill 2048, 4, 0xbf800000"]
    out += ['.section .rodata,"a"', ".p2align 6", f".amdhsa_kernel {NAME}",
            "  .amdhsa_next_free_vgpr 512", "  .amdhsa_next_free_sgpr 102", "  .amdhsa_accum_offset 256",
            "  .amdhsa_group_segment_fixed_size 0", "  .amdhsa_kernarg_size 64", "  .amdhsa_user_sgpr_count 2",
            "  .amdhsa_user_sgpr_kernarg_segment_ptr 1", "  .amdhsa_system_sgpr_workgroup_id_x 1", ".end_amdhsa_kernel"]
    return "\n".join(out) + "\n"


if __name__ == "__main__":
    diag = "--diag" in sys.argv
    path = [a for a in sys.argv[1:] if not a.startswith("--")]
    path = path[0] if path else "standalone__mixer_channel_mlp__prompt.s"
    P = {}
    for a in sys.argv[1:]:
        if a.startswith("--p:"):
            k, v = a[4:].split("=")
            P[k] = int(v)
    open(path, "w").write(generate(diag, "--hd" in sys.argv, P))
    print("wrote", path)
```

```python
import sys
from gen import Gen, NAME

W0 = 0
H0 = 4 << 20
F0 = 12 << 20
T0 = 17 << 20
WS_BYTES = 18 << 20

LDS_W1 = 0
LDS_X = 122880
LDS_STAGE = 155648
LDS_BYTES = 163840

SPIN_MAX = 20000
B_P, B_H = 1, 2

DEF = dict(xnt=1, last=3, gl=6, hpoll=10, stat_at=1, rep_at=1, pub_at=3, wp_at=5, wc_at=6, ha=10, wahead=3, wl_per=(3, 6, 6))


def generate(diag=False, hd=False, P=None):
    P = dict(DEF, **(P or {}))
    g = Gen(diag)
    e = g.e
    SX, SW1, SB1, SW2, SB2, SO, SD, SWS = 4, 8, 12, 16, 20, 24, 28, 32
    sW = 36
    sMB, sFT, sQ, sMT, sNT, sJ, sRC = 37, 38, 39, 40, 41, 42, 43
    sXB = 44
    sN = 45
    sT, sT2, sT3 = 46, 47, 48
    sCNT = 49
    sEX = 50
    sMI = 52
    sLX, sONE, sHB, sIDX = 56, 57, 58, 59
    sC1, sCB, sS2, sWA, sWB, sWC, sWD = 60, 61, 62, 63, 64, 65, 66
    sLW = 67
    sU1, sU2 = 92, 93
    sPW = 68
    sPH = 80
    vL, vL16 = 1, 2
    vW1 = 3
    vFl, vPo, vPh, vHs = 6, 7, 8, 9
    vC2, vC1, vOne = 10, 12, 14
    vF = 16
    vTmp = 20
    vT = 40
    vXr = 140
    ACC = 48
    ACS = 96
    XFR = 144
    FB = 176
    vXd = 224
    vOnes = 228
    vGs = 232
    vB1 = 233
    vR2 = 236
    LNR = 238

    hdr = open("standalone__mixer_channel_mlp__prompt.s.ref").read().split("\n")
    head = []
    for ln in hdr:
        if ln.startswith("; @launch"):
            head.append(f"; @launch grid=(256,1,1) block=(256,1,1) lds={LDS_BYTES}")
            break
        head.append(ln)
    out = head + ['.amdgcn_target "amdgcn-amd-amdhsa--gfx950"', ".text", f".globl {NAME}", ".p2align 8",
                  f".type {NAME},@function", f"{NAME}:"]
    NT = " nt" if P["xnt"] else ""

    e("s_cmp_ge_u32 s2, 256\ns_cbranch_scc1 L_end")
    e("s_load_dwordx16 s[76:91], s[0:1], 0")
    e(f"v_and_b32 v{vL}, 63, v0\nv_lshrrev_b32 v{vTmp}, 6, v0\nv_lshlrev_b32 v{vL16}, 4, v{vL}")
    e(f"v_readfirstlane_b32 s{sW}, v{vTmp}")
    e(f"s_and_b32 s{sT}, s2, 7\ns_lshr_b32 s{sIDX}, s2, 3")
    e(f"s_lshr_b32 s{sT2}, s{sT}, 1\ns_and_b32 s{sT3}, s{sT}, 1")
    e(f"s_lshr_b32 s{sRC}, s{sIDX}, 3\ns_lshl_b32 s{sMB}, s{sT2}, 2\ns_add_u32 s{sMB}, s{sMB}, s{sRC}")
    e(f"s_and_b32 s{sT}, s{sIDX}, 7\ns_lshl_b32 s{sFT}, s{sT3}, 3\ns_add_u32 s{sFT}, s{sFT}, s{sT}")
    e(f"s_mul_i32 s{sRC}, s{sRC}, 3\ns_add_u32 s{sRC}, s{sRC}, s{sT}\ns_cmp_ge_u32 s{sRC}, 10\ns_cselect_b32 s{sT}, 10, 0\ns_sub_u32 s{sRC}, s{sRC}, s{sT}")
    e(f"s_lshl_b32 s{sQ}, s{sMB}, 4\ns_add_u32 s{sQ}, s{sQ}, s{sFT}")
    e(f"s_lshr_b32 s{sJ}, s{sIDX}, 2\ns_lshl_b32 s{sMT}, s{sT2}, 3\ns_add_u32 s{sMT}, s{sMT}, s{sJ}")
    e(f"s_and_b32 s{sNT}, s{sIDX}, 3\ns_lshl_b32 s{sT3}, s{sT3}, 2\ns_add_u32 s{sNT}, s{sNT}, s{sT3}")
    vR, vI = vTmp + 2, vTmp + 3
    e(f"v_lshrrev_b32 v{vR}, 5, v{vL}\nv_and_b32 v{vI}, 31, v{vL}")
    e(f"v_lshrrev_b32 v{vTmp+6}, 4, v{vL}\nv_bfe_u32 v{vTmp+7}, v{vL}, 3, 1\nv_and_b32 v{vTmp+8}, 7, v{vL}")
    for d in range(2):
        e(f"v_add_u32 v{vTmp+9}, {4*d}, v{vTmp+6}")
        e(f"v_xor_b32 v{vTmp+10}, v{vTmp+8}, v{vTmp+9}\nv_lshl_add_u32 v{vTmp+9}, v{vTmp+7}, 3, v{vTmp+9}")
        e(f"v_mul_u32_u24 v{vTmp+9}, 1280, v{vTmp+9}\nv_lshl_add_u32 v{vXd+d}, v{vTmp+10}, 4, v{vTmp+9}\nv_add_u32 v{vXd+d+2}, {16*1280}, v{vXd+d}")
    e(f"s_lshl_b32 s{sXB}, s{sMB}, 2\ns_add_u32 s{sXB}, s{sXB}, s{sW}\ns_mul_i32 s{sXB}, s{sXB}, {32*1280}")
    e(f"s_lshl_b32 s{sLX}, s{sW}, 13\ns_add_u32 s{sLX}, s{sLX}, {LDS_X}\ns_mul_i32 s{sLW}, s{sW}, 3072")
    for i in range(3):
        e(f"v_add_u32 v{vTmp+6}, {64*i}, v{vL}\nv_mul_u32_u24 v{vTmp+7}, 5462, v{vTmp+6}\nv_lshrrev_b32 v{vTmp+7}, 16, v{vTmp+7}")
        e(f"v_mul_u32_u24 v{vTmp+8}, 12, v{vTmp+7}\nv_sub_u32 v{vTmp+8}, v{vTmp+6}, v{vTmp+8}")
        e(f"v_mul_u32_u24 v{vTmp+7}, 3072, v{vTmp+7}\nv_lshl_add_u32 v{vW1+i}, v{vTmp+8}, 4, v{vTmp+7}")
    e(f"s_mul_i32 s{sC1}, s{sFT}, 192\ns_mul_i32 s{sT}, s{sW}, {16*3072}\ns_add_u32 s{sU1}, s{sC1}, s{sT}")
    e("s_waitcnt lgkmcnt(0)")

    def srd(r, k, nbytes):
        e(f"s_mov_b32 s{r}, s{76+2*k}\ns_mov_b32 s{r+1}, s{77+2*k}\ns_mov_b32 s{r+2}, {nbytes}\ns_mov_b32 s{r+3}, 0x00020000")

    srd(SX, 0, 2621440)
    srd(SW1, 1, 1966080)
    e(f"s_mov_b32 s{sCB}, s{sU1}")
    sW1o = sONE + 0
    sW1o = 93
    e(f"s_mov_b32 s{sW1o}, s{sU1}")
    g.stamp("start") if False else None

    xtk, wtk = {}, {}
    sRX = sS2 + 0
    sRX = 91

    def x_dmas(c):
        def xd(d):
            def f():
                if d == 0:
                    e(f"s_lshl_b32 s{sWC}, s{sRXc}, 7\ns_add_u32 s{sWC}, s{sWC}, s{sXB}")
                    e(f"s_add_u32 s{sRXc}, s{sRXc}, 1\ns_cmp_eq_u32 s{sRXc}, 10\ns_cselect_b32 s{sRXc}, 0, s{sRXc}")
                e(f"s_add_u32 m0, s{sLX}, {(c % 2)*4096 + d*1024}\ns_nop 0")
                xtk[c] = g.vmem(f"buffer_load_dwordx4 v{vXd+d}, s[{SX}:{SX+3}], s{sWC} offen lds")
            return f
        return [xd(d) for d in range(4)]

    def w_dmas(c):
        def wd(i):
            def f():
                if i == 0:
                    e(f"s_mul_i32 s{sWD}, s{sRC}, {64*3072}\ns_add_u32 s{sWD}, s{sWD}, s{sW1o}")
                    e(f"s_add_u32 s{sRC}, s{sRC}, 1\ns_cmp_eq_u32 s{sRC}, 10\ns_cselect_b32 s{sRC}, 0, s{sRC}")
                e(f"s_add_u32 m0, s{sLW}, {LDS_W1 + c*12288 + i*1024}\ns_nop 0")
                wtk[c] = g.vmem(f"buffer_load_dwordx4 v{vW1+i}, s[{SW1}:{SW1+3}], s{sWD} offen lds")
            return f
        return [wd(i) for i in range(3)]

    sRXc = 96
    e(f"s_mov_b32 s{sRXc}, s{sRC}")
    for f in x_dmas(0) + w_dmas(0):
        f()
    vXo = vTmp + 1
    e(f"v_mul_u32_u24 v{vXo}, 1280, v{vR}\nv_lshl_add_u32 v{vXo}, v{vI}, 3, v{vXo}")
    e(f"s_lshl_b32 s{sT}, s{sQ}, 3\ns_lshl_b32 s{sT2}, s{sW}, 1\ns_add_u32 s{sT}, s{sT}, s{sT2}\ns_mul_i32 s{sT}, s{sT}, 1280")
    XR = LNR
    xtok = [g.vmem(f"buffer_load_dwordx2 v[{XR+2*j}:{XR+2*j+1}], v{vXo}, s[{SX}:{SX+3}], s{sT} offen offset:{256*j}") for j in range(5)]
    srd(SW2, 3, 1966080)
    vW2o = vTmp + 12
    e(f"s_mul_i32 s{sCB}, s{sQ}, 1366\ns_lshr_b32 s{sCB}, s{sCB}, 16\ns_mul_i32 s{sT3}, s{sCB}, 48\ns_sub_u32 s{sS2}, s{sQ}, s{sT3}")
    e(f"v_lshrrev_b32 v{vW2o}, 4, v{vL}\nv_mul_u32_u24 v{vW2o}, 1280, v{vW2o}\nv_and_b32 v{vTmp+6}, 15, v{vL}\nv_lshl_add_u32 v{vW2o}, v{vTmp+6}, 4, v{vW2o}")
    e(f"s_lshl_b32 s{sWA}, s{sS2}, 5\ns_lshl_b32 s{sT2}, s{sW}, 3\ns_add_u32 s{sWA}, s{sWA}, s{sT2}\ns_mul_i32 s{sWA}, s{sWA}, 1280\ns_lshl_b32 s{sT2}, s{sCB}, 8\ns_add_u32 s{sWA}, s{sWA}, s{sT2}")
    e(f"s_lshl_b32 s{sT2}, s{sW}, 11\ns_add_u32 m0, s{sT2}, {LDS_STAGE}\nv_mov_b32 v{vTmp+5}, 0")
    g.vmem(f"buffer_load_dwordx4 v{vW2o}, s[{SW2}:{SW2+3}], s{sWA} offen{NT} lds")
    e(f"s_add_u32 m0, m0, 1024\ns_add_u32 s{sWA}, s{sWA}, {4*1280}")
    w2ptok = g.vmem(f"buffer_load_dwordx4 v{vW2o}, s[{SW2}:{SW2+3}], s{sWA} offen{NT} lds")
    srd(SD, 6, 256)
    lab = g.newlab("nononce")
    e(f"s_or_b32 s{sT}, s2, s{sW}\ns_cmp_lg_u32 s{sT}, 0\ns_cbranch_scc1 {lab}")
    e(f"s_memrealtime s[{sEX}:{sEX+1}]\ns_waitcnt lgkmcnt(0)")
    e(f"s_lshl_b32 s{sT}, s{sEX}, 2\ns_or_b32 s{sT}, s{sT}, 0x80000000\nv_mov_b32 v{vTmp+4}, s{sT}")
    e(f"s_mov_b64 exec, 1")
    e(f"buffer_store_dword v{vTmp+4}, v{vTmp+5}, s[{SD}:{SD+3}], 0 offen sc1")
    e(f"s_mov_b64 exec, -1")
    g.label(lab)
    for r, k, n in ((SB1, 2, 3072), (SB2, 4, 1280), (SO, 5, 2621440), (SWS, 7, WS_BYTES)):
        srd(r, k, n)
    g.stamp("start")

    vP = vTmp + 13
    e(f"s_lshl_b32 s{sT}, s{sQ}, 7\ns_lshl_b32 s{sT2}, s{sW}, 2\ns_add_u32 s{sT}, s{sT}, s{sT2}\ns_add_u32 s{sT}, s{sT}, {F0+64}\nv_mov_b32 v{vFl}, s{sT}")
    e(f"v_lshlrev_b32 v{vP}, 12, v{vR}\nv_bfe_u32 v{vTmp+6}, v{vL}, 4, 1\nv_lshl_add_u32 v{vP}, v{vTmp+6}, 10, v{vP}")
    e(f"v_bfe_u32 v{vTmp+6}, v{vL}, 2, 2\nv_lshl_add_u32 v{vP}, v{vTmp+6}, 8, v{vP}\nv_and_b32 v{vTmp+6}, 3, v{vL}\nv_lshl_add_u32 v{vP}, v{vTmp+6}, 3, v{vP}")
    e(f"s_lshl_b32 s{sT}, s{sW}, 6\ns_add_u32 s{sT}, s{sT}, {LDS_STAGE}\nv_add_u32 v{vP}, s{sT}, v{vP}")
    for ee, dst in ((0, sWA), (1, sWB)):
        e(f"s_lshl_b32 s{sT}, s{sCB}, 3\ns_lshl_b32 s{sT2}, s{sW}, 1\ns_add_u32 s{sT}, s{sT}, s{sT2}")
        if ee:
            e(f"s_add_u32 s{sT}, s{sT}, 1")
        e(f"s_mul_i32 s{sT2}, s{sT}, 13108\ns_lshr_b32 s{sT2}, s{sT2}, 16\ns_mul_i32 s{sT3}, s{sT2}, 5\ns_sub_u32 s{sT}, s{sT}, s{sT3}")
        e(f"s_mul_i32 s{sT2}, s{sT2}, 48\ns_add_u32 s{sT2}, s{sT2}, s{sS2}\ns_mul_i32 s{sT2}, s{sT2}, 5\ns_add_u32 s{sT}, s{sT}, s{sT2}")
        e(f"s_lshl_b32 s{dst}, s{sT}, 10")
    e(f"s_cmp_ge_u32 s{sQ}, 240\ns_cselect_b32 s{sWA}, {WS_BYTES}, s{sWA}\ns_cselect_b32 s{sWB}, {WS_BYTES}, s{sWB}")
    e(f"v_lshlrev_b32 v{vTmp+7}, 3, v{vR}\nv_bfe_u32 v{vTmp+6}, v{vL}, 2, 2\nv_add_u32 v{vTmp+7}, v{vTmp+7}, v{vTmp+6}")
    e(f"v_mul_u32_u24 v{vTmp+7}, 192, v{vTmp+7}\nv_bfe_u32 v{vTmp+6}, v{vL}, 4, 1\nv_lshl_add_u32 v{vTmp+7}, v{vTmp+6}, 5, v{vTmp+7}")
    e(f"v_and_b32 v{vTmp+6}, 3, v{vL}\nv_lshl_add_u32 v{vTmp+7}, v{vTmp+6}, 3, v{vTmp+7}")
    e(f"v_and_b32 v{vTmp+8}, 7, v{vL}\nv_bfe_u32 v{vTmp+6}, v{vL}, 4, 1\nv_lshl_add_u32 v{vTmp+9}, v{vTmp+6}, 3, v{vTmp+8}\nv_lshlrev_b32 v{vTmp+9}, 8, v{vTmp+9}")
    e(f"v_bfe_u32 v{vTmp+6}, v{vL}, 3, 1\nv_lshl_add_u32 v{vTmp+9}, v{vTmp+6}, 7, v{vTmp+9}\nv_add_u32 v{vTmp+9}, s{sLX}, v{vTmp+9}")
    for j in range(4):
        e(f"s_add_u32 s{sT}, s{sW}, {j}\ns_and_b32 s{sT}, s{sT}, 3\ns_mul_i32 s{sT2}, s{sT}, 3072\nv_add_u32 v{vT+j}, s{sT2}, v{vTmp+7}\nv_add_u32 v{vT+4+j}, {5*12288}, v{vT+j}")
        e(f"s_lshl_b32 s{sT}, s{sT}, 1\nv_add_u32 v{vTmp+6}, s{sT}, v{vR}\nv_xor_b32 v{vTmp+6}, v{vTmp+6}, v{vTmp+8}\nv_lshl_add_u32 v{vXr+j}, v{vTmp+6}, 4, v{vTmp+9}")
    for k in range(4):
        e(f"v_mov_b32 v{vOnes+k}, 0x3f803f80")
    e(f"s_mov_b32 s{sONE}, 0x3f803f80")
    for f in x_dmas(1) + w_dmas(1):
        f()
    g.stamp("c1_issued")
    setup = []
    S = setup.append
    S(f"v_cmp_le_u32 vcc, 12, v{vL}\ns_mul_i32 s{sT}, s{sNT}, 5\ns_nop 0\nv_cndmask_b32 v{vTmp+7}, 0, 1, vcc")
    S(f"v_lshl_add_u32 v{vTmp+6}, v{vTmp+7}, 2, s{sT}\nv_lshrrev_b32 v{vTmp+6}, 3, v{vTmp+6}\nv_mul_u32_u24 v{vTmp+6}, 48, v{vTmp+6}")
    S(f"v_mul_u32_u24 v{vTmp+7}, 12, v{vTmp+7}\nv_sub_u32 v{vTmp+7}, v{vL}, v{vTmp+7}\ns_mul_i32 s{sT}, s{sW}, 12\nv_add3_u32 v{vTmp+6}, v{vTmp+6}, v{vTmp+7}, s{sT}")
    S(f"v_cmp_gt_u32 vcc, 24, v{vL}\nv_readfirstlane_b32 s{sT}, v{vTmp+6}\ns_nop 1\nv_mov_b32 v{vTmp+7}, s{sT}\nv_cndmask_b32 v{vPo}, v{vTmp+7}, v{vTmp+6}, vcc")
    S(f"v_lshlrev_b32 v{vPo}, 7, v{vPo}\nv_add_u32 v{vPo}, {F0+64}, v{vPo}")
    S(f"s_lshl_b32 s{sT}, s{sMB}, 4\ns_lshl_b32 s{sT2}, s{sW}, 2\ns_add_u32 s{sT}, s{sT}, s{sT2}\nv_and_b32 v{vTmp+7}, 3, v{vL}\nv_add_u32 v{vTmp+7}, s{sT}, v{vTmp+7}")
    S(f"s_and_b32 s{sT2}, s{sMT}, 1\ns_lshl_b32 s{sT2}, s{sT2}, 3\ns_add_u32 s{sT2}, s{sT2}, {F0+64}\nv_lshlrev_b32 v{vPh}, 7, v{vTmp+7}\nv_add_u32 v{vPh}, s{sT2}, v{vPh}")
    S(f"v_lshrrev_b32 v{vTmp+7}, 3, v{vI}\nv_add_u32 v{vTmp+7}, s{sT}, v{vTmp+7}\nv_lshlrev_b32 v{vGs}, 7, v{vTmp+7}\nv_bfe_u32 v{vTmp+7}, v{vI}, 1, 2\nv_lshl_add_u32 v{vGs}, v{vTmp+7}, 4, v{vGs}\nv_add_u32 v{vGs}, {F0}, v{vGs}")
    S(f"s_mul_i32 s{sCNT}, s{sJ}, 3\ns_lshr_b32 s{sCNT}, s{sCNT}, 1\ns_mul_i32 s{sU1}, s{sW}, 12\ns_mul_i32 s{sEX}, s{sNT}, 48\ns_add_u32 s{sEX}, s{sEX}, s{sU1}")
    for sg in range(12):
        S(f"s_add_u32 s{sT}, s{sCNT}, s{sU1}\ns_lshl_b32 s{sPH+sg}, s{sT}, 10\ns_add_u32 s{sT}, s{sCNT}, s{sEX}\ns_mul_i32 s{sPW+sg}, s{sT}, 5120\n"
          f"s_add_u32 s{sCNT}, s{sCNT}, 1\ns_cmp_eq_u32 s{sCNT}, 12\ns_cselect_b32 s{sCNT}, 0, s{sCNT}")
    for i in range(4):
        S(f"s_add_u32 s{sT}, s{sW}, {i+1}\ns_and_b32 s{sT}, s{sT}, 3\ns_lshl_b32 s{sT2}, s{sMT}, 2\ns_add_u32 s{sT}, s{sT}, s{sT2}\n"
          f"s_mul_i32 s{sT}, s{sT}, 49152\ns_add_u32 s{sMI+i}, s{sT}, {H0}")
    S(f"v_bfe_u32 v{vTmp+6}, v{vL}, 4, 1\nv_mul_u32_u24 v{vHs}, 49152, v{vTmp+6}\nv_lshl_add_u32 v{vHs}, v{vR}, 8, v{vHs}")
    S(f"v_and_b32 v{vTmp+6}, 15, v{vL}\nv_lshl_add_u32 v{vHs}, v{vTmp+6}, 4, v{vHs}")
    S(f"s_lshl_b32 s{sT}, s{sMB}, 3\ns_lshl_b32 s{sT2}, s{sW}, 1\ns_add_u32 s{sT}, s{sT}, s{sT2}\ns_mul_i32 s{sT}, s{sT}, 49152\n"
      f"s_mul_i32 s{sT2}, s{sFT}, 3072\ns_add_u32 s{sT}, s{sT}, s{sT2}\ns_add_u32 s{sHB}, s{sT}, {H0}")
    S(f"v_mov_b32 v{vC2}, 0xbdd2d3e8\nv_mov_b32 v{vC2+1}, 0xbdd2d3e8\nv_mov_b32 v{vC1}, 0xc0135761\nv_mov_b32 v{vC1+1}, 0xc0135761\nv_mov_b32 v{vOne}, 1.0\nv_mov_b32 v{vOne+1}, 1.0")
    while setup:
        e(setup.pop(0))
    g.stamp("setup_done")

    def spin(check_emit, load_emit, tok):
        g.wait(vm=tok)
        ok = g.newlab("ok")
        retry = g.newlab("retry")
        check_emit()
        e(f"s_cbranch_scc1 {ok}")
        e(f"s_mov_b32 s{sCNT}, {SPIN_MAX}")
        g.label(retry)
        e(f"s_sub_u32 s{sCNT}, s{sCNT}, 1\ns_cmp_eq_u32 s{sCNT}, 0\ns_cbranch_scc1 {ok}")
        load_emit()
        e("s_waitcnt vmcnt(0)")
        check_emit()
        e(f"s_cbranch_scc0 {retry}")
        g.label(ok)

    def publish(bits, tok):
        e(f"s_or_b32 s{sT}, s{sN}, {bits}\nv_mov_b32 v{vTmp+18}, s{sT}")
        g.wait(vm=tok)
        e(f"s_mov_b64 exec, 1")
        g.vmem(f"buffer_store_dword v{vTmp+18}, v{vFl}, s[{SWS}:{SWS+3}], 0 offen sc1")
        e(f"s_mov_b64 exec, -1")

    def flag_eval(regs, bit):
        m = 0xfffffffc | bit
        e(f"s_or_b32 s{sT}, s{sN}, {bit}")
        for r in regs:
            e(f"v_xor_b32 v{r}, s{sT}, v{r}")
        for r in regs[1:]:
            e(f"v_or_b32 v{regs[0]}, v{regs[0]}, v{r}")
        e(f"v_and_b32 v{regs[0]}, {m:#x}, v{regs[0]}\nv_cmp_eq_u32 vcc, 0, v{regs[0]}\ns_nop 1\ns_cmp_eq_u64 vcc, -1")

    st = {}

    XF = 96
    A0, A1, A2, A3 = 116, 117, 118, 119
    S0 = 120
    vMS = LNR + 10
    def do_stats():
        e(f"v_mov_b32 v{A0}, 0\nv_mov_b32 v{A1}, 0")
        g.wait(vm=xtok[-1])
        g.stamp("x_arrived")
        st["ntok"] = g.vmem(f"buffer_load_dword v{vF}, v{vTmp+5}, s[{SD}:{SD+3}], 0 offen sc1")
        for j in range(10):
            a = A0 if j % 2 == 0 else A1
            e(f"v_dot2_f32_bf16 v{a}, v{XR+j}, s{sONE}, v{a}")
        for j in range(3):
            e(f"v_lshlrev_b32 v{XF+2*j}, 16, v{XR+j}\nv_and_b32 v{XF+2*j+1}, 0xffff0000, v{XR+j}")
        e(f"v_add_f32 v{A0}, v{A0}, v{A1}")
        fill = [f"v_lshlrev_b32 v{XF+2*j}, 16, v{XR+j}\nv_and_b32 v{XF+2*j+1}, 0xffff0000, v{XR+j}" for j in range(3, 10)]

        def reduce32(a, t, fill):
            def pad():
                e(fill.pop(0) if fill else "s_nop 1")
            for r in (8, 4, 2, 1):
                pad()
                e(f"v_add_f32_dpp v{a}, v{a}, v{a} row_ror:{r} row_mask:0xf bank_mask:0xf")
            e(f"v_mov_b32 v{t}, v{a}")
            pad()
            e(f"v_permlane16_swap_b32 v{a}, v{t}")
            pad()
            e(f"v_add_f32 v{a}, v{a}, v{t}")

        reduce32(A0, A1, fill)
        for f in fill:
            e(f)
        e(f"v_mul_f32 v{A0}, 0x3acccccd, v{A0}")
        e(f"v_cvt_pk_bf16_f32 v{A2}, v{A0}, v{A0}\nv_lshlrev_b32 v{A2}, 16, v{A2}")
        e(f"v_sub_f32 v{A0}, v{A0}, v{A2}\nv_mov_b32 v{A3}, v{A2}")
        for j in range(10):
            e(f"v_pk_add_f32 v[{XF+2*j}:{XF+2*j+1}], v[{XF+2*j}:{XF+2*j+1}], v[{A2}:{A3}] neg_lo:[0,1] neg_hi:[0,1]")
        for j in range(10):
            s = S0 + 2 * (j % 2)
            if j < 2:
                e(f"v_pk_mul_f32 v[{s}:{s+1}], v[{XF+2*j}:{XF+2*j+1}], v[{XF+2*j}:{XF+2*j+1}]")
            else:
                e(f"v_pk_fma_f32 v[{s}:{s+1}], v[{XF+2*j}:{XF+2*j+1}], v[{XF+2*j}:{XF+2*j+1}], v[{s}:{s+1}]")
        e(f"v_pk_add_f32 v[{S0}:{S0+1}], v[{S0}:{S0+1}], v[{S0+2}:{S0+3}]\nv_add_f32 v{S0}, v{S0}, v{S0+1}")
        reduce32(S0, S0 + 1, [])
        e(f"v_mul_f32 v{S0}, 0x3acccccd, v{S0}")
        e(f"v_fma_f32 v{S0}, -v{A0}, v{A0}, v{S0}\nv_max_f32 v{S0}, 0, v{S0}")
        e(f"v_cvt_pk_bf16_f32 v{S0}, v{S0}, v{S0}\nv_lshlrev_b32 v{S0}, 16, v{S0}")
        e(f"v_add_f32 v{S0}, 0x3727c5ac, v{S0}")
        e(f"v_cvt_pk_bf16_f32 v{S0}, v{S0}, v{S0}\nv_lshlrev_b32 v{S0}, 16, v{S0}")
        e(f"v_sqrt_f32 v{S0}, v{S0}\ns_nop 0")
        e(f"v_cvt_pk_bf16_f32 v{vMS}, v{A2}, v{S0}")
        g.stamp("stats_done")


    def send_stats():
        spin(lambda: e(f"v_readfirstlane_b32 s{sN}, v{vF}\ns_nop 3\ns_cmp_lg_u32 s{sN}, 0"),
             lambda: e(f"buffer_load_dword v{vF}, v{vTmp+5}, s[{SD}:{SD+3}], 0 offen sc1"), st["ntok"])
        G4 = LNR + 12
        e(f"v_readlane_b32 s{sT}, v{vMS}, 32\nv_mov_b32 v{G4}, s{sN}\nv_mov_b32 v{G4+1}, v{vMS}\nv_mov_b32 v{G4+3}, s{sN}\nv_mov_b32 v{G4+2}, s{sT}")
        e(f"s_mul_i32 s{sT}, s{sW}, 12\ns_sub_u32 s{sT}, s{sT}, 64\nv_add_u32 v{G4+4}, s{sT}, v{vFl}")
        e(f"s_mov_b64 exec, 1")
        g.vmem(f"buffer_store_dwordx4 v[{G4}:{G4+3}], v{G4+4}, s[{SWS}:{SWS+3}], 0 offen sc1")
        e(f"s_mov_b64 exec, -1")

    def repack():
        PF = LNR
        for ee in range(2):
            for h in range(2):
                t = g.ds(f"ds_read_b64_tr_b16 v[{PF+4*ee+2*h}:{PF+4*ee+2*h+1}], v{vP} offset:{ee*32 + h*2048}")
        g.wait(lg=t)
        g.vmem(f"buffer_store_dwordx4 v[{PF}:{PF+3}], v{vL16}, s[{SWS}:{SWS+3}], s{sWA} offen sc1")
        st["ps"] = g.vmem(f"buffer_store_dwordx4 v[{PF+4}:{PF+7}], v{vL16}, s[{SWS}:{SWS+3}], s{sWB} offen sc1")

    def w_poll():
        return f"buffer_load_dwordx4 v[{vF}:{vF+3}], v{vPo}, s[{SWS}:{SWS+3}], 0 offen sc1"

    F4 = [vF, vF + 1, vF + 2, vF + 3]
    worder = [(sg, jj) for sg in range(12) for jj in range(5)]
    wreg = {k: 4 * i for i, k in enumerate(worder)}
    wtok = {}

    def w_load(sg, jj):
        r = wreg[(sg, jj)]
        if jj < 4:
            so, imm = f"s{sPW+sg}", jj * 1024
        else:
            e(f"s_add_u32 s{sT}, s{sPW+sg}, 4096")
            so, imm = f"s{sT}", 0
        wtok[(sg, jj)] = g.vmem(f"buffer_load_dwordx4 a[{r}:{r+3}], v{vL16}, s[{SWS}:{SWS+3}], {so} offen offset:{imm} sc1")

    stream = [(lambda k=k: w_load(*k)) for k in worder]

    def next_load():
        if stream:
            stream.pop(0)()
            return True
        return False

    GS = LNR + 12

    def g_load():
        return f"buffer_load_dwordx4 v[{GS}:{GS+3}], v{vGs}, s[{SWS}:{SWS+3}], 0 offen sc1"

    def g_check():
        e(f"v_xor_b32 v{vF}, s{sN}, v{GS}\nv_xor_b32 v{vF+1}, s{sN}, v{GS+3}\nv_or_b32 v{vF}, v{vF}, v{vF+1}\nv_cmp_eq_u32 vcc, 0, v{vF}\ns_nop 1\ns_cmp_eq_u64 vcc, -1")

    NBUF = 12
    fr = {}
    nfr = [0]
    xt = {}
    ACSA = 192

    def tr_issue(n, t):
        c, j = divmod(n, 4)
        r = FB + 4 * (nfr[0] % NBUF)
        nfr[0] += 1
        va = vT + j + (4 if c >= 5 else 0)
        for h in range(2):
            tok = g.ds(f"ds_read_b64_tr_b16 v[{r+2*h}:{r+2*h+1}], v{va} offset:{(c % 5)*12288 + t*64 + h*768}")
        fr[(n, t)] = (r, tok)

    def open_chunk(c):
        g.wait(vm=max(xtk[c], wtk[c], w2ptok if c == P["rep_at"] else 0))
        e("s_barrier")
        xb = XFR + 16 * (c % 2)
        for j in range(4):
            xt[(c, j)] = g.ds(f"ds_read_b128 v[{xb+4*j}:{xb+4*j+3}], v{vXr+j} offset:{(c % 2)*4096}")

    WA = P["wahead"]
    for cc in range(2, WA):
        for f in w_dmas(cc):
            f()
    q = []
    open_chunk(0)
    for n in (0, 1):
        for t in range(3):
            tr_issue(n, t)
    q += [lambda: g.wait(lg=xt[(0, 3)])] + x_dmas(2)

    def b1l():
        e(f"v_lshlrev_b32 v{vTmp+8}, 1, v{vI}")
        for t in range(3):
            st["b1"] = g.vmem(f"buffer_load_ushort v{vB1+t}, v{vTmp+8}, s[{SB1}:{SB1+3}], s{sC1} offen offset:{t*64}")
        st["gs"] = g.vmem(g_load())

    for n in range(40):
        c, j = divmod(n, 4)
        xb = XFR + 16 * (c % 2)
        if j == 2 and c + 1 < 10:
            if c == 0:
                while q:
                    q.pop(0)()
                do_stats()
            open_chunk(c + 1)
            if c + 1 == P["rep_at"]:
                q.append(repack)
            if c + 3 < 10:
                q += [lambda cc=c: g.wait(lg=xt[(cc + 1, 3)])] + x_dmas(c + 3)
        if j == 0:
            if c + WA < 10:
                q += w_dmas(c + WA)
            if c == P["stat_at"]:
                q.append(send_stats)
            if c == P["pub_at"]:
                q.append(lambda: publish(B_P, st["ps"]))
            if c == P["wp_at"]:
                q.append(lambda: st.__setitem__("wp", g.vmem(w_poll())))
            if c == P["wc_at"]:
                q.append(lambda: spin(lambda: flag_eval(F4, B_P), lambda: e(w_poll()), st["wp"]))
            if c == 7:
                q.append(b1l)
            if c > P["wc_at"]:
                q += [next_load] * P["wl_per"][c - P["wc_at"] - 1]
        for t in range(3):
            r, tok = fr[(n, t)]
            g.wait(lg=max(tok, xt[(c, j)]))
            cin = f"v[{ACC+16*t}:{ACC+16*t+15}]" if n else "0"
            if j == 0:
                cs = f"a[{ACSA+16*t}:{ACSA+16*t+15}]" if c else "0"
                e(f"v_mfma_f32_32x32x16_bf16 a[{ACSA+16*t}:{ACSA+16*t+15}], v[{vOnes}:{vOnes+3}], v[{r}:{r+3}], {cs}")
            e(f"v_mfma_f32_32x32x16_bf16 v[{ACC+16*t}:{ACC+16*t+15}], v[{r}:{r+3}], v[{xb+4*j}:{xb+4*j+3}], {cin}")
            if n + 2 < 40:
                tr_issue(n + 2, t)
            if q:
                q.pop(0)()
            if n == 37 and t == 2:
                g.nop(6)
                e(f"s_lshl_b32 s{sT}, s{sW}, 2\ns_add_u32 s{sT}, s{sT}, {LDS_STAGE}\nv_lshl_add_u32 v{vTmp+8}, v{vI}, 4, s{sT}")
                for tt in range(3):
                    sw = g.ds(f"ds_write_b32 v{vTmp+8}, a{ACSA+16*tt} offset:{tt*512}")
            if n == 38 and t == 2:
                g.wait(lg=sw)
                e("s_barrier")
                e(f"v_lshlrev_b32 v{vTmp+8}, 4, v{vI}\nv_add_u32 v{vTmp+8}, {LDS_STAGE}, v{vTmp+8}")
                SR = ACS + 4
                for tt in range(3):
                    sr = g.ds(f"ds_read_b128 v[{SR+4*tt}:{SR+4*tt+3}], v{vTmp+8} offset:{tt*512}")
        if j == 3 and c in (0, 1, 3, 5, 7):
            g.stamp(f"chunk{c}")
    while q:
        q.pop(0)()
    g.stamp("gemm1_main")
    spin(g_check, lambda: e(g_load()), st["gs"])
    AU = ACS + 16
    BU = ACS + 28
    TS = ACS + 32
    e(f"v_and_b32 v{TS}, 1, v{vL}\nv_cmp_eq_u32 vcc, 1, v{TS}\ns_nop 1\nv_cndmask_b32 v{TS}, v{GS+1}, v{GS+2}, vcc")
    e(f"v_xor_b32 v{TS}, 0x8000, v{TS}")
    e(f"v_and_b32 v{vR2}, 0xffff0000, v{TS}\nv_rcp_f32 v{vR2}, v{vR2}")
    e(f"v_and_b32 v{TS+1}, 0xffff, v{TS}\nv_lshl_or_b32 v{TS+1}, v{TS+1}, 16, v{TS+1}")
    e(f"v_cmp_gt_u32 vcc, 32, v{vL}\nv_mov_b32 v{vR2+1}, v{vR2}\nv_mov_b32 v{BU+2}, 0\nv_mov_b32 v{BU+3}, 0")
    e(f"v_cndmask_b32 v{BU}, 0, v{TS+1}, vcc\nv_cndmask_b32 v{BU+1}, 0, v{TS}, vcc")
    g.wait(vm=st["b1"], lg=sr)
    for tt in range(3):
        s0 = SR + 4 * tt
        a = AU + 4 * tt
        e(f"v_add_f32 v{s0}, v{s0}, v{s0+1}\nv_add_f32 v{s0+2}, v{s0+2}, v{s0+3}\nv_add_f32 v{s0}, v{s0}, v{s0+2}")
        e(f"v_and_b32 v{s0+1}, 0xffff0000, v{s0}\nv_sub_f32 v{s0}, v{s0}, v{s0+1}")
        e(f"v_and_b32 v{s0+2}, 0xffff0000, v{s0}\nv_sub_f32 v{s0}, v{s0}, v{s0+2}")
        e(f"v_lshrrev_b32 v{s0+1}, 16, v{s0+1}\nv_or_b32 v{a}, v{s0+1}, v{s0+2}")
        e(f"v_lshrrev_b32 v{s0}, 16, v{s0}\nv_lshl_or_b32 v{a+1}, v{vB1+tt}, 16, v{s0}")
        e(f"v_mov_b32 v{a+2}, 0\nv_mov_b32 v{a+3}, 0")
    e("s_nop 1")
    for tt in range(3):
        a = AU + 4 * tt
        e(f"v_mfma_f32_32x32x16_bf16 v[{ACC+16*tt}:{ACC+16*tt+15}], v[{a}:{a+3}], v[{BU}:{BU+3}], v[{ACC+16*tt}:{ACC+16*tt+15}]")
    g.stamp("gemm1_done")

    G = vTmp
    next_load()
    next_load()
    g.nop(8)
    for t in range(3):
        base = ACC + 16 * t
        for half in range(2):
            prs = range(4 * half, 4 * half + 4)
            Z = {pr: base + 2 * pr for pr in prs}
            Tq = {pr: G + 2 * (pr % 8) for pr in prs}
            for pr in prs:
                e(f"v_pk_mul_f32 v[{Z[pr]}:{Z[pr]+1}], v[{Z[pr]}:{Z[pr]+1}], v[{vR2}:{vR2+1}]")
            for pr in prs:
                e(f"v_pk_mul_f32 v[{Tq[pr]}:{Tq[pr]+1}], v[{Z[pr]}:{Z[pr]+1}], v[{Z[pr]}:{Z[pr]+1}]")
            for pr in prs:
                e(f"v_pk_fma_f32 v[{Tq[pr]}:{Tq[pr]+1}], v[{Tq[pr]}:{Tq[pr]+1}], v[{vC2}:{vC2+1}], v[{vC1}:{vC1+1}]")
            for pr in prs:
                e(f"v_pk_mul_f32 v[{Tq[pr]}:{Tq[pr]+1}], v[{Tq[pr]}:{Tq[pr]+1}], v[{Z[pr]}:{Z[pr]+1}]")
            next_load()
            for pr in prs:
                e(f"v_exp_f32 v{Tq[pr]}, v{Tq[pr]}\nv_exp_f32 v{Tq[pr]+1}, v{Tq[pr]+1}")
            for pr in prs:
                e(f"v_pk_add_f32 v[{Tq[pr]}:{Tq[pr]+1}], v[{Tq[pr]}:{Tq[pr]+1}], v[{vOne}:{vOne+1}]")
            next_load()
            for pr in prs:
                e(f"v_rcp_f32 v{Tq[pr]}, v{Tq[pr]}\nv_rcp_f32 v{Tq[pr]+1}, v{Tq[pr]+1}")
            for pr in prs:
                e(f"v_pk_mul_f32 v[{Tq[pr]}:{Tq[pr]+1}], v[{Tq[pr]}:{Tq[pr]+1}], v[{Z[pr]}:{Z[pr]+1}]")
            for pr in prs:
                e(f"v_cvt_pk_bf16_f32 v{base+8*half+(pr%4)}, v{Tq[pr]}, v{Tq[pr]+1}")
            o = base + 8 * half
            htok = g.vmem(f"buffer_store_dwordx4 v[{o}:{o+3}], v{vHs}, s[{SWS}:{SWS+3}], s{sHB} offen offset:{t*1024+half*512} sc1")
            next_load()
        g.stamp(f"gelu{t}")
    for _ in range(P["gl"]):
        next_load()
    publish(B_P | B_H, htok)
    g.stamp("h_published")
    e("s_barrier")

    ACC2 = 176
    HB = [96 + 4 * i for i in range(20)] + [44 + 4 * i for i in range(13)]
    hb_next = [0]
    htoks = {}

    def h_poll():
        return f"buffer_load_dwordx2 v[{vF}:{vF+1}], v{vPh}, s[{SWS}:{SWS+3}], 0 offen sc1"

    def h_load(sg, i):
        r = HB[hb_next[0] % len(HB)]
        hb_next[0] += 1
        e(f"s_add_u32 s{sT}, s{sPH+sg}, s{sMI+i}")
        htoks[(sg, i)] = (r, g.vmem(f"buffer_load_dwordx4 v[{r}:{r+3}], v{vL16}, s[{SWS}:{SWS+3}], s{sT} offen sc1"))

    started = set()

    def mm(sg, i):
        r, tok = htoks[(sg, i)]
        for jj in range(5):
            g.wait(vm=max(tok, wtok[(sg, jj)]))
            c = ACC2 + 20 * i + 4 * jj
            w = wreg[(sg, jj)]
            cin = f"v[{c}:{c+3}]" if (i, jj) in started else "0"
            started.add((i, jj))
            e(f"v_mfma_f32_16x16x32_bf16 v[{c}:{c+3}], a[{w}:{w+3}], v[{r}:{r+3}], {cin}")

    vB2o = vTmp + 10
    e(f"v_lshrrev_b32 v{vB2o}, 4, v{vL}\nv_lshlrev_b32 v{vB2o}, 3, v{vB2o}\ns_mul_i32 s{sT2}, s{sNT}, 160")
    for jj in range(5):
        b2tok = g.vmem(f"buffer_load_dwordx2 v[{vTmp+2*jj}:{vTmp+2*jj+1}], v{vB2o}, s[{SB2}:{SB2+3}], s{sT2} offen offset:{jj*32}")
    F2 = [vF, vF + 1]
    C3 = ACC2 + 60
    vRW = vTmp + 12
    for i in range(3):
        e(f"s_add_u32 s{sT}, s{sW}, {i+1}\ns_and_b32 s{sT}, s{sT}, 3\ns_mul_i32 s{sT}, s{sT}, 15360\ns_add_u32 s{sT}, s{sT}, {i*5120}\nv_add_u32 v{vRW+i}, s{sT}, v{vL16}")
    e(f"s_mul_i32 s{sT}, s{sW}, 15360\nv_add_u32 v{vRW+3}, s{sT}, v{vL16}")
    e(f"v_and_b32 v{vRW+4}, 15, v{vL}\nv_mul_u32_u24 v{vRW+4}, 1280, v{vRW+4}\nv_add_u32 v{vRW+4}, v{vRW+4}, v{vB2o}")
    e(f"s_lshl_b32 s{sT}, s{sMT}, 6\ns_lshl_b32 s{sT3}, s{sW}, 4\ns_add_u32 s{sT}, s{sT}, s{sT3}\ns_mul_i32 s{sT}, s{sT}, 1280\ns_add_u32 s{sHB}, s{sT}, s{sT2}")
    nleft = len(stream)
    for _ in range(max(0, nleft - P['hpoll'])):
        next_load()
    tk = g.vmem(h_poll())
    while next_load():
        pass
    g.stamp("w2_all_issued")
    g.wait(vm=b2tok)
    for jj in range(5):
        c = C3 + 4 * jj
        e(f"v_lshlrev_b32 v{c}, 16, v{vTmp+2*jj}\nv_and_b32 v{c+1}, 0xffff0000, v{vTmp+2*jj}\nv_lshlrev_b32 v{c+2}, 16, v{vTmp+2*jj+1}\nv_and_b32 v{c+3}, 0xffff0000, v{vTmp+2*jj+1}")
        started.add((3, jj))
    spin(lambda: flag_eval(F2, B_H), lambda: e(h_poll()), tk)
    g.stamp("h_flag_ok")
    LAST = P["last"]
    order = [(sg, i) for sg in range(12 - LAST) for i in range(4)] + [(sg, i) for i in range(4) for sg in range(12 - LAST, 12)]
    HA = P["ha"]
    for o in order[:HA]:
        h_load(*o)
    for k, o in enumerate(order):
        if k + HA < len(order):
            h_load(*order[k + HA])
        mm(*o)
        kk = k - 4 * (12 - LAST)
        if kk >= LAST:
            i, p = divmod(kk, LAST)
            jjs = [jj for jj in range(5) if jj * LAST // 5 == p]
            for jj in jjs:
                c = ACC2 + 20 * (i - 1) + 4 * jj
                g.ds(f"ds_write_b128 v{vRW+i-1}, v[{c}:{c+3}] offset:{jj*1024}")
        if k in (0, 15, 31):
            g.stamp(f"g2_{k}")
    g.stamp("gemm2_done")
    g.wait(lg=g.lg)
    e("s_barrier")
    g.stamp("red_barrier")
    R = 96
    rt = {}
    for jj in range(5):
        for i in range(3):
            k = 5 * i + jj
            rt[k] = g.ds(f"ds_read_b128 v[{R+4*k}:{R+4*k+3}], v{vRW+3} offset:{k*1024}")
    for jj in range(5):
        c = C3 + 4 * jj
        for i in range(3):
            k = 5 * i + jj
            g.wait(lg=rt[k])
            e(f"v_pk_add_f32 v[{c}:{c+1}], v[{c}:{c+1}], v[{R+4*k}:{R+4*k+1}]\nv_pk_add_f32 v[{c+2}:{c+3}], v[{c+2}:{c+3}], v[{R+4*k+2}:{R+4*k+3}]")
        e(f"v_cvt_pk_bf16_f32 v{c}, v{c}, v{c+1}\nv_cvt_pk_bf16_f32 v{c+1}, v{c+2}, v{c+3}")
        g.vmem(f"buffer_store_dwordx2 v[{c}:{c+1}], v{vRW+4}, s[{SO}:{SO+3}], s{sHB} offen offset:{jj*32}")
    if diag:
        g.stamp("out_issued")
        e("s_waitcnt vmcnt(0)")
        g.stamp("end")
        e(f"s_lshl_b32 s{sT}, s2, 2\ns_add_u32 s{sT}, s{sT}, s{sW}\ns_lshl_b32 s{sT}, s{sT}, 8\ns_add_u32 s{sT}, s{sT}, {T0}")
        e(f"v_lshlrev_b32 v{vF}, 2, v{vL}")
        e(f"buffer_store_dword v0, v{vF}, s[{SWS}:{SWS+3}], s{sT} offen")
        open("stampnames.txt", "w").write("\n".join(g.stampnames))
    g.label("L_end")
    e("s_endpgm")
    out += g.L
    out += ['.section .rodata,"a"', ".p2align 6", f".amdhsa_kernel {NAME}",
            "  .amdhsa_next_free_vgpr 512", "  .amdhsa_next_free_sgpr 102", "  .amdhsa_accum_offset 256",
            "  .amdhsa_group_segment_fixed_size 0", "  .amdhsa_kernarg_size 64", "  .amdhsa_user_sgpr_count 2",
            "  .amdhsa_user_sgpr_kernarg_segment_ptr 1", "  .amdhsa_system_sgpr_workgroup_id_x 1", ".end_amdhsa_kernel"]
    return "\n".join(out) + "\n"


if __name__ == "__main__":
    diag = "--diag" in sys.argv
    path = [a for a in sys.argv[1:] if not a.startswith("--")]
    path = path[0] if path else "standalone__mixer_channel_mlp__prompt.s"
    P = {}
    for a in sys.argv[1:]:
        if a.startswith("--p:"):
            k, v = a[4:].split("=")
            P[k] = int(v)
    open(path, "w").write(generate(diag, "--hd" in sys.argv, P))
    print("wrote", path)
```

```python
import sys

NAME = "standalone__mixer_channel_mlp__prompt_kernel"

Y0 = 0
W0 = 4 << 20
H0 = 8 << 20
F0 = 16 << 20
T0 = 17 << 20
WS_BYTES = 18 << 20

LDS_W1 = 0
LDS_STAGE = 122880
LDS_BYTES = 122880 + 8192

SPIN_MAX = 20000


LITE = ["--lite" in sys.argv]


class Gen:
    def __init__(self, diag=False):
        self.L = []
        self.vm = 0
        self.vm_done = 0
        self.lg = 0
        self.lg_done = 0
        self.diag = diag
        self.nlab = 0
        self.nstamp = 0
        self.stampnames = []

    def e(self, s):
        for ln in s.split("\n"):
            self.L.append("    " + ln.strip())

    def label(self, name):
        self.L.append(name + ":")

    def newlab(self, p):
        self.nlab += 1
        return f"L_{p}{self.nlab}"

    def vmem(self, s):
        self.e(s)
        self.vm += 1
        return self.vm

    def ds(self, s):
        self.e(s)
        self.lg += 1
        return self.lg

    def wait(self, vm=None, lg=None):
        parts = []
        if vm is not None and vm > self.vm_done:
            n = self.vm - vm
            if n <= 63:
                parts.append(f"vmcnt({n})")
            else:
                parts.append("vmcnt(63)")
            self.vm_done = vm
        if lg is not None and lg > self.lg_done:
            n = self.lg - lg
            parts.append(f"lgkmcnt({min(n, 15)})")
            self.lg_done = lg
        if parts:
            self.e("s_waitcnt " + " ".join(parts))

    def nop(self, n):
        while n > 0:
            k = min(n, 16)
            self.e(f"s_nop {k-1}")
            n -= k

    def stamp(self, name=""):
        if not self.diag or LITE[0]:
            return
        i = self.nstamp
        self.nstamp += 1
        self.stampnames.append(name)
        assert i < 64
        self.e(f"s_memrealtime s[94:95]\ns_waitcnt lgkmcnt(0)\nv_writelane_b32 v0, s94, {i}")
        self.lg_done = self.lg


def generate(diag=False, hd=False):
    g = Gen(diag)
    e = g.e
    SX, SW1, SB1, SW2, SB2, SO, SD, SWS = 4, 8, 12, 16, 20, 24, 28, 32
    sW = 36
    sMB, sFT, sQ, sMT, sNT, sPERM, sJY, sR1 = 37, 38, 39, 40, 41, 42, 43, 44
    sN = 45
    sT, sT2, sT3 = 46, 47, 48
    sCNT = 49
    sEX = 50
    sYB = 52
    sPW = 60
    sPH = 64
    sMI = 68
    sK1 = 72
    sONE = 73
    sHB = 74
    sIDX = 75
    vL = 1
    vL16 = 2
    vW1 = 3
    vFl = 6
    vPo = 7
    vPh = 8
    vHs = 9
    vC2 = 10
    vC1 = 12
    vF = 16
    vTmp = 20
    vT = 32
    ACC = 48
    Y = 96

    hdr = open("standalone__mixer_channel_mlp__prompt.s.ref").read().split("\n")
    head = []
    for ln in hdr:
        if ln.startswith("; @launch"):
            head.append(f"; @launch grid=(256,1,1) block=(256,1,1) lds={LDS_BYTES}")
            break
        head.append(ln)
    out = head + ['.amdgcn_target "amdgcn-amd-amdhsa--gfx950"', ".text", f".globl {NAME}", ".p2align 8",
                  f".type {NAME},@function", f"{NAME}:"]

    e("s_cmp_ge_u32 s2, 256\ns_cbranch_scc1 L_end")
    e("s_load_dwordx16 s[76:91], s[0:1], 0")
    if hd:
        e("s_memrealtime s[94:95]\ns_memrealtime s[96:97]")
    e(f"v_and_b32 v{vL}, 63, v0\nv_lshrrev_b32 v{vTmp}, 6, v0\nv_lshlrev_b32 v{vL16}, 4, v{vL}")
    e(f"v_readfirstlane_b32 s{sW}, v{vTmp}")
    e(f"s_and_b32 s{sT}, s2, 7\ns_lshr_b32 s{sIDX}, s2, 3")
    e(f"s_lshr_b32 s{sT2}, s{sT}, 1\ns_and_b32 s{sT3}, s{sT}, 1")
    e(f"s_lshr_b32 s{sR1}, s{sIDX}, 3\ns_lshl_b32 s{sMB}, s{sT2}, 2\ns_add_u32 s{sMB}, s{sMB}, s{sR1}")
    e(f"s_and_b32 s{sJY}, s{sIDX}, 7\ns_lshl_b32 s{sFT}, s{sT3}, 3\ns_add_u32 s{sFT}, s{sFT}, s{sJY}")
    e(f"s_lshl_b32 s{sQ}, s{sMB}, 4\ns_add_u32 s{sQ}, s{sQ}, s{sFT}")
    e(f"s_lshr_b32 s{sPERM}, s{sIDX}, 2\ns_lshl_b32 s{sMT}, s{sT2}, 3\ns_add_u32 s{sMT}, s{sMT}, s{sPERM}")
    e(f"s_and_b32 s{sNT}, s{sIDX}, 3\ns_lshl_b32 s{sT3}, s{sT3}, 2\ns_add_u32 s{sNT}, s{sNT}, s{sT3}")
    e(f"s_xor_b32 s{sPERM}, s{sPERM}, s{sIDX}\ns_and_b32 s{sPERM}, s{sPERM}, 3")
    e(f"s_mov_b32 s{sONE}, 0x3f803f80")
    e(f"v_lshrrev_b32 v{vTmp+2}, 5, v{vL}\nv_and_b32 v{vTmp+3}, 31, v{vL}")
    e(f"v_mul_u32_u24 v{vTmp+1}, 1280, v{vTmp+2}\nv_lshl_add_u32 v{vTmp+1}, v{vTmp+3}, 3, v{vTmp+1}")
    e(f"s_lshl_b32 s{sT}, s{sQ}, 3\ns_lshl_b32 s{sT2}, s{sW}, 1\ns_add_u32 s{sT}, s{sT}, s{sT2}\ns_mul_i32 s{sT}, s{sT}, 1280")
    e("s_waitcnt lgkmcnt(0)")
    for srd, k, nbytes in ((SX, 0, 2621440), (SW1, 1, 1966080), (SB1, 2, 3072), (SW2, 3, 1966080), (SB2, 4, 1280),
                           (SO, 5, 2621440), (SD, 6, 256), (SWS, 7, WS_BYTES)):
        e(f"s_mov_b32 s{srd}, s{76+2*k}\ns_mov_b32 s{srd+1}, s{77+2*k}\ns_mov_b32 s{srd+2}, {nbytes}\ns_mov_b32 s{srd+3}, 0x00020000")
        if k == 0:
            XR = Y
            xtok = []
            for j in range(5):
                xtok.append(g.vmem(f"buffer_load_dwordx2 v[{XR+2*j}:{XR+2*j+1}], v{vTmp+1}, s[{SX}:{SX+3}], s{sT} offen offset:{256*j}"))
    g.stamp("start")
    lab = g.newlab("nononce")
    e(f"s_or_b32 s{sT}, s2, s{sW}\ns_cmp_lg_u32 s{sT}, 0\ns_cbranch_scc1 {lab}")
    e(f"s_memrealtime s[{sT2}:{sT2+1}]" if sT2 % 2 == 0 else f"s_memrealtime s[{sEX}:{sEX+1}]")
    e("s_waitcnt lgkmcnt(0)")
    e(f"s_lshl_b32 s{sT}, s{sEX}, 4\ns_or_b32 s{sT}, s{sT}, 0x80000000\nv_mov_b32 v{vTmp+4}, s{sT}\nv_mov_b32 v{vTmp+5}, 0")
    e(f"s_mov_b64 s[{sEX}:{sEX+1}], exec\ns_mov_b64 exec, 1")
    e(f"buffer_store_dword v{vTmp+4}, v{vTmp+5}, s[{SD}:{SD+3}], 0 offen sc1")
    e(f"s_mov_b64 exec, s[{sEX}:{sEX+1}]")
    g.label(lab)
    e(f"s_mul_i32 s{sT2}, s{sQ}, 1366\ns_lshr_b32 s{sT2}, s{sT2}, 16")
    e(f"s_mul_i32 s{sT3}, s{sT2}, 48\ns_sub_u32 s{sT3}, s{sQ}, s{sT3}")
    e(f"s_mov_b32 s{sPW}, s{sT2}\ns_mov_b32 s{sPW+1}, s{sT3}")
    e(f"s_mul_i32 s{sT}, s{sT3}, {32*1280}\ns_lshl_b32 s{sT2}, s{sT2}, 8\ns_add_u32 s{sT}, s{sT}, s{sT2}\ns_lshl_b32 s{sT2}, s{sW}, 6\ns_add_u32 s{sT}, s{sT}, s{sT2}")
    e(f"v_lshrrev_b32 v{vTmp+4}, 2, v{vL}\nv_mul_u32_u24 v{vTmp+4}, 1280, v{vTmp+4}\nv_and_b32 v{vTmp+5}, 3, v{vL}\nv_lshl_add_u32 v{vTmp+4}, v{vTmp+5}, 4, v{vTmp+4}")
    e(f"s_lshl_b32 s{sT2}, s{sW}, 11\ns_add_u32 s{sPW+2}, s{sT2}, {LDS_STAGE}")
    e(f"s_mov_b32 m0, s{sPW+2}\ns_nop 0")
    g.vmem(f"buffer_load_dwordx4 v{vTmp+4}, s[{SW2}:{SW2+3}], s{sT} offen lds")
    e(f"s_add_u32 m0, s{sPW+2}, 1024\ns_add_u32 s{sT}, s{sT}, {16*1280}")
    w2ptok = g.vmem(f"buffer_load_dwordx4 v{vTmp+4}, s[{SW2}:{SW2+3}], s{sT} offen lds")
    e(f"v_mov_b32 v{vTmp+5}, 0")
    ntok = g.vmem(f"buffer_load_dword v{vF}, v{vTmp+5}, s[{SD}:{SD+3}], 0 offen sc1")

    for i in range(3):
        e(f"v_add_u32 v{vTmp+6}, {64*i}, v{vL}\nv_mul_u32_u24 v{vTmp+7}, 5462, v{vTmp+6}\nv_lshrrev_b32 v{vTmp+7}, 16, v{vTmp+7}")
        e(f"v_mul_u32_u24 v{vTmp+8}, 12, v{vTmp+7}\nv_sub_u32 v{vTmp+8}, v{vTmp+6}, v{vTmp+8}")
        e(f"v_mul_u32_u24 v{vTmp+7}, 3072, v{vTmp+7}\nv_lshl_add_u32 v{vW1+i}, v{vTmp+8}, 4, v{vTmp+7}")
    e(f"s_mul_i32 s{sK1}, s{sR1}, 10\ns_add_u32 s{sK1}, s{sK1}, s{sW}")
    e(f"s_mul_i32 s{sHB}, s{sFT}, 192")
    w1tok = []

    def w1_step():
        e(f"s_mul_i32 s{sT}, s{sK1}, {16*3072}\ns_add_u32 s{sT}, s{sT}, s{sHB}\ns_mul_i32 s{sT2}, s{sK1}, 3072")
        for i in range(3):
            e(f"s_add_u32 m0, s{sT2}, {LDS_W1 + i*1024}")
            if i == 0:
                e(f"s_add_u32 s{sK1}, s{sK1}, 4\ns_cmp_ge_u32 s{sK1}, 40\ns_cselect_b32 s{sT3}, 40, 0\ns_sub_u32 s{sK1}, s{sK1}, s{sT3}")
            else:
                e("s_nop 0")
            w1tok.append(g.vmem(f"buffer_load_dwordx4 v{vW1+i}, s[{SW1}:{SW1+3}], s{sT} offen lds"))

    g.stamp("pre_w1")
    w1_step()
    w1_step()
    g.stamp("w1_2steps")

    vYs = vTmp + 9
    e(f"v_lshrrev_b32 v{vTmp+6}, 2, v{vTmp+3}\nv_lshlrev_b32 v{vYs}, 10, v{vTmp+6}")
    e(f"v_bfe_u32 v{vTmp+6}, v{vTmp+3}, 1, 1\nv_lshl_add_u32 v{vYs}, v{vTmp+6}, 9, v{vYs}")
    e(f"v_lshl_add_u32 v{vYs}, v{vTmp+2}, 4, v{vYs}")
    e(f"v_and_b32 v{vTmp+6}, 1, v{vTmp+3}\nv_lshl_add_u32 v{vYs}, v{vTmp+6}, 3, v{vYs}")
    e(f"s_lshr_b32 s{sT}, s{sQ}, 2\ns_mul_i32 s{sT}, s{sT}, 40960\ns_and_b32 s{sT2}, s{sQ}, 3\ns_lshl_b32 s{sT2}, s{sT2}, 7\ns_add_u32 s{sT}, s{sT}, s{sT2}")
    e(f"s_lshl_b32 s{sT2}, s{sW}, 5\ns_add_u32 s{sYB}, s{sT}, s{sT2}")
    if Y0:
        e(f"s_add_u32 s{sYB}, s{sYB}, {Y0}")
    e(f"s_lshl_b32 s{sT}, s{sQ}, 7\ns_lshl_b32 s{sT2}, s{sW}, 2\ns_add_u32 s{sT}, s{sT}, s{sT2}\ns_add_u32 s{sT}, s{sT}, {F0}\nv_mov_b32 v{vFl}, s{sT}")
    vP = vTmp + 10
    e(f"v_lshrrev_b32 v{vTmp+6}, 5, v{vL}\nv_lshlrev_b32 v{vP}, 10, v{vTmp+6}")
    e(f"v_bfe_u32 v{vTmp+6}, v{vL}, 4, 1\nv_lshl_add_u32 v{vP}, v{vTmp+6}, 8, v{vP}")
    e(f"v_bfe_u32 v{vTmp+6}, v{vL}, 2, 2\nv_lshl_add_u32 v{vP}, v{vTmp+6}, 6, v{vP}")
    e(f"v_and_b32 v{vTmp+6}, 3, v{vL}\nv_lshl_add_u32 v{vP}, v{vTmp+6}, 3, v{vP}\nv_add_u32 v{vP}, s{sPW+2}, v{vP}")

    XF = Y + 12
    A0, A1, A2, A3 = Y + 32, Y + 33, Y + 34, Y + 35
    g.wait(vm=xtok[-1])
    g.stamp("x_arrived")
    e(f"v_mov_b32 v{A0}, 0\nv_mov_b32 v{A1}, 0")
    for j in range(10):
        a = A0 if j % 2 == 0 else A1
        e(f"v_dot2_f32_bf16 v{a}, v{XR+j}, s{sONE}, v{a}")
    for j in range(10):
        e(f"v_lshlrev_b32 v{XF+2*j}, 16, v{XR+j}\nv_and_b32 v{XF+2*j+1}, 0xffff0000, v{XR+j}")
    e(f"v_add_f32 v{A0}, v{A0}, v{A1}")

    def reduce32(a, t):
        for r in (8, 4, 2, 1):
            e("s_nop 1")
            e(f"v_add_f32_dpp v{a}, v{a}, v{a} row_ror:{r} row_mask:0xf bank_mask:0xf")
        e(f"v_mov_b32 v{t}, v{a}\ns_nop 1\nv_permlane16_swap_b32 v{a}, v{t}\ns_nop 1\nv_add_f32 v{a}, v{a}, v{t}")

    reduce32(A0, A1)
    e(f"v_mul_f32 v{A0}, 0x3acccccd, v{A0}")
    e(f"v_cvt_pk_bf16_f32 v{A2}, v{A0}, v{A0}\nv_lshlrev_b32 v{A2}, 16, v{A2}")
    e(f"v_sub_f32 v{A0}, v{A0}, v{A2}")
    e(f"v_mov_b32 v{A3}, v{A2}")
    S0 = Y + 36
    for j in range(10):
        e(f"v_pk_add_f32 v[{XF+2*j}:{XF+2*j+1}], v[{XF+2*j}:{XF+2*j+1}], v[{A2}:{A3}] neg_lo:[0,1] neg_hi:[0,1]")
    for j in range(10):
        s = S0 + 2 * (j % 2)
        if j < 2:
            e(f"v_pk_mul_f32 v[{s}:{s+1}], v[{XF+2*j}:{XF+2*j+1}], v[{XF+2*j}:{XF+2*j+1}]")
        else:
            e(f"v_pk_fma_f32 v[{s}:{s+1}], v[{XF+2*j}:{XF+2*j+1}], v[{XF+2*j}:{XF+2*j+1}], v[{s}:{s+1}]")
    e(f"v_pk_add_f32 v[{S0}:{S0+1}], v[{S0}:{S0+1}], v[{S0+2}:{S0+3}]\nv_add_f32 v{S0}, v{S0}, v{S0+1}")
    reduce32(S0, S0 + 1)
    e(f"v_mul_f32 v{S0}, 0x3acccccd, v{S0}")
    e(f"v_fma_f32 v{S0}, -v{A0}, v{A0}, v{S0}\nv_max_f32 v{S0}, 0, v{S0}")
    e(f"v_cvt_pk_bf16_f32 v{S0}, v{S0}, v{S0}\nv_lshlrev_b32 v{S0}, 16, v{S0}")
    e(f"v_add_f32 v{S0}, 0x3727c5ac, v{S0}")
    e(f"v_cvt_pk_bf16_f32 v{S0}, v{S0}, v{S0}\nv_lshlrev_b32 v{S0}, 16, v{S0}")
    e(f"v_sqrt_f32 v{S0}, v{S0}\ns_nop 0")
    e(f"v_cvt_pk_bf16_f32 v{S0}, v{S0}, v{S0}\nv_lshlrev_b32 v{S0}, 16, v{S0}")
    e(f"v_rcp_f32 v{S0}, v{S0}\ns_nop 0\nv_mov_b32 v{S0+1}, v{S0}")
    for j in range(10):
        e(f"v_pk_mul_f32 v[{XF+2*j}:{XF+2*j+1}], v[{XF+2*j}:{XF+2*j+1}], v[{S0}:{S0+1}]")
    for j in range(10):
        e(f"v_cvt_pk_bf16_f32 v{XR+j}, v{XF+2*j}, v{XF+2*j+1}")
    g.stamp("ln_done")
    for j in range(5):
        if j:
            e(f"s_add_u32 s{sYB}, s{sYB}, 8192")
        g.vmem(f"buffer_store_dwordx2 v[{XR+2*j}:{XR+2*j+1}], v{vYs}, s[{SWS}:{SWS+3}], s{sYB} offen sc1")
    PF = Y + 40
    g.stamp("y_stores_issued")
    g.wait(vm=w2ptok)
    for ee in range(2):
        for h in range(2):
            t = g.ds(f"ds_read_b64_tr_b16 v[{PF+4*ee+2*h}:{PF+4*ee+2*h+1}], v{vP} offset:{ee*32 + h*512}")
    lab = g.newlab("now2")
    for ee in range(2):
        e(f"s_lshl_b32 s{sT}, s{sPW}, 3\ns_lshl_b32 s{sT2}, s{sW}, 1\ns_add_u32 s{sT}, s{sT}, s{sT2}")
        if ee:
            e(f"s_add_u32 s{sT}, s{sT}, 1")
        e(f"s_mul_i32 s{sT2}, s{sT}, 13108\ns_lshr_b32 s{sT2}, s{sT2}, 16")
        e(f"s_mul_i32 s{sT3}, s{sT2}, 5\ns_sub_u32 s{sT}, s{sT}, s{sT3}")
        e(f"s_mul_i32 s{sT2}, s{sT2}, 48\ns_add_u32 s{sT2}, s{sT2}, s{sPW+1}\ns_mul_i32 s{sT2}, s{sT2}, 5\ns_add_u32 s{sT}, s{sT}, s{sT2}")
        e(f"s_lshl_b32 s{sT}, s{sT}, 10\ns_add_u32 s{sPH+ee}, s{sT}, {W0}")
    e(f"s_cmp_ge_u32 s{sQ}, 240\ns_cselect_b32 s{sPH}, {WS_BYTES}, s{sPH}\ns_cselect_b32 s{sPH+1}, {WS_BYTES}, s{sPH+1}")
    g.wait(lg=t)
    g.vmem(f"buffer_store_dwordx4 v[{PF}:{PF+3}], v{vL16}, s[{SWS}:{SWS+3}], s{sPH} offen sc1")
    preptok = g.vmem(f"buffer_store_dwordx4 v[{PF+4}:{PF+7}], v{vL16}, s[{SWS}:{SWS+3}], s{sPH+1} offen sc1")
    g.stamp("prep_stores_issued")
    for _ in range(3):
        w1_step()

    def spin(check_emit, load_emit, tok):
        g.wait(vm=tok)
        ok = g.newlab("ok")
        retry = g.newlab("retry")
        check_emit()
        e(f"s_cbranch_scc1 {ok}")
        e(f"s_mov_b32 s{sCNT}, {SPIN_MAX}")
        g.label(retry)
        e(f"s_sub_u32 s{sCNT}, s{sCNT}, 1\ns_cmp_eq_u32 s{sCNT}, 0\ns_cbranch_scc1 {ok}")
        e("s_sleep 1")
        load_emit()
        e("s_waitcnt vmcnt(0)")
        check_emit()
        e(f"s_cbranch_scc0 {retry}")
        g.label(ok)

    def nonce_load():
        e(f"buffer_load_dword v{vF}, v{vTmp+5}, s[{SD}:{SD+3}], 0 offen sc1")

    def nonce_check():
        e(f"v_readfirstlane_b32 s{sN}, v{vF}\ns_nop 3\ns_cmp_lg_u32 s{sN}, 0")

    g.stamp("w1_5steps")
    spin(nonce_check, nonce_load, ntok)
    g.stamp("nonce_ok")

    def publish(bits, tok):
        g.wait(vm=tok)
        e(f"s_or_b32 s{sT}, s{sN}, {bits}\nv_mov_b32 v{vTmp+11}, s{sT}")
        e(f"s_mov_b64 s[{sEX}:{sEX+1}], exec\ns_mov_b64 exec, 1")
        g.vmem(f"buffer_store_dword v{vTmp+11}, v{vFl}, s[{SWS}:{SWS+3}], 0 offen sc1")
        e(f"s_mov_b64 exec, s[{sEX}:{sEX+1}]")

    publish(1, preptok)
    g.stamp("prep_published")

    e(f"v_lshrrev_b32 v{vTmp+6}, 5, v{vL}\nv_lshlrev_b32 v{vTmp+6}, 3, v{vTmp+6}")
    BR = Y + 48
    for t in range(3):
        for q in range(4):
            k = t * 4 + q
            btok = g.vmem(f"buffer_load_dwordx2 v[{BR+2*k}:{BR+2*k+1}], v{vTmp+6}, s[{SB1}:{SB1+3}], s{sHB} offen offset:{t*64+q*16}")
    for _ in range(5):
        w1_step()
    assert len(w1tok) == 30
    g.stamp("w1_all_issued")

    e(f"v_cmp_le_u32 vcc, 12, v{vL}\ns_nop 1\nv_cndmask_b32 v{vTmp+7}, 0, 1, vcc")
    e(f"s_mul_i32 s{sT}, s{sNT}, 5\nv_lshl_add_u32 v{vTmp+8}, v{vTmp+7}, 2, s{sT}\nv_lshrrev_b32 v{vTmp+8}, 3, v{vTmp+8}")
    e(f"v_mul_u32_u24 v{vTmp+8}, 48, v{vTmp+8}")
    e(f"v_mul_u32_u24 v{vTmp+7}, 12, v{vTmp+7}\nv_sub_u32 v{vTmp+7}, v{vL}, v{vTmp+7}")
    e(f"s_mul_i32 s{sT}, s{sW}, 12\nv_add3_u32 v{vTmp+8}, v{vTmp+8}, v{vTmp+7}, s{sT}")
    e(f"s_lshl_b32 s{sT}, s{sMB}, 4\ns_lshl_b32 s{sT2}, s{sW}, 2\ns_add_u32 s{sT}, s{sT}, s{sT2}")
    e(f"v_and_b32 v{vTmp+7}, 3, v{vL}\nv_add_u32 v{vTmp+7}, s{sT}, v{vTmp+7}")
    e(f"v_cmp_le_u32 vcc, 24, v{vL}\ns_nop 1\nv_cndmask_b32 v{vPo}, v{vTmp+8}, v{vTmp+7}, vcc")
    e(f"v_lshlrev_b32 v{vPo}, 7, v{vPo}\nv_add_u32 v{vPo}, {F0}, v{vPo}")
    e(f"s_and_b32 s{sT}, s{sMT}, 1\ns_lshl_b32 s{sT}, s{sT}, 3\ns_add_u32 s{sT}, s{sT}, {F0}")
    e(f"v_lshlrev_b32 v{vPh}, 7, v{vTmp+7}\nv_add_u32 v{vPh}, s{sT}, v{vPh}")

    def prep_load():
        return f"buffer_load_dwordx4 v[{vF}:{vF+3}], v{vPo}, s[{SWS}:{SWS+3}], 0 offen sc1"

    def flag_eval(n, bit):
        m = 0xfffffff0 | bit
        for i in range(n):
            e(f"v_xor_b32 v{vF+i}, s{sN}, v{vF+i}\nv_and_b32 v{vF+i}, {m:#x}, v{vF+i}\nv_xor_b32 v{vF+i}, {bit}, v{vF+i}")
        for i in range(1, n):
            e(f"v_or_b32 v{vF}, v{vF}, v{vF+i}")
        e(f"v_cmp_eq_u32 vcc, 0, v{vF}")

    def y_check():
        flag_eval(4, 1)
        e(f"s_nop 1\ns_cmp_eq_u32 vcc_hi, -1")

    def w2_check():
        flag_eval(4, 1)
        e(f"s_nop 1\ns_cmp_eq_u64 vcc, -1")

    ptok = g.vmem(prep_load())

    e(f"v_lshrrev_b32 v{vTmp+7}, 5, v{vL}\nv_lshlrev_b32 v{vTmp+7}, 3, v{vTmp+7}\nv_bfe_u32 v{vTmp+8}, v{vL}, 2, 2\nv_add_u32 v{vTmp+7}, v{vTmp+7}, v{vTmp+8}")
    e(f"v_mul_u32_u24 v{vTmp+7}, 192, v{vTmp+7}\nv_bfe_u32 v{vTmp+8}, v{vL}, 4, 1\nv_lshl_add_u32 v{vTmp+7}, v{vTmp+8}, 5, v{vTmp+7}")
    e(f"v_and_b32 v{vTmp+8}, 3, v{vL}\nv_lshl_add_u32 v{vTmp+7}, v{vTmp+8}, 3, v{vTmp+7}")
    e(f"s_lshl_b32 s{sT2}, s{sMB}, 2\ns_add_u32 s{sT2}, s{sT2}, s{sW}\ns_mul_i32 s{sT2}, s{sT2}, 40960")
    if Y0:
        e(f"s_add_u32 s{sT2}, s{sT2}, {Y0}")
    for b in range(8):
        e(f"s_xor_b32 s{sT}, s{sJY}, {b}\ns_lshl_b32 s{sT3}, s{sT}, 10\ns_add_u32 s{sYB+b}, s{sT3}, s{sT2}")
        e(f"s_mul_i32 s{sT}, s{sT}, 3072\nv_add_u32 v{vT+b}, s{sT}, v{vTmp+7}\nv_add_u32 v{vT+8+b}, {3*24576}, v{vT+b}")
    for p in range(4):
        e(f"s_xor_b32 s{sT}, s{sPERM}, {p}\ns_mul_i32 s{sT}, s{sT}, 3\ns_mul_i32 s{sT2}, s{sW}, 12\ns_add_u32 s{sT}, s{sT}, s{sT2}")
        e(f"s_lshl_b32 s{sPH+p}, s{sT}, 10")
        e(f"s_mul_i32 s{sT2}, s{sNT}, 48\ns_add_u32 s{sT}, s{sT}, s{sT2}\ns_mul_i32 s{sT}, s{sT}, 5120\ns_add_u32 s{sPW+p}, s{sT}, {W0}")
    for i in range(4):
        e(f"s_add_u32 s{sT}, s{sW}, {i+1}\ns_and_b32 s{sT}, s{sT}, 3\ns_lshl_b32 s{sT2}, s{sMT}, 2\ns_add_u32 s{sT}, s{sT}, s{sT2}")
        e(f"s_mul_i32 s{sT}, s{sT}, 49152\ns_add_u32 s{sMI+i}, s{sT}, {H0}")
    e(f"v_bfe_u32 v{vTmp+8}, v{vL}, 4, 1\nv_mul_u32_u24 v{vHs}, 49152, v{vTmp+8}\nv_lshrrev_b32 v{vTmp+8}, 5, v{vL}\nv_lshl_add_u32 v{vHs}, v{vTmp+8}, 8, v{vHs}")
    e(f"v_and_b32 v{vTmp+8}, 15, v{vL}\nv_lshl_add_u32 v{vHs}, v{vTmp+8}, 4, v{vHs}")
    e(f"s_lshl_b32 s{sT}, s{sMB}, 3\ns_lshl_b32 s{sT2}, s{sW}, 1\ns_add_u32 s{sT}, s{sT}, s{sT2}\ns_mul_i32 s{sT}, s{sT}, 49152")
    e(f"s_mul_i32 s{sT2}, s{sFT}, 3072\ns_add_u32 s{sT}, s{sT}, s{sT2}\ns_add_u32 s{sHB}, s{sT}, {H0}")
    e(f"v_mov_b32 v{vC2}, 0xbdd2d3e8\nv_mov_b32 v{vC2+1}, 0xbdd2d3e8\nv_mov_b32 v{vC1}, 0xc0135761\nv_mov_b32 v{vC1+1}, 0xc0135761")
    e("v_mov_b32 v14, 1.0\nv_mov_b32 v15, 1.0")
    g.wait(vm=btok)
    for k in range(24):
        e(f"v_lshlrev_b32 v{ACC+2*k}, 16, v{BR+k}\nv_and_b32 v{ACC+2*k+1}, 0xffff0000, v{BR+k}")

    g.stamp("pre_ypoll")
    g.wait(vm=ptok)
    g.stamp("ypoll_returned")
    spin(y_check, lambda: e(prep_load()), ptok)
    g.stamp("y_flags_ok")

    yorder = [(a, 0) for a in range(5)] + [(a, b) for a in range(5) for b in range(1, 8)]
    ytok = {}

    def y_load(a, b):
        r = Y + 4 * (8 * a + b)
        if a == 0:
            so = f"s{sYB+b}"
        else:
            e(f"s_add_u32 s{sT}, s{sYB+b}, {a*8192}")
            so = f"s{sT}"
        ytok[(a, b)] = g.vmem(f"buffer_load_dwordx4 v[{r}:{r+3}], v{vL16}, s[{SWS}:{SWS+3}], {so} offen sc1")

    worder = [(t, 0, jj) for t in range(3) for jj in range(5)] + \
             [(t, p, jj) for t in range(3) for p in range(1, 4) for jj in range(5)]
    wreg = {k: 4 * i for i, k in enumerate(worder)}
    wtok = {}

    def w_load(t, p, jj):
        r = wreg[(t, p, jj)]
        off = t * 5120 + jj * 1024
        if off < 4096:
            so, imm = f"s{sPW+p}", off
        else:
            e(f"s_add_u32 s{sT}, s{sPW+p}, {off}")
            so, imm = f"s{sT}", 0
        wtok[(t, p, jj)] = g.vmem(f"buffer_load_dwordx4 a[{r}:{r+3}], v{vL16}, s[{SWS}:{SWS+3}], {so} offen offset:{imm} sc1")

    AHEAD = 12
    for s in yorder[:AHEAD]:
        y_load(*s)
    ptok2 = g.vmem(prep_load())
    g.stamp("y12_issued")
    g.wait(vm=w1tok[-1])
    e("s_barrier")
    g.stamp("w1_barrier")

    NBUF = 12
    FB = 192
    fr = {}

    def tr_issue(idx):
        a, b = yorder[idx]
        va = vT + b + (8 if a >= 3 else 0)
        ao = (a - 3 if a >= 3 else a) * 24576
        for t in range(3):
            r = FB + 4 * ((3 * idx + t) % NBUF)
            for h in range(2):
                tok = g.ds(f"ds_read_b64_tr_b16 a[{r+2*h}:{r+2*h+1}], v{va} offset:{ao + t*64 + h*768}")
            fr[(idx, t)] = (r, tok)

    stream = [("y", s) for s in yorder[AHEAD:]] + [("chk", None)] + [("w", s) for s in worder]

    def next_load(allow_w_idx=60):
        if not stream:
            return False
        k, s = stream[0]
        if k == "w" and wreg[s] // 4 >= allow_w_idx:
            return False
        stream.pop(0)
        if k == "y":
            y_load(*s)
        elif k == "chk":
            spin(w2_check, lambda: e(prep_load()), ptok2)
        else:
            w_load(*s)
        return True

    tr_issue(0)
    tr_issue(1)
    for idx in range(40):
        a, b = yorder[idx]
        yr = Y + 4 * (8 * a + b)
        for t in range(3):
            r, tok = fr[(idx, t)]
            g.wait(vm=ytok[(a, b)] if t == 0 else None, lg=tok)
            e(f"v_mfma_f32_32x32x16_bf16 v[{ACC+16*t}:{ACC+16*t+15}], a[{r}:{r+3}], v[{yr}:{yr+3}], v[{ACC+16*t}:{ACC+16*t+15}]")
            if t == 0:
                next_load(FB // 4)
            if t == 1 and idx % 3 == 2:
                next_load(FB // 4)
        if idx + 2 < 40:
            tr_issue(idx + 2)
        if idx in (0, 4, 9, 19, 29):
            g.stamp(f"g1_slot{idx}")
    g.stamp("gemm1_done")
    e("s_barrier")

    G = vTmp
    for t in range(3):
        base = ACC + 16 * t
        if t == 0:
            g.nop(12)
        for pr in range(8):
            z = base + 2 * pr
            tq = G + 4 * (pr % 2)
            e(f"v_pk_mul_f32 v[{tq}:{tq+1}], v[{z}:{z+1}], v[{z}:{z+1}]")
            e(f"v_pk_fma_f32 v[{tq}:{tq+1}], v[{tq}:{tq+1}], v[{vC2}:{vC2+1}], v[{vC1}:{vC1+1}]")
            e(f"v_pk_mul_f32 v[{tq}:{tq+1}], v[{tq}:{tq+1}], v[{z}:{z+1}]")
            e(f"v_exp_f32 v{tq}, v{tq}\nv_exp_f32 v{tq+1}, v{tq+1}\ns_nop 0")
            e(f"v_pk_add_f32 v[{tq}:{tq+1}], v[{tq}:{tq+1}], v[14:15]")
            e(f"v_rcp_f32 v{tq}, v{tq}\nv_rcp_f32 v{tq+1}, v{tq+1}\ns_nop 0")
            e(f"v_pk_mul_f32 v[{tq}:{tq+1}], v[{tq}:{tq+1}], v[{z}:{z+1}]")
            e(f"v_cvt_pk_bf16_f32 v{base+pr}, v{tq}, v{tq+1}")
            if pr % 2 == 1:
                next_load()
        g.vmem(f"buffer_store_dwordx4 v[{base}:{base+3}], v{vHs}, s[{SWS}:{SWS+3}], s{sHB} offen offset:{t*1024} sc1")
        htok = g.vmem(f"buffer_store_dwordx4 v[{base+4}:{base+7}], v{vHs}, s[{SWS}:{SWS+3}], s{sHB} offen offset:{t*1024+512} sc1")
        if t > 0:
            publish((2 << t) - 1, prev_htok)
        prev_htok = htok
        g.stamp(f"gelu{t}")
    g.stamp("gelu_done")
    for _ in range(6):
        next_load()
    publish(15, prev_htok)
    while next_load():
        pass
    g.stamp("w2_all_issued")

    ACC2 = 176
    HB = [96 + 4 * i for i in range(20)] + [32 + 4 * i for i in range(16)]
    hb_next = [0]
    htoks = {}

    def h_poll():
        return f"buffer_load_dwordx2 v[{vF}:{vF+1}], v{vPh}, s[{SWS}:{SWS+3}], 0 offen sc1"

    def h_check(t):
        def f():
            flag_eval(2, 2 << t)
            e("s_nop 1\ns_cmp_eq_u64 vcc, -1")
        return f

    def h_load(t, p, i):
        r = HB[hb_next[0] % len(HB)]
        hb_next[0] += 1
        e(f"s_add_u32 s{sT}, s{sPH+p}, s{sMI+i}")
        htoks[(t, p, i)] = (r, g.vmem(f"buffer_load_dwordx4 v[{r}:{r+3}], v{vL16}, s[{SWS}:{SWS+3}], s{sT} offen offset:{t*1024} sc1"))

    started = set()

    def mm(t, p, i):
        r, tok = htoks[(t, p, i)]
        for jj in range(5):
            g.wait(vm=max(tok, wtok[(t, p, jj)]))
            c = ACC2 + 20 * i + 4 * jj
            w = wreg[(t, p, jj)]
            cin = f"v[{c}:{c+3}]" if (i, jj) in started else "0"
            started.add((i, jj))
            e(f"v_mfma_f32_16x16x32_bf16 v[{c}:{c+3}], a[{w}:{w+3}], v[{r}:{r+3}], {cin}")

    e(f"v_lshrrev_b32 v{vTmp+10}, 4, v{vL}\nv_lshlrev_b32 v{vTmp+10}, 3, v{vTmp+10}\ns_mul_i32 s{sT2}, s{sNT}, 160")
    for jj in range(5):
        b2tok = g.vmem(f"buffer_load_dwordx2 v[{vTmp+2*jj}:{vTmp+2*jj+1}], v{vTmp+10}, s[{SB2}:{SB2+3}], s{sT2} offen offset:{jj*32}")

    tk = g.vmem(h_poll())
    spin(h_check(0), lambda: e(h_poll()), tk)
    g.stamp("h0_flag_ok")
    for i in range(4):
        h_load(0, 0, i)
    tk = g.vmem(h_poll())
    for p in range(1, 4):
        for i in range(4):
            h_load(0, p, i)
    spin(h_check(1), lambda: e(h_poll()), tk)
    g.stamp("h1_flag_ok")
    for i in range(4):
        h_load(1, 0, i)
    tk = g.vmem(h_poll())
    pend = [(1, p, i) for p in range(1, 4) for i in range(4)]
    for p in range(4):
        for i in range(4):
            mm(0, p, i)
            if pend:
                h_load(*pend.pop(0))
    g.stamp("g2_t0_done")
    spin(h_check(2), lambda: e(h_poll()), tk)
    g.stamp("h2_flag_ok")
    pend = [(2, p, i) for i in range(4) for p in range(4)]
    for _ in range(4):
        h_load(*pend.pop(0))
    for p in range(4):
        for i in range(4):
            mm(1, p, i)
            if pend:
                h_load(*pend.pop(0))
    g.stamp("g2_t1_done")
    for i in range(3):
        e(f"s_add_u32 s{sT}, s{sW}, {i+1}\ns_and_b32 s{sT}, s{sT}, 3\ns_mul_i32 s{sT}, s{sT}, 15360\ns_add_u32 s{sT}, s{sT}, {i*5120}\nv_add_u32 v{vF+i}, s{sT}, v{vL16}")
    e(f"s_mul_i32 s{sT}, s{sW}, 15360\nv_add_u32 v{vF+3}, s{sT}, v{vL16}")
    for i in range(4):
        for p in range(4):
            mm(2, p, i)
            if i > 0 and p >= 1:
                for jj in ((0, 1) if p == 1 else (2, 3) if p == 2 else (4,)):
                    c = ACC2 + 20 * (i - 1) + 4 * jj
                    g.ds(f"ds_write_b128 v{vF+i-1}, v[{c}:{c+3}] offset:{jj*1024}")
    g.stamp("gemm2_done")
    g.wait(lg=g.lg)
    e("s_barrier")
    g.stamp("red_barrier")
    R = 96
    rt = []
    for k in range(15):
        rt.append(g.ds(f"ds_read_b128 v[{R+4*k}:{R+4*k+3}], v{vF+3} offset:{k*1024}"))
    e(f"v_and_b32 v{vF}, 15, v{vL}\nv_mul_u32_u24 v{vF}, 1280, v{vF}\nv_add_u32 v{vF}, v{vF}, v{vTmp+10}")
    e(f"s_lshl_b32 s{sT}, s{sMT}, 6\ns_lshl_b32 s{sT3}, s{sW}, 4\ns_add_u32 s{sT}, s{sT}, s{sT3}\ns_mul_i32 s{sT}, s{sT}, 1280\ns_add_u32 s{sT}, s{sT}, s{sT2}")
    g.wait(vm=b2tok)
    C3 = ACC2 + 60
    BF = 160
    for jj in range(5):
        c = C3 + 4 * jj
        e(f"v_lshlrev_b32 v{BF}, 16, v{vTmp+2*jj}\nv_and_b32 v{BF+1}, 0xffff0000, v{vTmp+2*jj}\nv_lshlrev_b32 v{BF+2}, 16, v{vTmp+2*jj+1}\nv_and_b32 v{BF+3}, 0xffff0000, v{vTmp+2*jj+1}")
        e(f"v_pk_add_f32 v[{c}:{c+1}], v[{c}:{c+1}], v[{BF}:{BF+1}]\nv_pk_add_f32 v[{c+2}:{c+3}], v[{c+2}:{c+3}], v[{BF+2}:{BF+3}]")
    for i in range(3):
        for jj in range(5):
            k = 5 * i + jj
            c = C3 + 4 * jj
            g.wait(lg=rt[k])
            e(f"v_pk_add_f32 v[{c}:{c+1}], v[{c}:{c+1}], v[{R+4*k}:{R+4*k+1}]\nv_pk_add_f32 v[{c+2}:{c+3}], v[{c+2}:{c+3}], v[{R+4*k+2}:{R+4*k+3}]")
            if i == 2:
                e(f"v_cvt_pk_bf16_f32 v{c}, v{c}, v{c+1}\nv_cvt_pk_bf16_f32 v{c+1}, v{c+2}, v{c+3}")
                g.vmem(f"buffer_store_dwordx2 v[{c}:{c+1}], v{vF}, s[{SO}:{SO+3}], s{sT} offen offset:{jj*32}")
    if diag:
        g.stamp("out_issued")
        e("s_waitcnt vmcnt(0)")
        g.stamp("end")
        e(f"s_lshl_b32 s{sT}, s2, 2\ns_add_u32 s{sT}, s{sT}, s{sW}\ns_lshl_b32 s{sT}, s{sT}, 8\ns_add_u32 s{sT}, s{sT}, {T0}")
        e(f"v_lshlrev_b32 v{vF}, 2, v{vL}")
        e(f"buffer_store_dword v0, v{vF}, s[{SWS}:{SWS+3}], s{sT} offen")
        open("stampnames.txt", "w").write("\n".join(g.stampnames))
    if hd:
        e("s_waitcnt vmcnt(0)\ns_barrier\ns_memtime s[98:99]\ns_memrealtime s[100:101]\ns_waitcnt lgkmcnt(0)")
        e(f"s_cmp_lg_u32 s{sW}, 0\ns_cbranch_scc1 L_end\ns_sleep 127\ns_sleep 127\ns_sleep 127\ns_sleep 127")
        e(f"s_lshl_b32 s{sT}, s100, 4\ns_sub_u32 s{sT}, s{sT}, s{sN}\ns_and_b32 s{sT}, s{sT}, 0x7fffffff\ns_lshr_b32 s{sT}, s{sT}, 4\nv_mov_b32 v20, s{sT}")
        e(f"s_sub_u32 s{sT}, s98, s94\nv_mov_b32 v21, s{sT}")
        e(f"s_add_u32 s{sT}, s96, 4096\ns_lshl_b32 s{sT}, s{sT}, 4\ns_sub_u32 s{sT}, s{sT}, s{sN}\ns_and_b32 s{sT}, s{sT}, 0x7fffffff\ns_lshr_b32 s{sT}, s{sT}, 4\nv_mov_b32 v22, s{sT}")
        e(f"s_sub_u32 s{sT}, 8192, s{sT}\nv_mov_b32 v23, s{sT}")
        e(f"s_sub_u32 s{sT}, s100, s96\nv_mov_b32 v24, s{sT}")
        e("v_mov_b32 v25, 0\ns_mov_b64 exec, 1")
        for i in range(5):
            e(f"buffer_atomic_umax v{20+i}, v25, s[{SD}:{SD+3}], 0 offen offset:{4+4*i} sc1")
    g.label("L_end")
    e("s_endpgm")
    out += g.L
    out += ['.section .rodata,"a"', ".p2align 6", f".amdhsa_kernel {NAME}",
            "  .amdhsa_next_free_vgpr 512", "  .amdhsa_next_free_sgpr 102", "  .amdhsa_accum_offset 256",
            "  .amdhsa_group_segment_fixed_size 0", "  .amdhsa_kernarg_size 64", "  .amdhsa_user_sgpr_count 2",
            "  .amdhsa_user_sgpr_kernarg_segment_ptr 1", "  .amdhsa_system_sgpr_workgroup_id_x 1", ".end_amdhsa_kernel"]
    return "\n".join(out) + "\n"


if __name__ == "__main__":
    diag = "--diag" in sys.argv
    path = [a for a in sys.argv[1:] if not a.startswith("--")]
    path = path[0] if path else "standalone__mixer_channel_mlp__prompt.s"
    open(path, "w").write(generate(diag, "--hd" in sys.argv))
    print("wrote", path)
```

```python
import sys
from gen import Gen, NAME

W0 = 0
H0 = 4 << 20
F0 = 12 << 20
T0 = 17 << 20
WS_BYTES = 18 << 20

LDS_W1 = 0
LDS_X = 122880
LDS_STAGE = 155648
LDS_BYTES = 163840

SPIN_MAX = 20000
B_P, B_H = 1, 2

DEF = dict(xnt=1, last=3, gl=6, hpoll=10, stat_at=1, rep_at=1, pub_at=3, wp_at=5, wc_at=6, ha=10, wahead=3, wl_per=(3, 6, 6))


def generate(diag=False, hd=False, P=None):
    P = dict(DEF, **(P or {}))
    g = Gen(diag)
    e = g.e
    SX, SW1, SB1, SW2, SB2, SO, SD, SWS = 4, 8, 12, 16, 20, 24, 28, 32
    sW = 36
    sMB, sFT, sQ, sMT, sNT, sJ, sRC = 37, 38, 39, 40, 41, 42, 43
    sXB = 44
    sN = 45
    sT, sT2, sT3 = 46, 47, 48
    sCNT = 49
    sEX = 50
    sMI = 52
    sLX, sONE, sHB, sIDX = 56, 57, 58, 59
    sC1, sCB, sS2, sWA, sWB, sWC, sWD = 60, 61, 62, 63, 64, 65, 66
    sLW = 67
    sU1, sU2 = 92, 93
    sPW = 68
    sPH = 80
    vL, vL16 = 1, 2
    vW1 = 3
    vFl, vPo, vPh, vHs = 6, 7, 8, 9
    vC2, vC1, vOne = 10, 12, 14
    vF = 16
    vTmp = 20
    vT = 40
    vXr = 140
    ACC = 48
    ACS = 96
    XFR = 144
    FB = 176
    vXd = 224
    vOnes = 228
    vGs = 232
    vB1 = 233
    vR2 = 236
    LNR = 238

    hdr = open("standalone__mixer_channel_mlp__prompt.s.ref").read().split("\n")
    head = []
    for ln in hdr:
        if ln.startswith("; @launch"):
            head.append(f"; @launch grid=(256,1,1) block=(256,1,1) lds={LDS_BYTES}")
            break
        head.append(ln)
    out = head + ['.amdgcn_target "amdgcn-amd-amdhsa--gfx950"', ".text", f".globl {NAME}", ".p2align 8",
                  f".type {NAME},@function", f"{NAME}:"]
    NT = " nt" if P["xnt"] else ""

    e("s_cmp_ge_u32 s2, 256\ns_cbranch_scc1 L_end")
    if diag:
        e("s_memtime s[98:99]\ns_memrealtime s[100:101]")
    e("s_load_dwordx16 s[76:91], s[0:1], 0")
    e(f"v_and_b32 v{vL}, 63, v0\nv_lshrrev_b32 v{vTmp}, 6, v0\nv_lshlrev_b32 v{vL16}, 4, v{vL}")
    e(f"v_readfirstlane_b32 s{sW}, v{vTmp}")
    e(f"s_and_b32 s{sT}, s2, 7\ns_lshr_b32 s{sIDX}, s2, 3")
    e(f"s_lshr_b32 s{sT2}, s{sT}, 1\ns_and_b32 s{sT3}, s{sT}, 1")
    e(f"s_lshr_b32 s{sRC}, s{sIDX}, 3\ns_lshl_b32 s{sMB}, s{sT2}, 2\ns_add_u32 s{sMB}, s{sMB}, s{sRC}")
    e(f"s_and_b32 s{sT}, s{sIDX}, 7\ns_lshl_b32 s{sFT}, s{sT3}, 3\ns_add_u32 s{sFT}, s{sFT}, s{sT}")
    e(f"s_mul_i32 s{sRC}, s{sRC}, 3\ns_add_u32 s{sRC}, s{sRC}, s{sT}\ns_cmp_ge_u32 s{sRC}, 10\ns_cselect_b32 s{sT}, 10, 0\ns_sub_u32 s{sRC}, s{sRC}, s{sT}")
    e(f"s_lshl_b32 s{sQ}, s{sMB}, 4\ns_add_u32 s{sQ}, s{sQ}, s{sFT}")
    e(f"s_lshr_b32 s{sJ}, s{sIDX}, 2\ns_lshl_b32 s{sMT}, s{sT2}, 3\ns_add_u32 s{sMT}, s{sMT}, s{sJ}")
    e(f"s_and_b32 s{sNT}, s{sIDX}, 3\ns_lshl_b32 s{sT3}, s{sT3}, 2\ns_add_u32 s{sNT}, s{sNT}, s{sT3}")
    vR, vI = vTmp + 2, vTmp + 3
    e(f"v_lshrrev_b32 v{vR}, 5, v{vL}\nv_and_b32 v{vI}, 31, v{vL}")
    e(f"v_lshrrev_b32 v{vTmp+6}, 4, v{vL}\nv_bfe_u32 v{vTmp+7}, v{vL}, 3, 1\nv_and_b32 v{vTmp+8}, 7, v{vL}")
    for d in range(2):
        e(f"v_add_u32 v{vTmp+9}, {4*d}, v{vTmp+6}")
        e(f"v_xor_b32 v{vTmp+10}, v{vTmp+8}, v{vTmp+9}\nv_lshl_add_u32 v{vTmp+9}, v{vTmp+7}, 3, v{vTmp+9}")
        e(f"v_mul_u32_u24 v{vTmp+9}, 1280, v{vTmp+9}\nv_lshl_add_u32 v{vXd+d}, v{vTmp+10}, 4, v{vTmp+9}\nv_add_u32 v{vXd+d+2}, {16*1280}, v{vXd+d}")
    e(f"s_lshl_b32 s{sXB}, s{sMB}, 2\ns_add_u32 s{sXB}, s{sXB}, s{sW}\ns_mul_i32 s{sXB}, s{sXB}, {32*1280}")
    e(f"s_lshl_b32 s{sLX}, s{sW}, 13\ns_add_u32 s{sLX}, s{sLX}, {LDS_X}\ns_mul_i32 s{sLW}, s{sW}, 3072")
    for i in range(3):
        e(f"v_add_u32 v{vTmp+6}, {64*i}, v{vL}\nv_mul_u32_u24 v{vTmp+7}, 5462, v{vTmp+6}\nv_lshrrev_b32 v{vTmp+7}, 16, v{vTmp+7}")
        e(f"v_mul_u32_u24 v{vTmp+8}, 12, v{vTmp+7}\nv_sub_u32 v{vTmp+8}, v{vTmp+6}, v{vTmp+8}")
        e(f"v_mul_u32_u24 v{vTmp+7}, 3072, v{vTmp+7}\nv_lshl_add_u32 v{vW1+i}, v{vTmp+8}, 4, v{vTmp+7}")
    e(f"s_mul_i32 s{sC1}, s{sFT}, 192\ns_mul_i32 s{sT}, s{sW}, {16*3072}\ns_add_u32 s{sU1}, s{sC1}, s{sT}")
    e("s_waitcnt lgkmcnt(0)")

    def srd(r, k, nbytes):
        e(f"s_mov_b32 s{r}, s{76+2*k}\ns_mov_b32 s{r+1}, s{77+2*k}\ns_mov_b32 s{r+2}, {nbytes}\ns_mov_b32 s{r+3}, 0x00020000")

    if diag:
        e("v_writelane_b32 v0, s100, 0\nv_writelane_b32 v0, s100, 62")
        g.nstamp = 1
        g.stampnames.append("entry")
        g.stamp("kernarg")
    srd(SX, 0, 2621440)
    srd(SW1, 1, 1966080)
    e(f"s_mov_b32 s{sCB}, s{sU1}")
    sW1o = sONE + 0
    sW1o = 93
    e(f"s_mov_b32 s{sW1o}, s{sU1}")
    g.stamp("start") if False else None

    xtk, wtk = {}, {}
    sRX = sS2 + 0
    sRX = 91

    def x_dmas(c):
        def xd(d):
            def f():
                if d == 0:
                    e(f"s_lshl_b32 s{sWC}, s{sRXc}, 7\ns_add_u32 s{sWC}, s{sWC}, s{sXB}")
                    e(f"s_add_u32 s{sRXc}, s{sRXc}, 1\ns_cmp_eq_u32 s{sRXc}, 10\ns_cselect_b32 s{sRXc}, 0, s{sRXc}")
                e(f"s_add_u32 m0, s{sLX}, {(c % 2)*4096 + d*1024}\ns_nop 0")
                xtk[c] = g.vmem(f"buffer_load_dwordx4 v{vXd+d}, s[{SX}:{SX+3}], s{sWC} offen lds")
            return f
        return [xd(d) for d in range(4)]

    def w_dmas(c):
        def wd(i):
            def f():
                if i == 0:
                    e(f"s_mul_i32 s{sWD}, s{sRC}, {64*3072}\ns_add_u32 s{sWD}, s{sWD}, s{sW1o}")
                    e(f"s_add_u32 s{sRC}, s{sRC}, 1\ns_cmp_eq_u32 s{sRC}, 10\ns_cselect_b32 s{sRC}, 0, s{sRC}")
                e(f"s_add_u32 m0, s{sLW}, {LDS_W1 + c*12288 + i*1024}\ns_nop 0")
                wtk[c] = g.vmem(f"buffer_load_dwordx4 v{vW1+i}, s[{SW1}:{SW1+3}], s{sWD} offen lds")
            return f
        return [wd(i) for i in range(3)]

    sRXc = 96
    e(f"s_mov_b32 s{sRXc}, s{sRC}")
    for f in x_dmas(0) + w_dmas(0):
        f()
    vXo = vTmp + 1
    e(f"v_mul_u32_u24 v{vXo}, 1280, v{vR}\nv_lshl_add_u32 v{vXo}, v{vI}, 3, v{vXo}")
    e(f"s_lshl_b32 s{sT}, s{sQ}, 3\ns_lshl_b32 s{sT2}, s{sW}, 1\ns_add_u32 s{sT}, s{sT}, s{sT2}\ns_mul_i32 s{sT}, s{sT}, 1280")
    XR = LNR
    xtok = [g.vmem(f"buffer_load_dwordx2 v[{XR+2*j}:{XR+2*j+1}], v{vXo}, s[{SX}:{SX+3}], s{sT} offen offset:{256*j}") for j in range(5)]
    srd(SW2, 3, 1966080)
    vW2o = vTmp + 12
    e(f"s_mul_i32 s{sCB}, s{sQ}, 1366\ns_lshr_b32 s{sCB}, s{sCB}, 16\ns_mul_i32 s{sT3}, s{sCB}, 48\ns_sub_u32 s{sS2}, s{sQ}, s{sT3}")
    e(f"v_lshrrev_b32 v{vW2o}, 4, v{vL}\nv_mul_u32_u24 v{vW2o}, 1280, v{vW2o}\nv_and_b32 v{vTmp+6}, 15, v{vL}\nv_lshl_add_u32 v{vW2o}, v{vTmp+6}, 4, v{vW2o}")
    e(f"s_lshl_b32 s{sWA}, s{sS2}, 5\ns_lshl_b32 s{sT2}, s{sW}, 3\ns_add_u32 s{sWA}, s{sWA}, s{sT2}\ns_mul_i32 s{sWA}, s{sWA}, 1280\ns_lshl_b32 s{sT2}, s{sCB}, 8\ns_add_u32 s{sWA}, s{sWA}, s{sT2}")
    e(f"s_lshl_b32 s{sT2}, s{sW}, 11\ns_add_u32 m0, s{sT2}, {LDS_STAGE}\nv_mov_b32 v{vTmp+5}, 0")
    g.vmem(f"buffer_load_dwordx4 v{vW2o}, s[{SW2}:{SW2+3}], s{sWA} offen{NT} lds")
    e(f"s_add_u32 m0, m0, 1024\ns_add_u32 s{sWA}, s{sWA}, {4*1280}")
    w2ptok = g.vmem(f"buffer_load_dwordx4 v{vW2o}, s[{SW2}:{SW2+3}], s{sWA} offen{NT} lds")
    srd(SD, 6, 256)
    lab = g.newlab("nononce")
    e(f"s_or_b32 s{sT}, s2, s{sW}\ns_cmp_lg_u32 s{sT}, 0\ns_cbranch_scc1 {lab}")
    e(f"s_memrealtime s[{sEX}:{sEX+1}]\ns_waitcnt lgkmcnt(0)")
    e(f"s_lshl_b32 s{sT}, s{sEX}, 2\ns_or_b32 s{sT}, s{sT}, 0x80000000\nv_mov_b32 v{vTmp+4}, s{sT}")
    e(f"s_mov_b64 exec, 1")
    e(f"buffer_store_dword v{vTmp+4}, v{vTmp+5}, s[{SD}:{SD+3}], 0 offen sc1")
    e(f"s_mov_b64 exec, -1")
    g.label(lab)
    for r, k, n in ((SB1, 2, 3072), (SB2, 4, 1280), (SO, 5, 2621440), (SWS, 7, WS_BYTES)):
        srd(r, k, n)
    g.stamp("start")

    vP = vTmp + 13
    e(f"s_lshl_b32 s{sT}, s{sQ}, 7\ns_lshl_b32 s{sT2}, s{sW}, 2\ns_add_u32 s{sT}, s{sT}, s{sT2}\ns_add_u32 s{sT}, s{sT}, {F0+64}\nv_mov_b32 v{vFl}, s{sT}")
    e(f"v_lshlrev_b32 v{vP}, 12, v{vR}\nv_bfe_u32 v{vTmp+6}, v{vL}, 4, 1\nv_lshl_add_u32 v{vP}, v{vTmp+6}, 10, v{vP}")
    e(f"v_bfe_u32 v{vTmp+6}, v{vL}, 2, 2\nv_lshl_add_u32 v{vP}, v{vTmp+6}, 8, v{vP}\nv_and_b32 v{vTmp+6}, 3, v{vL}\nv_lshl_add_u32 v{vP}, v{vTmp+6}, 3, v{vP}")
    e(f"s_lshl_b32 s{sT}, s{sW}, 6\ns_add_u32 s{sT}, s{sT}, {LDS_STAGE}\nv_add_u32 v{vP}, s{sT}, v{vP}")
    for ee, dst in ((0, sWA), (1, sWB)):
        e(f"s_lshl_b32 s{sT}, s{sCB}, 3\ns_lshl_b32 s{sT2}, s{sW}, 1\ns_add_u32 s{sT}, s{sT}, s{sT2}")
        if ee:
            e(f"s_add_u32 s{sT}, s{sT}, 1")
        e(f"s_mul_i32 s{sT2}, s{sT}, 13108\ns_lshr_b32 s{sT2}, s{sT2}, 16\ns_mul_i32 s{sT3}, s{sT2}, 5\ns_sub_u32 s{sT}, s{sT}, s{sT3}")
        e(f"s_mul_i32 s{sT2}, s{sT2}, 48\ns_add_u32 s{sT2}, s{sT2}, s{sS2}\ns_mul_i32 s{sT2}, s{sT2}, 5\ns_add_u32 s{sT}, s{sT}, s{sT2}")
        e(f"s_lshl_b32 s{dst}, s{sT}, 10")
    e(f"s_cmp_ge_u32 s{sQ}, 240\ns_cselect_b32 s{sWA}, {WS_BYTES}, s{sWA}\ns_cselect_b32 s{sWB}, {WS_BYTES}, s{sWB}")
    e(f"v_lshlrev_b32 v{vTmp+7}, 3, v{vR}\nv_bfe_u32 v{vTmp+6}, v{vL}, 2, 2\nv_add_u32 v{vTmp+7}, v{vTmp+7}, v{vTmp+6}")
    e(f"v_mul_u32_u24 v{vTmp+7}, 192, v{vTmp+7}\nv_bfe_u32 v{vTmp+6}, v{vL}, 4, 1\nv_lshl_add_u32 v{vTmp+7}, v{vTmp+6}, 5, v{vTmp+7}")
    e(f"v_and_b32 v{vTmp+6}, 3, v{vL}\nv_lshl_add_u32 v{vTmp+7}, v{vTmp+6}, 3, v{vTmp+7}")
    e(f"v_and_b32 v{vTmp+8}, 7, v{vL}\nv_bfe_u32 v{vTmp+6}, v{vL}, 4, 1\nv_lshl_add_u32 v{vTmp+9}, v{vTmp+6}, 3, v{vTmp+8}\nv_lshlrev_b32 v{vTmp+9}, 8, v{vTmp+9}")
    e(f"v_bfe_u32 v{vTmp+6}, v{vL}, 3, 1\nv_lshl_add_u32 v{vTmp+9}, v{vTmp+6}, 7, v{vTmp+9}\nv_add_u32 v{vTmp+9}, s{sLX}, v{vTmp+9}")
    for j in range(4):
        e(f"s_add_u32 s{sT}, s{sW}, {j}\ns_and_b32 s{sT}, s{sT}, 3\ns_mul_i32 s{sT2}, s{sT}, 3072\nv_add_u32 v{vT+j}, s{sT2}, v{vTmp+7}\nv_add_u32 v{vT+4+j}, {5*12288}, v{vT+j}")
        e(f"s_lshl_b32 s{sT}, s{sT}, 1\nv_add_u32 v{vTmp+6}, s{sT}, v{vR}\nv_xor_b32 v{vTmp+6}, v{vTmp+6}, v{vTmp+8}\nv_lshl_add_u32 v{vXr+j}, v{vTmp+6}, 4, v{vTmp+9}")
    for k in range(4):
        e(f"v_mov_b32 v{vOnes+k}, 0x3f803f80")
    e(f"s_mov_b32 s{sONE}, 0x3f803f80")
    if P.get("wfirst"):
        for cc in range(1, P["wahead"]):
            for f in w_dmas(cc):
                f()
        for f in x_dmas(1):
            f()
    else:
        for f in x_dmas(1) + w_dmas(1):
            f()
    g.stamp("c1_issued")
    setup = []
    S = setup.append
    S(f"v_cmp_le_u32 vcc, 12, v{vL}\ns_mul_i32 s{sT}, s{sNT}, 5\ns_nop 0\nv_cndmask_b32 v{vTmp+7}, 0, 1, vcc")
    S(f"v_lshl_add_u32 v{vTmp+6}, v{vTmp+7}, 2, s{sT}\nv_lshrrev_b32 v{vTmp+6}, 3, v{vTmp+6}\nv_mul_u32_u24 v{vTmp+6}, 48, v{vTmp+6}")
    S(f"v_mul_u32_u24 v{vTmp+7}, 12, v{vTmp+7}\nv_sub_u32 v{vTmp+7}, v{vL}, v{vTmp+7}\ns_mul_i32 s{sT}, s{sW}, 12\nv_add3_u32 v{vTmp+6}, v{vTmp+6}, v{vTmp+7}, s{sT}")
    S(f"v_cmp_gt_u32 vcc, 24, v{vL}\nv_readfirstlane_b32 s{sT}, v{vTmp+6}\ns_nop 1\nv_mov_b32 v{vTmp+7}, s{sT}\nv_cndmask_b32 v{vPo}, v{vTmp+7}, v{vTmp+6}, vcc")
    S(f"v_lshlrev_b32 v{vPo}, 7, v{vPo}\nv_add_u32 v{vPo}, {F0+64}, v{vPo}")
    S(f"s_lshl_b32 s{sT}, s{sMB}, 4\ns_lshl_b32 s{sT2}, s{sW}, 2\ns_add_u32 s{sT}, s{sT}, s{sT2}\nv_and_b32 v{vTmp+7}, 3, v{vL}\nv_add_u32 v{vTmp+7}, s{sT}, v{vTmp+7}")
    S(f"s_and_b32 s{sT2}, s{sMT}, 1\ns_lshl_b32 s{sT2}, s{sT2}, 3\ns_add_u32 s{sT2}, s{sT2}, {F0+64}\nv_lshlrev_b32 v{vPh}, 7, v{vTmp+7}\nv_add_u32 v{vPh}, s{sT2}, v{vPh}")
    S(f"v_lshrrev_b32 v{vTmp+7}, 3, v{vI}\nv_add_u32 v{vTmp+7}, s{sT}, v{vTmp+7}\nv_lshlrev_b32 v{vGs}, 7, v{vTmp+7}\nv_bfe_u32 v{vTmp+7}, v{vI}, 1, 2\nv_lshl_add_u32 v{vGs}, v{vTmp+7}, 4, v{vGs}\nv_add_u32 v{vGs}, {F0}, v{vGs}")
    S(f"s_mul_i32 s{sCNT}, s{sJ}, 3\ns_lshr_b32 s{sCNT}, s{sCNT}, 1\ns_mul_i32 s{sU1}, s{sW}, 12\ns_mul_i32 s{sEX}, s{sNT}, 48\ns_add_u32 s{sEX}, s{sEX}, s{sU1}")
    for sg in range(12):
        S(f"s_add_u32 s{sT}, s{sCNT}, s{sU1}\ns_lshl_b32 s{sPH+sg}, s{sT}, 10\ns_add_u32 s{sT}, s{sCNT}, s{sEX}\ns_mul_i32 s{sPW+sg}, s{sT}, 5120\n"
          f"s_add_u32 s{sCNT}, s{sCNT}, 1\ns_cmp_eq_u32 s{sCNT}, 12\ns_cselect_b32 s{sCNT}, 0, s{sCNT}")
    for i in range(4):
        S(f"s_add_u32 s{sT}, s{sW}, {i+1}\ns_and_b32 s{sT}, s{sT}, 3\ns_lshl_b32 s{sT2}, s{sMT}, 2\ns_add_u32 s{sT}, s{sT}, s{sT2}\n"
          f"s_mul_i32 s{sT}, s{sT}, 49152\ns_add_u32 s{sMI+i}, s{sT}, {H0}")
    S(f"v_bfe_u32 v{vTmp+6}, v{vL}, 4, 1\nv_mul_u32_u24 v{vHs}, 49152, v{vTmp+6}\nv_lshl_add_u32 v{vHs}, v{vR}, 8, v{vHs}")
    S(f"v_and_b32 v{vTmp+6}, 15, v{vL}\nv_lshl_add_u32 v{vHs}, v{vTmp+6}, 4, v{vHs}")
    S(f"s_lshl_b32 s{sT}, s{sMB}, 3\ns_lshl_b32 s{sT2}, s{sW}, 1\ns_add_u32 s{sT}, s{sT}, s{sT2}\ns_mul_i32 s{sT}, s{sT}, 49152\n"
      f"s_mul_i32 s{sT2}, s{sFT}, 3072\ns_add_u32 s{sT}, s{sT}, s{sT2}\ns_add_u32 s{sHB}, s{sT}, {H0}")
    S(f"v_mov_b32 v{vC2}, 0xbdd2d3e8\nv_mov_b32 v{vC2+1}, 0xbdd2d3e8\nv_mov_b32 v{vC1}, 0xc0135761\nv_mov_b32 v{vC1+1}, 0xc0135761\nv_mov_b32 v{vOne}, 1.0\nv_mov_b32 v{vOne+1}, 1.0")
    while setup:
        e(setup.pop(0))
    g.stamp("setup_done")

    def spin(check_emit, load_emit, tok):
        g.wait(vm=tok)
        if P.get("nospin"):
            check_emit()
            return
        ok = g.newlab("ok")
        retry = g.newlab("retry")
        check_emit()
        e(f"s_cbranch_scc1 {ok}")
        e(f"s_mov_b32 s{sCNT}, {SPIN_MAX}")
        g.label(retry)
        e(f"s_sub_u32 s{sCNT}, s{sCNT}, 1\ns_cmp_eq_u32 s{sCNT}, 0\ns_cbranch_scc1 {ok}")
        load_emit()
        e("s_waitcnt vmcnt(0)")
        check_emit()
        e(f"s_cbranch_scc0 {retry}")
        g.label(ok)

    def publish(bits, tok):
        e(f"s_or_b32 s{sT}, s{sN}, {bits}\nv_mov_b32 v{vTmp+18}, s{sT}")
        g.wait(vm=tok)
        e(f"s_mov_b64 exec, 1")
        g.vmem(f"buffer_store_dword v{vTmp+18}, v{vFl}, s[{SWS}:{SWS+3}], 0 offen sc1")
        e(f"s_mov_b64 exec, -1")

    def flag_eval(regs, bit):
        m = 0xfffffffc | bit
        e(f"s_or_b32 s{sT}, s{sN}, {bit}")
        for r in regs:
            e(f"v_xor_b32 v{r}, s{sT}, v{r}")
        for r in regs[1:]:
            e(f"v_or_b32 v{regs[0]}, v{regs[0]}, v{r}")
        e(f"v_and_b32 v{regs[0]}, {m:#x}, v{regs[0]}\nv_cmp_eq_u32 vcc, 0, v{regs[0]}\ns_nop 1\ns_cmp_eq_u64 vcc, -1")

    st = {}

    XF = 96
    A0, A1, A2, A3 = 116, 117, 118, 119
    S0 = 120
    vMS = LNR + 10
    def do_stats():
        e(f"v_mov_b32 v{A0}, 0\nv_mov_b32 v{A1}, 0")
        g.wait(vm=xtok[-1])
        g.stamp("x_arrived")
        st["ntok"] = g.vmem(f"buffer_load_dword v{vF}, v{vTmp+5}, s[{SD}:{SD+3}], 0 offen sc1")
        for j in range(10):
            a = A0 if j % 2 == 0 else A1
            e(f"v_dot2_f32_bf16 v{a}, v{XR+j}, s{sONE}, v{a}")
        for j in range(3):
            e(f"v_lshlrev_b32 v{XF+2*j}, 16, v{XR+j}\nv_and_b32 v{XF+2*j+1}, 0xffff0000, v{XR+j}")
        e(f"v_add_f32 v{A0}, v{A0}, v{A1}")
        fill = [f"v_lshlrev_b32 v{XF+2*j}, 16, v{XR+j}\nv_and_b32 v{XF+2*j+1}, 0xffff0000, v{XR+j}" for j in range(3, 10)]

        def reduce32(a, t, fill):
            def pad():
                e(fill.pop(0) if fill else "s_nop 1")
            for r in (8, 4, 2, 1):
                pad()
                e(f"v_add_f32_dpp v{a}, v{a}, v{a} row_ror:{r} row_mask:0xf bank_mask:0xf")
            e(f"v_mov_b32 v{t}, v{a}")
            pad()
            e(f"v_permlane16_swap_b32 v{a}, v{t}")
            pad()
            e(f"v_add_f32 v{a}, v{a}, v{t}")

        reduce32(A0, A1, fill)
        for f in fill:
            e(f)
        e(f"v_mul_f32 v{A0}, 0x3acccccd, v{A0}")
        e(f"v_cvt_pk_bf16_f32 v{A2}, v{A0}, v{A0}\nv_lshlrev_b32 v{A2}, 16, v{A2}")
        e(f"v_sub_f32 v{A0}, v{A0}, v{A2}\nv_mov_b32 v{A3}, v{A2}")
        for j in range(10):
            e(f"v_pk_add_f32 v[{XF+2*j}:{XF+2*j+1}], v[{XF+2*j}:{XF+2*j+1}], v[{A2}:{A3}] neg_lo:[0,1] neg_hi:[0,1]")
        for j in range(10):
            s = S0 + 2 * (j % 2)
            if j < 2:
                e(f"v_pk_mul_f32 v[{s}:{s+1}], v[{XF+2*j}:{XF+2*j+1}], v[{XF+2*j}:{XF+2*j+1}]")
            else:
                e(f"v_pk_fma_f32 v[{s}:{s+1}], v[{XF+2*j}:{XF+2*j+1}], v[{XF+2*j}:{XF+2*j+1}], v[{s}:{s+1}]")
        e(f"v_pk_add_f32 v[{S0}:{S0+1}], v[{S0}:{S0+1}], v[{S0+2}:{S0+3}]\nv_add_f32 v{S0}, v{S0}, v{S0+1}")
        reduce32(S0, S0 + 1, [])
        e(f"v_mul_f32 v{S0}, 0x3acccccd, v{S0}")
        e(f"v_fma_f32 v{S0}, -v{A0}, v{A0}, v{S0}\nv_max_f32 v{S0}, 0, v{S0}")
        e(f"v_cvt_pk_bf16_f32 v{S0}, v{S0}, v{S0}\nv_lshlrev_b32 v{S0}, 16, v{S0}")
        e(f"v_add_f32 v{S0}, 0x3727c5ac, v{S0}")
        e(f"v_cvt_pk_bf16_f32 v{S0}, v{S0}, v{S0}\nv_lshlrev_b32 v{S0}, 16, v{S0}")
        e(f"v_sqrt_f32 v{S0}, v{S0}\ns_nop 0")
        e(f"v_cvt_pk_bf16_f32 v{vMS}, v{A2}, v{S0}")
        g.stamp("stats_done")


    def send_stats():
        spin(lambda: e(f"v_readfirstlane_b32 s{sN}, v{vF}\ns_nop 3\ns_cmp_lg_u32 s{sN}, 0"),
             lambda: e(f"buffer_load_dword v{vF}, v{vTmp+5}, s[{SD}:{SD+3}], 0 offen sc1"), st["ntok"])
        G4 = LNR + 12
        e(f"v_readlane_b32 s{sT}, v{vMS}, 32\nv_mov_b32 v{G4}, s{sN}\nv_mov_b32 v{G4+1}, v{vMS}\nv_mov_b32 v{G4+3}, s{sN}\nv_mov_b32 v{G4+2}, s{sT}")
        e(f"s_mul_i32 s{sT}, s{sW}, 12\ns_sub_u32 s{sT}, s{sT}, 64\nv_add_u32 v{G4+4}, s{sT}, v{vFl}")
        e(f"s_mov_b64 exec, 1")
        g.vmem(f"buffer_store_dwordx4 v[{G4}:{G4+3}], v{G4+4}, s[{SWS}:{SWS+3}], 0 offen sc1")
        e(f"s_mov_b64 exec, -1")

    def repack():
        PF = LNR
        for ee in range(2):
            for h in range(2):
                t = g.ds(f"ds_read_b64_tr_b16 v[{PF+4*ee+2*h}:{PF+4*ee+2*h+1}], v{vP} offset:{ee*32 + h*2048}")
        g.wait(lg=t)
        g.vmem(f"buffer_store_dwordx4 v[{PF}:{PF+3}], v{vL16}, s[{SWS}:{SWS+3}], s{sWA} offen sc1")
        st["ps"] = g.vmem(f"buffer_store_dwordx4 v[{PF+4}:{PF+7}], v{vL16}, s[{SWS}:{SWS+3}], s{sWB} offen sc1")

    def w_poll():
        return f"buffer_load_dwordx4 v[{vF}:{vF+3}], v{vPo}, s[{SWS}:{SWS+3}], 0 offen sc1"

    F4 = [vF, vF + 1, vF + 2, vF + 3]
    worder = [(sg, jj) for sg in range(12) for jj in range(5)]
    wreg = {k: 4 * i for i, k in enumerate(worder)}
    wtok = {}

    def w_load(sg, jj):
        r = wreg[(sg, jj)]
        if jj < 4:
            so, imm = f"s{sPW+sg}", jj * 1024
        else:
            e(f"s_add_u32 s{sT}, s{sPW+sg}, 4096")
            so, imm = f"s{sT}", 0
        wtok[(sg, jj)] = g.vmem(f"buffer_load_dwordx4 a[{r}:{r+3}], v{vL16}, s[{SWS}:{SWS+3}], {so} offen offset:{imm} sc1")

    stream = [(lambda k=k: w_load(*k)) for k in worder]

    def next_load():
        if stream:
            stream.pop(0)()
            return True
        return False

    GS = LNR + 12

    def g_load():
        return f"buffer_load_dwordx4 v[{GS}:{GS+3}], v{vGs}, s[{SWS}:{SWS+3}], 0 offen sc1"

    def g_check():
        e(f"v_xor_b32 v{vF}, s{sN}, v{GS}\nv_xor_b32 v{vF+1}, s{sN}, v{GS+3}\nv_or_b32 v{vF}, v{vF}, v{vF+1}\nv_cmp_eq_u32 vcc, 0, v{vF}\ns_nop 1\ns_cmp_eq_u64 vcc, -1")

    NBUF = 12
    fr = {}
    nfr = [0]
    xt = {}
    ACSA = 192

    def tr_issue(n, t):
        c, j = divmod(n, 4)
        r = FB + 4 * (nfr[0] % NBUF)
        nfr[0] += 1
        va = vT + j + (4 if c >= 5 else 0)
        tok = 0
        for h in range(2):
            if not P.get("nomfma1"):
                tok = g.ds(f"ds_read_b64_tr_b16 v[{r+2*h}:{r+2*h+1}], v{va} offset:{(c % 5)*12288 + t*64 + h*768}")
        fr[(n, t)] = (r, tok)

    def open_chunk(c):
        g.wait(vm=max(xtk[c], wtk[c], w2ptok if c == P["rep_at"] else 0))
        e("s_barrier")
        xb = XFR + 16 * (c % 2)
        for j in range(4):
            xt[(c, j)] = g.ds(f"ds_read_b128 v[{xb+4*j}:{xb+4*j+3}], v{vXr+j} offset:{(c % 2)*4096}")

    WA = P["wahead"]
    if P.get("pure"):
        for cc in range(2, 10):
            if P["pure"] == 1:
                fs = x_dmas(cc) + w_dmas(cc)
            elif P["pure"] == 2:
                fs = x_dmas(cc)
            else:
                fs = w_dmas(cc)
            for f in fs:
                f()
        e("s_branch L_fin")
    for cc in range(2, WA):
        if not P.get("wfirst"):
            for f in w_dmas(cc):
                f()
    q = []
    open_chunk(0)
    for n in (0, 1):
        for t in range(3):
            tr_issue(n, t)
    q += [lambda: g.wait(lg=xt[(0, 3)])] + x_dmas(2)

    def b1l():
        e(f"v_lshlrev_b32 v{vTmp+8}, 1, v{vI}")
        for t in range(3):
            st["b1"] = g.vmem(f"buffer_load_ushort v{vB1+t}, v{vTmp+8}, s[{SB1}:{SB1+3}], s{sC1} offen offset:{t*64}")
        st["gs"] = g.vmem(g_load())

    for n in range(40):
        c, j = divmod(n, 4)
        xb = XFR + 16 * (c % 2)
        if j == 2 and c + 1 < 10:
            if c == 0:
                while q:
                    q.pop(0)()
                do_stats()
            open_chunk(c + 1)
            if c + 1 == P["rep_at"]:
                q.append(repack)
            if c + 3 < 10:
                q += [lambda cc=c: g.wait(lg=xt[(cc + 1, 3)])] + x_dmas(c + 3)
        if j == 0:
            if c + WA < 10:
                q += w_dmas(c + WA)
            if c == P["stat_at"]:
                q.append(send_stats)
            if c == P["pub_at"]:
                q.append(lambda: publish(B_P, st["ps"]))
            if c == P["wp_at"]:
                q.append(lambda: st.__setitem__("wp", g.vmem(w_poll())))
            if c == P["wc_at"]:
                q.append(lambda: spin(lambda: flag_eval(F4, B_P), lambda: e(w_poll()), st["wp"]))
            if c == 7:
                q.append(b1l)
            if c > P["wc_at"]:
                q += [next_load] * P["wl_per"][c - P["wc_at"] - 1]
        for t in range(3):
            r, tok = fr[(n, t)]
            g.wait(lg=max(tok, xt[(c, j)]))
            cin = f"v[{ACC+16*t}:{ACC+16*t+15}]" if n else "0"
            if j == 0 and not P.get("nomfma1"):
                cs = f"a[{ACSA+16*t}:{ACSA+16*t+15}]" if c else "0"
                e(f"v_mfma_f32_32x32x16_bf16 a[{ACSA+16*t}:{ACSA+16*t+15}], v[{vOnes}:{vOnes+3}], v[{r}:{r+3}], {cs}")
            if not P.get("nomfma1"):
                e(f"v_mfma_f32_32x32x16_bf16 v[{ACC+16*t}:{ACC+16*t+15}], v[{r}:{r+3}], v[{xb+4*j}:{xb+4*j+3}], {cin}")
            if n + 2 < 40:
                tr_issue(n + 2, t)
            if q:
                q.pop(0)()
            if n == 37 and t == 2:
                g.nop(6)
                e(f"s_lshl_b32 s{sT}, s{sW}, 2\ns_add_u32 s{sT}, s{sT}, {LDS_STAGE}\nv_lshl_add_u32 v{vTmp+8}, v{vI}, 4, s{sT}")
                for tt in range(3):
                    sw = g.ds(f"ds_write_b32 v{vTmp+8}, a{ACSA+16*tt} offset:{tt*512}")
            if n == 38 and t == 2:
                g.wait(lg=sw)
                e("s_barrier")
                e(f"v_lshlrev_b32 v{vTmp+8}, 4, v{vI}\nv_add_u32 v{vTmp+8}, {LDS_STAGE}, v{vTmp+8}")
                SR = ACS + 4
                for tt in range(3):
                    sr = g.ds(f"ds_read_b128 v[{SR+4*tt}:{SR+4*tt+3}], v{vTmp+8} offset:{tt*512}")
        if j == 3 and c in (0, 1, 3, 5, 7):
            g.stamp(f"chunk{c}")
    while q:
        q.pop(0)()
    g.stamp("gemm1_main")
    if P.get("stop") == 1:
        e("s_branch L_fin")
    spin(g_check, lambda: e(g_load()), st["gs"])
    AU = ACS + 16
    BU = ACS + 28
    TS = ACS + 32
    e(f"v_and_b32 v{TS}, 1, v{vL}\nv_cmp_eq_u32 vcc, 1, v{TS}\ns_nop 1\nv_cndmask_b32 v{TS}, v{GS+1}, v{GS+2}, vcc")
    e(f"v_xor_b32 v{TS}, 0x8000, v{TS}")
    e(f"v_and_b32 v{vR2}, 0xffff0000, v{TS}\nv_rcp_f32 v{vR2}, v{vR2}")
    e(f"v_and_b32 v{TS+1}, 0xffff, v{TS}\nv_lshl_or_b32 v{TS+1}, v{TS+1}, 16, v{TS+1}")
    e(f"v_cmp_gt_u32 vcc, 32, v{vL}\nv_mov_b32 v{vR2+1}, v{vR2}\nv_mov_b32 v{BU+2}, 0\nv_mov_b32 v{BU+3}, 0")
    e(f"v_cndmask_b32 v{BU}, 0, v{TS+1}, vcc\nv_cndmask_b32 v{BU+1}, 0, v{TS}, vcc")
    g.wait(vm=st["b1"], lg=sr)
    for tt in range(3):
        s0 = SR + 4 * tt
        a = AU + 4 * tt
        e(f"v_add_f32 v{s0}, v{s0}, v{s0+1}\nv_add_f32 v{s0+2}, v{s0+2}, v{s0+3}\nv_add_f32 v{s0}, v{s0}, v{s0+2}")
        e(f"v_and_b32 v{s0+1}, 0xffff0000, v{s0}\nv_sub_f32 v{s0}, v{s0}, v{s0+1}")
        e(f"v_and_b32 v{s0+2}, 0xffff0000, v{s0}\nv_sub_f32 v{s0}, v{s0}, v{s0+2}")
        e(f"v_lshrrev_b32 v{s0+1}, 16, v{s0+1}\nv_or_b32 v{a}, v{s0+1}, v{s0+2}")
        e(f"v_lshrrev_b32 v{s0}, 16, v{s0}\nv_lshl_or_b32 v{a+1}, v{vB1+tt}, 16, v{s0}")
        e(f"v_mov_b32 v{a+2}, 0\nv_mov_b32 v{a+3}, 0")
    e("s_nop 1")
    for tt in range(3):
        a = AU + 4 * tt
        e(f"v_mfma_f32_32x32x16_bf16 v[{ACC+16*tt}:{ACC+16*tt+15}], v[{a}:{a+3}], v[{BU}:{BU+3}], v[{ACC+16*tt}:{ACC+16*tt+15}]")
    g.stamp("gemm1_done")

    G = vTmp
    next_load()
    next_load()
    g.nop(8)
    for t in range(3):
        base = ACC + 16 * t
        for half in range(2):
            prs = range(4 * half, 4 * half + 4)
            Z = {pr: base + 2 * pr for pr in prs}
            Tq = {pr: G + 2 * (pr % 8) for pr in prs}
            for pr in prs:
                e(f"v_pk_mul_f32 v[{Z[pr]}:{Z[pr]+1}], v[{Z[pr]}:{Z[pr]+1}], v[{vR2}:{vR2+1}]")
            for pr in prs:
                e(f"v_pk_mul_f32 v[{Tq[pr]}:{Tq[pr]+1}], v[{Z[pr]}:{Z[pr]+1}], v[{Z[pr]}:{Z[pr]+1}]")
            for pr in prs:
                e(f"v_pk_fma_f32 v[{Tq[pr]}:{Tq[pr]+1}], v[{Tq[pr]}:{Tq[pr]+1}], v[{vC2}:{vC2+1}], v[{vC1}:{vC1+1}]")
            for pr in prs:
                e(f"v_pk_mul_f32 v[{Tq[pr]}:{Tq[pr]+1}], v[{Tq[pr]}:{Tq[pr]+1}], v[{Z[pr]}:{Z[pr]+1}]")
            next_load()
            for pr in prs:
                e(f"v_exp_f32 v{Tq[pr]}, v{Tq[pr]}\nv_exp_f32 v{Tq[pr]+1}, v{Tq[pr]+1}")
            for pr in prs:
                e(f"v_pk_add_f32 v[{Tq[pr]}:{Tq[pr]+1}], v[{Tq[pr]}:{Tq[pr]+1}], v[{vOne}:{vOne+1}]")
            next_load()
            for pr in prs:
                e(f"v_rcp_f32 v{Tq[pr]}, v{Tq[pr]}\nv_rcp_f32 v{Tq[pr]+1}, v{Tq[pr]+1}")
            for pr in prs:
                e(f"v_pk_mul_f32 v[{Tq[pr]}:{Tq[pr]+1}], v[{Tq[pr]}:{Tq[pr]+1}], v[{Z[pr]}:{Z[pr]+1}]")
            for pr in prs:
                e(f"v_cvt_pk_bf16_f32 v{base+8*half+(pr%4)}, v{Tq[pr]}, v{Tq[pr]+1}")
            o = base + 8 * half
            htok = g.vmem(f"buffer_store_dwordx4 v[{o}:{o+3}], v{vHs}, s[{SWS}:{SWS+3}], s{sHB} offen offset:{t*1024+half*512} sc1")
            next_load()
        g.stamp(f"gelu{t}")
    for _ in range(P["gl"]):
        next_load()
    publish(B_P | B_H, htok)
    g.stamp("h_published")
    if P.get("stop") == 2:
        e("s_branch L_fin")
    e("s_barrier")

    ACC2 = 176
    HB = [96 + 4 * i for i in range(20)] + [44 + 4 * i for i in range(13)]
    hb_next = [0]
    htoks = {}

    def h_poll():
        return f"buffer_load_dwordx2 v[{vF}:{vF+1}], v{vPh}, s[{SWS}:{SWS+3}], 0 offen sc1"

    def h_load(sg, i):
        r = HB[hb_next[0] % len(HB)]
        hb_next[0] += 1
        e(f"s_add_u32 s{sT}, s{sPH+sg}, s{sMI+i}")
        htoks[(sg, i)] = (r, g.vmem(f"buffer_load_dwordx4 v[{r}:{r+3}], v{vL16}, s[{SWS}:{SWS+3}], s{sT} offen sc1"))

    started = set()

    def mm(sg, i):
        r, tok = htoks[(sg, i)]
        for jj in range(5):
            g.wait(vm=max(tok, wtok[(sg, jj)]))
            c = ACC2 + 20 * i + 4 * jj
            w = wreg[(sg, jj)]
            cin = f"v[{c}:{c+3}]" if (i, jj) in started else "0"
            started.add((i, jj))
            e(f"v_mfma_f32_16x16x32_bf16 v[{c}:{c+3}], a[{w}:{w+3}], v[{r}:{r+3}], {cin}")

    vB2o = vTmp + 10
    e(f"v_lshrrev_b32 v{vB2o}, 4, v{vL}\nv_lshlrev_b32 v{vB2o}, 3, v{vB2o}\ns_mul_i32 s{sT2}, s{sNT}, 160")
    for jj in range(5):
        b2tok = g.vmem(f"buffer_load_dwordx2 v[{vTmp+2*jj}:{vTmp+2*jj+1}], v{vB2o}, s[{SB2}:{SB2+3}], s{sT2} offen offset:{jj*32}")
    F2 = [vF, vF + 1]
    C3 = ACC2 + 60
    vRW = vTmp + 12
    for i in range(3):
        e(f"s_add_u32 s{sT}, s{sW}, {i+1}\ns_and_b32 s{sT}, s{sT}, 3\ns_mul_i32 s{sT}, s{sT}, 15360\ns_add_u32 s{sT}, s{sT}, {i*5120}\nv_add_u32 v{vRW+i}, s{sT}, v{vL16}")
    e(f"s_mul_i32 s{sT}, s{sW}, 15360\nv_add_u32 v{vRW+3}, s{sT}, v{vL16}")
    e(f"v_and_b32 v{vRW+4}, 15, v{vL}\nv_mul_u32_u24 v{vRW+4}, 1280, v{vRW+4}\nv_add_u32 v{vRW+4}, v{vRW+4}, v{vB2o}")
    e(f"s_lshl_b32 s{sT}, s{sMT}, 6\ns_lshl_b32 s{sT3}, s{sW}, 4\ns_add_u32 s{sT}, s{sT}, s{sT3}\ns_mul_i32 s{sT}, s{sT}, 1280\ns_add_u32 s{sHB}, s{sT}, s{sT2}")
    nleft = len(stream)
    for _ in range(max(0, nleft - P['hpoll'])):
        next_load()
    tk = g.vmem(h_poll())
    while next_load():
        pass
    g.stamp("w2_all_issued")
    g.wait(vm=b2tok)
    for jj in range(5):
        c = C3 + 4 * jj
        e(f"v_lshlrev_b32 v{c}, 16, v{vTmp+2*jj}\nv_and_b32 v{c+1}, 0xffff0000, v{vTmp+2*jj}\nv_lshlrev_b32 v{c+2}, 16, v{vTmp+2*jj+1}\nv_and_b32 v{c+3}, 0xffff0000, v{vTmp+2*jj+1}")
        started.add((3, jj))
    spin(lambda: flag_eval(F2, B_H), lambda: e(h_poll()), tk)
    g.stamp("h_flag_ok")
    if P.get("stop") == 3:
        e("s_branch L_fin")
    LAST = P["last"]
    order = [(sg, i) for sg in range(12 - LAST) for i in range(4)] + [(sg, i) for i in range(4) for sg in range(12 - LAST, 12)]
    HA = P["ha"]
    for o in order[:HA]:
        h_load(*o)
    for k, o in enumerate(order):
        if k + HA < len(order):
            h_load(*order[k + HA])
        mm(*o)
        kk = k - 4 * (12 - LAST)
        if kk >= LAST:
            i, p = divmod(kk, LAST)
            jjs = [jj for jj in range(5) if jj * LAST // 5 == p]
            for jj in jjs:
                c = ACC2 + 20 * (i - 1) + 4 * jj
                g.ds(f"ds_write_b128 v{vRW+i-1}, v[{c}:{c+3}] offset:{jj*1024}")
        if k in (0, 15, 31):
            g.stamp(f"g2_{k}")
    g.stamp("gemm2_done")
    g.wait(lg=g.lg)
    e("s_barrier")
    g.stamp("red_barrier")
    R = 96
    rt = {}
    for jj in range(5):
        for i in range(3):
            k = 5 * i + jj
            rt[k] = g.ds(f"ds_read_b128 v[{R+4*k}:{R+4*k+3}], v{vRW+3} offset:{k*1024}")
    for jj in range(5):
        c = C3 + 4 * jj
        for i in range(3):
            k = 5 * i + jj
            g.wait(lg=rt[k])
            e(f"v_pk_add_f32 v[{c}:{c+1}], v[{c}:{c+1}], v[{R+4*k}:{R+4*k+1}]\nv_pk_add_f32 v[{c+2}:{c+3}], v[{c+2}:{c+3}], v[{R+4*k+2}:{R+4*k+3}]")
        e(f"v_cvt_pk_bf16_f32 v{c}, v{c}, v{c+1}\nv_cvt_pk_bf16_f32 v{c+1}, v{c+2}, v{c+3}")
        g.vmem(f"buffer_store_dwordx2 v[{c}:{c+1}], v{vRW+4}, s[{SO}:{SO+3}], s{sHB} offen offset:{jj*32}")
    g.label("L_fin")
    if diag:
        g.stamp("out_issued")
        e("s_waitcnt vmcnt(0)")
        g.stamp("end")
        e("s_memrealtime s[100:101]\ns_waitcnt lgkmcnt(0)\nv_writelane_b32 v0, s100, 63")
        e(f"s_lshl_b32 s{sT}, s2, 2\ns_add_u32 s{sT}, s{sT}, s{sW}\ns_lshl_b32 s{sT}, s{sT}, 8\ns_add_u32 s{sT}, s{sT}, {T0}")
        e(f"v_lshlrev_b32 v{vF}, 2, v{vL}")
        e(f"buffer_store_dword v0, v{vF}, s[{SWS}:{SWS+3}], s{sT} offen")
        open("stampnames.txt", "w").write("\n".join(g.stampnames))
    g.label("L_end")
    e("s_endpgm")
    out += g.L
    out += ['.section .rodata,"a"', ".p2align 6", f".amdhsa_kernel {NAME}",
            "  .amdhsa_next_free_vgpr 512", "  .amdhsa_next_free_sgpr 102", "  .amdhsa_accum_offset 256",
            "  .amdhsa_group_segment_fixed_size 0", "  .amdhsa_kernarg_size 64", "  .amdhsa_user_sgpr_count 2",
            "  .amdhsa_user_sgpr_kernarg_segment_ptr 1", "  .amdhsa_system_sgpr_workgroup_id_x 1", ".end_amdhsa_kernel"]
    return "\n".join(out) + "\n"


if __name__ == "__main__":
    diag = "--diag" in sys.argv
    path = [a for a in sys.argv[1:] if not a.startswith("--")]
    path = path[0] if path else "standalone__mixer_channel_mlp__prompt.s"
    P = {}
    for a in sys.argv[1:]:
        if a.startswith("--p:"):
            k, v = a[4:].split("=")
            P[k] = int(v)
    open(path, "w").write(generate(diag, "--hd" in sys.argv, P))
    print("wrote", path)
```

```python
import sys
from gen import Gen, NAME

W0 = 0
H0 = 4 << 20
F0 = 12 << 20
T0 = 17 << 20
WS_BYTES = 18 << 20

LDS_W1 = 0
LDS_X = 73728
LDS_STAGE = 155648
LDS_BYTES = 163840

SPIN_MAX = 20000
B_P, B_H = 1, 2

DEF = dict(xnt=1, last=2, wp_at=7, wc_at=8, lw=5, ha=8, cw_early=0, rp_at=1, ss_at=5, cp_at=9, pf_at=(5, 6))


def generate(diag=False, P=None):
    P = dict(DEF, **(P or {}))
    g = Gen(diag)
    e = g.e
    SX, SW1, SB1, SW2, SB2, SO, SD, SWS = 4, 8, 12, 16, 20, 24, 28, 32
    sW, sP4 = 36, 37
    sMB, sFT, sQ, sMT, sNT, sJ, sRC = 38, 39, 40, 41, 42, 43, 44
    sN = 45
    sT, sT2, sT3 = 46, 47, 48
    sCNT = 49
    sEX = 50
    sMI = 52
    sLX, sXB, sHB, sIDX = 56, 57, 58, 59
    sC1, sCB, sS2, sWA, sWB, sWC, sWD = 60, 61, 62, 63, 64, 65, 66
    sLW, sW1o, sRX, sONE, sK8 = 67, 68, 69, 70, 71
    sPW = 76
    sPH = 82
    sU1, sU2 = 88, 89
    vL, vL16, vR, vI, vZ = 1, 2, 3, 4, 5
    vFl, vPh = 6, 7
    vF = 8
    vTmp = 12
    vT = 32
    vXr = 36
    vHs, vGs = 40, 41
    vB1 = 42
    vC2, vC1, vOne, vR2 = 46, 48, 50, 52
    XFR = 56
    ACC = 80
    XFR = 56
    GS = 72
    BU = 76
    FBA = 0
    ACSA = 48
    XFA = 96
    AONE = 112
    vXd = 32
    vW1 = 36
    vPo, vXo, vW2o, vP, vPf = 39, 40, 41, 42, 43
    XR = 44
    XF = 56
    A0, A1, A2, A3, S0 = 76, 77, 78, 79, 80
    vMS = 84
    G4 = 86
    PF = 92

    hdr = open("standalone__mixer_channel_mlp__prompt.s.ref").read().split("\n")
    head = []
    for ln in hdr:
        if ln.startswith("; @launch"):
            head.append(f"; @launch grid=(256,1,1) block=(512,1,1) lds={LDS_BYTES}")
            break
        head.append(ln)
    out = head + ['.amdgcn_target "amdgcn-amd-amdhsa--gfx950"', ".text", f".globl {NAME}", ".p2align 8",
                  f".type {NAME},@function", f"{NAME}:"]
    NT = " nt" if P["xnt"] else ""
    XP = " nt" if P.get("xp") else ""
    WP = " nt" if P.get("wp") else ""

    e("s_cmp_ge_u32 s2, 256\ns_cbranch_scc1 L_end")
    if diag:
        e("s_memtime s[98:99]\ns_memrealtime s[100:101]")
    e("s_load_dwordx16 s[76:91], s[0:1], 0")
    e(f"v_and_b32 v{vL}, 63, v0\nv_lshrrev_b32 v{vTmp}, 6, v0\nv_lshlrev_b32 v{vL16}, 4, v{vL}")
    e(f"v_readfirstlane_b32 s{sW}, v{vTmp}")
    e(f"s_and_b32 s{sT}, s2, 7\ns_lshr_b32 s{sIDX}, s2, 3")
    e(f"s_lshr_b32 s{sT2}, s{sT}, 1\ns_and_b32 s{sT3}, s{sT}, 1")
    e(f"s_lshr_b32 s{sRC}, s{sIDX}, 3\ns_lshl_b32 s{sMB}, s{sT2}, 2\ns_add_u32 s{sMB}, s{sMB}, s{sRC}")
    e(f"s_and_b32 s{sT}, s{sIDX}, 7\ns_lshl_b32 s{sFT}, s{sT3}, 3\ns_add_u32 s{sFT}, s{sFT}, s{sT}")
    e(f"s_mul_i32 s{sRC}, s{sRC}, 3\ns_add_u32 s{sRC}, s{sRC}, s{sT}\ns_cmp_ge_u32 s{sRC}, 10\ns_cselect_b32 s{sT}, 10, 0\ns_sub_u32 s{sRC}, s{sRC}, s{sT}")
    if P.get("rot") == 1:
        e(f"s_mov_b32 s{sRC}, 0")
    if P.get("rot") == 2:
        e(f"s_and_b32 s{sRC}, s{sRC}, 1\ns_mul_i32 s{sRC}, s{sRC}, 5")
    e(f"s_lshl_b32 s{sQ}, s{sMB}, 4\ns_add_u32 s{sQ}, s{sQ}, s{sFT}")
    e(f"s_lshr_b32 s{sJ}, s{sIDX}, 2\ns_lshl_b32 s{sMT}, s{sT2}, 3\ns_add_u32 s{sMT}, s{sMT}, s{sJ}")
    e(f"s_and_b32 s{sNT}, s{sIDX}, 3\ns_lshl_b32 s{sT3}, s{sT3}, 2\ns_add_u32 s{sNT}, s{sNT}, s{sT3}")
    e(f"s_and_b32 s{sP4}, s{sW}, 3\nv_lshrrev_b32 v{vR}, 5, v{vL}\nv_and_b32 v{vI}, 31, v{vL}\nv_mov_b32 v{vZ}, 0")
    e(f"s_mul_i32 s{sLX}, s{sP4}, 20480\ns_add_u32 s{sLX}, s{sLX}, {LDS_X}\ns_mul_i32 s{sC1}, s{sFT}, 192")

    names = {}

    def stamp(i, name):
        from gen import LITE
        if diag and not LITE[0]:
            names[i] = name
            e(f"s_memrealtime s[94:95]\ns_waitcnt lgkmcnt(0)\nv_writelane_b32 v0, s94, {i}")
            g.lg_done = g.lg

    def srd(r, k, nbytes):
        e(f"s_mov_b32 s{r}, s{76+2*k}\ns_mov_b32 s{r+1}, s{77+2*k}\ns_mov_b32 s{r+2}, {nbytes}\ns_mov_b32 s{r+3}, 0x00020000")

    def all_srds(order):
        tab = {0: (SX, 2621440), 1: (SW1, 1966080), 2: (SB1, 3072), 3: (SW2, 1966080), 4: (SB2, 1280), 5: (SO, 2621440), 6: (SD, 256), 7: (SWS, WS_BYTES)}
        for k in order:
            srd(tab[k][0], k, tab[k][1])

    def spin(check_emit, load_emit, tok):
        g.wait(vm=tok)
        ok = g.newlab("ok")
        retry = g.newlab("retry")
        check_emit()
        e(f"s_cbranch_scc1 {ok}")
        e(f"s_mov_b32 s{sCNT}, {SPIN_MAX}")
        g.label(retry)
        e(f"s_sub_u32 s{sCNT}, s{sCNT}, 1\ns_cmp_eq_u32 s{sCNT}, 0\ns_cbranch_scc1 {ok}")
        load_emit()
        e("s_waitcnt vmcnt(0)")
        check_emit()
        e(f"s_cbranch_scc0 {retry}")
        g.label(ok)

    def publish(bits, tok):
        e(f"s_or_b32 s{sT}, s{sN}, {bits}\nv_mov_b32 v{vTmp+19}, s{sT}")
        g.wait(vm=tok)
        e(f"s_mov_b64 exec, 1")
        g.vmem(f"buffer_store_dword v{vTmp+19}, v{vFl}, s[{SWS}:{SWS+3}], 0 offen sc1")
        e(f"s_mov_b64 exec, -1")

    def flag_eval(regs, bit):
        m = 0xfffffffc | bit
        e(f"s_or_b32 s{sT}, s{sN}, {bit}")
        for r in regs:
            e(f"v_xor_b32 v{r}, s{sT}, v{r}")
        for r in regs[1:]:
            e(f"v_or_b32 v{regs[0]}, v{regs[0]}, v{r}")
        e(f"v_and_b32 v{regs[0]}, {m:#x}, v{regs[0]}\nv_cmp_eq_u32 vcc, 0, v{regs[0]}\ns_nop 1\ns_cmp_eq_u64 vcc, -1")

    def nonce_load():
        return f"buffer_load_dword v{vF}, v{vZ}, s[{SD}:{SD+3}], 0 offen sc1"

    def nonce_spin(tok):
        spin(lambda: e(f"v_readfirstlane_b32 s{sN}, v{vF}\ns_nop 3\ns_cmp_lg_u32 s{sN}, 0"), lambda: e(nonce_load()), tok)

    def common_setup(vpo):
        e(f"s_lshl_b32 s{sT}, s{sQ}, 7\ns_lshl_b32 s{sT2}, s{sW}, 2\ns_add_u32 s{sT}, s{sT}, s{sT2}\ns_add_u32 s{sT}, s{sT}, {F0+64}\nv_mov_b32 v{vFl}, s{sT}")
        e(f"s_mul_i32 s{sCNT}, s{sJ}, 3\ns_lshr_b32 s{sCNT}, s{sCNT}, 2\ns_mul_i32 s{sU1}, s{sW}, 6\ns_mul_i32 s{sU2}, s{sNT}, 48\ns_add_u32 s{sU2}, s{sU2}, s{sU1}")
        for sg in range(6):
            e(f"s_add_u32 s{sT}, s{sCNT}, s{sU1}\ns_lshl_b32 s{sPH+sg}, s{sT}, 10\ns_add_u32 s{sT}, s{sCNT}, s{sU2}\ns_mul_i32 s{sPW+sg}, s{sT}, 5120\n"
              f"s_add_u32 s{sCNT}, s{sCNT}, 1\ns_cmp_eq_u32 s{sCNT}, 6\ns_cselect_b32 s{sCNT}, 0, s{sCNT}")
        for i in range(4):
            e(f"s_add_u32 s{sT}, s{sW}, {i+1}\ns_and_b32 s{sT}, s{sT}, 3\ns_lshl_b32 s{sT2}, s{sMT}, 2\ns_add_u32 s{sT}, s{sT}, s{sT2}\n"
              f"s_mul_i32 s{sT}, s{sT}, 49152\ns_add_u32 s{sMI+i}, s{sT}, {H0}")
        e(f"v_cmp_le_u32 vcc, 6, v{vL}\ns_mul_i32 s{sT}, s{sNT}, 5\ns_nop 0\nv_cndmask_b32 v{vTmp+7}, 0, 1, vcc")
        e(f"v_lshl_add_u32 v{vTmp+6}, v{vTmp+7}, 2, s{sT}\nv_lshrrev_b32 v{vTmp+6}, 3, v{vTmp+6}\nv_mul_u32_u24 v{vTmp+6}, 48, v{vTmp+6}")
        e(f"v_mul_u32_u24 v{vTmp+7}, 6, v{vTmp+7}\nv_sub_u32 v{vTmp+7}, v{vL}, v{vTmp+7}\nv_add3_u32 v{vTmp+6}, v{vTmp+6}, v{vTmp+7}, s{sU1}")
        e(f"v_cmp_gt_u32 vcc, 12, v{vL}\nv_readfirstlane_b32 s{sT}, v{vTmp+6}\ns_nop 1\nv_mov_b32 v{vTmp+7}, s{sT}\nv_cndmask_b32 v{vpo}, v{vTmp+7}, v{vTmp+6}, vcc")
        e(f"v_lshlrev_b32 v{vpo}, 7, v{vpo}\nv_add_u32 v{vpo}, {F0+64}, v{vpo}")
        e(f"s_lshl_b32 s{sT}, s{sMB}, 4\ns_lshl_b32 s{sT2}, s{sW}, 1\ns_add_u32 s{sT}, s{sT}, s{sT2}\nv_and_b32 v{vTmp+7}, 1, v{vL}\nv_add_u32 v{vTmp+7}, s{sT}, v{vTmp+7}")
        e(f"s_and_b32 s{sT2}, s{sMT}, 1\ns_lshl_b32 s{sT2}, s{sT2}, 3\ns_add_u32 s{sT2}, s{sT2}, {F0+64}\nv_lshlrev_b32 v{vPh}, 7, v{vTmp+7}\nv_add_u32 v{vPh}, s{sT2}, v{vPh}")

    F4 = [vF, vF + 1, vF + 2, vF + 3]
    worder = [(sg, jj) for sg in range(6) for jj in range(5)]
    wreg = {k: 4 * i for i, k in enumerate(worder)}

    def w2_loads(vpo, tokp=None):
        wp = f"buffer_load_dwordx2 v[{vF}:{vF+1}], v{vpo}, s[{SWS}:{SWS+3}], 0 offen sc1"
        if tokp is None:
            tokp = g.vmem(wp)
        spin(lambda: flag_eval(F4[:2], B_P), lambda: e(wp), tokp)
        ops = []
        for (sg, jj) in worder:
            def f(sg=sg, jj=jj):
                r = wreg[(sg, jj)]
                if jj < 4:
                    so, imm = f"s{sPW+sg}", jj * 1024
                else:
                    e(f"s_add_u32 s{sT}, s{sPW+sg}, 4096")
                    so, imm = f"s{sT}", 0
                g.vmem(f"buffer_load_dwordx4 a[{r}:{r+3}], v{vL16}, s[{SWS}:{SWS+3}], {so} offen offset:{imm} sc1")
            ops.append(f)
        return ops

    e(f"s_cmp_lt_u32 s{sW}, 4\ns_cbranch_scc1 L_cpath")
    e(f"v_lshrrev_b32 v{vTmp+6}, 4, v{vL}\nv_bfe_u32 v{vTmp+7}, v{vL}, 3, 1\nv_and_b32 v{vTmp+8}, 7, v{vL}")
    for d in range(2):
        e(f"v_add_u32 v{vTmp+9}, {4*d}, v{vTmp+6}")
        e(f"v_xor_b32 v{vTmp+10}, v{vTmp+8}, v{vTmp+9}\nv_lshl_add_u32 v{vTmp+9}, v{vTmp+7}, 3, v{vTmp+9}")
        e(f"v_mul_u32_u24 v{vTmp+9}, 1280, v{vTmp+9}\nv_lshl_add_u32 v{vXd+d}, v{vTmp+10}, 4, v{vTmp+9}\nv_add_u32 v{vXd+d+2}, {16*1280}, v{vXd+d}")
    e(f"s_lshl_b32 s{sXB}, s{sMB}, 2\ns_add_u32 s{sXB}, s{sXB}, s{sP4}\ns_mul_i32 s{sXB}, s{sXB}, {32*1280}\ns_mul_i32 s{sLW}, s{sP4}, 3072")
    for i in range(3):
        e(f"v_add_u32 v{vTmp+6}, {64*i}, v{vL}\nv_mul_u32_u24 v{vTmp+7}, 5462, v{vTmp+6}\nv_lshrrev_b32 v{vTmp+7}, 16, v{vTmp+7}")
        e(f"v_mul_u32_u24 v{vTmp+8}, 12, v{vTmp+7}\nv_sub_u32 v{vTmp+8}, v{vTmp+6}, v{vTmp+8}")
        e(f"v_mul_u32_u24 v{vTmp+7}, 3072, v{vTmp+7}\nv_lshl_add_u32 v{vW1+i}, v{vTmp+8}, 4, v{vTmp+7}")
    e(f"s_mul_i32 s{sT}, s{sP4}, {16*3072}\ns_add_u32 s{sW1o}, s{sC1}, s{sT}")
    e("s_waitcnt lgkmcnt(0)")
    if diag:
        e("v_writelane_b32 v0, s100, 62\nv_writelane_b32 v0, s100, 0")
    all_srds((0, 1))
    ctok = {}

    def chunk_dmas(c):
        e(f"s_lshl_b32 s{sWC}, s{sRC}, 7\ns_add_u32 s{sWC}, s{sWC}, s{sXB}")
        e(f"s_mul_i32 s{sWD}, s{sRC}, {64*3072}\ns_add_u32 s{sWD}, s{sWD}, s{sW1o}")
        for k in range(4):
            e(f"s_add_u32 m0, s{sLX}, {(c % 5)*4096 + k*1024}")
            e(f"s_add_u32 s{sRC}, s{sRC}, 1" if k == 0 else "s_nop 0")
            g.vmem(f"buffer_load_dwordx4 v{vXd+k}, s[{SX}:{SX+3}], s{sWC} offen{XP} lds")
            if k < 3:
                e(f"s_add_u32 m0, s{sLW}, {LDS_W1 + (c % 6)*12288 + k*1024}")
                e(f"s_cmp_eq_u32 s{sRC}, 10\ns_cselect_b32 s{sRC}, 0, s{sRC}" if k == 0 else "s_nop 0")
                g.vmem(f"buffer_load_dwordx4 v{vW1+k}, s[{SW1}:{SW1+3}], s{sWD} offen{WP} lds")
        ctok[c] = g.vm

    if P.get("ldelay"):
        all_srds((3, 6, 7, 2, 4, 5))
        common_setup(vPo)
    chunk_dmas(0)
    if not P.get("c1late"):
        chunk_dmas(1)
    st = {}
    wl = []
    for c in range(10):
        g.wait(vm=ctok[c])
        e("s_barrier")
        stamp(1 + c, f"open{c}")
        if c == 0 and P.get("c1late"):
            chunk_dmas(1)
        if c + 2 < 10:
            chunk_dmas(c + 2)
        if c == 0 and not P.get("ldelay"):
            all_srds((3, 6, 7, 2, 4, 5))
        if c == 1 and not P.get("ldelay"):
            common_setup(vPo)
        if c == 2:
            e(f"s_sub_u32 s{sT}, s{sJ}, s{sW}\ns_mul_i32 s{sT}, s{sT}, {6*128}\nv_add_u32 v{vPf}, s{sT}, v{vPo}")
            e(f"s_mul_i32 s{sT}, s{sNT}, 48\ns_mul_i32 s{sT2}, s{sJ}, 6\ns_add_u32 s{sT}, s{sT}, s{sT2}\ns_mul_i32 s{sT}, s{sT}, 5120\ns_mul_i32 s{sT2}, s{sP4}, 7680\ns_add_u32 s{sWA}, s{sT}, s{sT2}")
            st["nt"] = g.vmem(nonce_load())
        if c == 3:
            nonce_spin(st["nt"])
        if c in P["pf_at"]:
            g.wait(vm=st["pf"])
            lab = g.newlab("nopf")
            flag_eval([vF + 2, vF + 3], B_P)
            e(f"s_cbranch_scc0 {lab}")
            e(f"s_cmp_eq_u32 s{sWA}, -1\ns_cbranch_scc1 {lab}")
            for k in range(8):
                if k == 4:
                    e(f"s_add_u32 s{sWA}, s{sWA}, 4096")
                if k < 7:
                    e(f"buffer_load_dwordx4 v[{64+4*k}:{67+4*k}], v{vL16}, s[{SWS}:{SWS+3}], s{sWA} offen offset:{(k%4)*1024} sc1")
                else:
                    e(f"buffer_load_dwordx4 v[{64+4*k}:{67+4*k}], v{vL16}, s[{SWS}:{SWS+3}], s{sWA} offen offset:{2*1024+512} sc1")
            e(f"s_mov_b32 s{sWA}, -1")
            g.label(lab)
        if c + 1 in P["pf_at"]:
            st["pf"] = g.vmem(f"buffer_load_dwordx2 v[{vF+2}:{vF+3}], v{vPf}, s[{SWS}:{SWS+3}], 0 offen sc1")
        if c == P["wp_at"]:
            st["wp"] = g.vmem(f"buffer_load_dwordx2 v[{vF}:{vF+1}], v{vPo}, s[{SWS}:{SWS+3}], 0 offen sc1")
        if c == P["wc_at"]:
            wl = w2_loads(vPo, st["wp"])
        if c >= P["wc_at"]:
            for _ in range(P["lw"]):
                wl.pop(0)()
    e("s_barrier")
    stamp(11, "sbar")
    while wl:
        wl.pop(0)()
    stamp(12, "gemm1_done/Lw2issued")
    e("s_barrier")
    stamp(15, "deadbar")
    e("s_branch L_join")

    g.label("L_cpath")
    g.vm_done = g.vm
    g.lg_done = g.lg
    cXo, cW2o, cP = 54, 55, 45 - 45 + 31
    cP = 30
    cXR, cXF = 72 - 72 + 120 - 120 + 0, 0
    cA0, cA1, cA2, cA3, cS0 = ACC + 30, ACC + 31, ACC + 32, ACC + 33, ACC + 34
    cMS, cG4 = ACC + 38, ACC + 40
    cPF = XFR
    e(f"v_mul_u32_u24 v{cXo}, 1280, v{vR}\nv_lshl_add_u32 v{cXo}, v{vI}, 3, v{cXo}")
    e(f"s_lshl_b32 s{sT}, s{sQ}, 3\ns_lshl_b32 s{sT2}, s{sW}, 1\ns_add_u32 s{sT}, s{sT}, s{sT2}\ns_mul_i32 s{sWC}, s{sT}, 1280")
    e(f"s_mul_i32 s{sCB}, s{sQ}, 1366\ns_lshr_b32 s{sCB}, s{sCB}, 16\ns_mul_i32 s{sT3}, s{sCB}, 48\ns_sub_u32 s{sS2}, s{sQ}, s{sT3}")
    e(f"v_lshrrev_b32 v{cW2o}, 3, v{vL}\nv_mul_u32_u24 v{cW2o}, 1280, v{cW2o}\nv_and_b32 v{vTmp+6}, 7, v{vL}\nv_lshl_add_u32 v{cW2o}, v{vTmp+6}, 4, v{cW2o}")
    e(f"s_mul_i32 s{sWD}, s{sS2}, {32*1280}\ns_lshl_b32 s{sT2}, s{sCB}, 8\ns_add_u32 s{sWD}, s{sWD}, s{sT2}\ns_lshl_b32 s{sT2}, s{sW}, 7\ns_add_u32 s{sWD}, s{sWD}, s{sT2}")
    e(f"s_cmp_ge_u32 s{sQ}, 240\ns_cselect_b32 s{sK8}, 1, 0\ns_lshr_b32 s{sT}, s{sW}, 1\ns_or_b32 s{sK8}, s{sK8}, s{sT}")
    e("s_waitcnt lgkmcnt(0)")
    if diag:
        e("v_writelane_b32 v0, s100, 62\nv_writelane_b32 v0, s100, 0")
    all_srds((0, 3, 6))
    lab = g.newlab("nononce")
    e(f"s_or_b32 s{sT}, s2, s{sW}\ns_cmp_lg_u32 s{sT}, 0\ns_cbranch_scc1 {lab}")
    e(f"s_memrealtime s[{sEX}:{sEX+1}]\ns_waitcnt lgkmcnt(0)")
    e(f"s_lshl_b32 s{sT}, s{sEX}, 2\ns_or_b32 s{sT}, s{sT}, 0x80000000\nv_mov_b32 v{vTmp+4}, s{sT}")
    e(f"s_mov_b64 exec, 1")
    e(f"buffer_store_dword v{vTmp+4}, v{vZ}, s[{SD}:{SD+3}], 0 offen sc1")
    e(f"s_mov_b64 exec, -1")
    g.label(lab)
    lab_np = g.newlab("nopiece")
    e(f"s_cmp_lg_u32 s{sK8}, 0\ns_cbranch_scc1 {lab_np}")
    e(f"s_lshl_b32 s{sT2}, s{sW}, 12\ns_add_u32 m0, s{sT2}, {LDS_STAGE}")
    for d in range(4):
        e(f"s_add_u32 m0, m0, 1024\ns_add_u32 s{sWD}, s{sWD}, {8*1280}" if d else "s_nop 0")
        e(f"buffer_load_dwordx4 v{cW2o}, s[{SW2}:{SW2+3}], s{sWD} offen{NT} lds")
    g.label(lab_np)
    for j in range(5):
        xtok = g.vmem(f"buffer_load_dwordx2 a[{116+2*j}:{117+2*j}], v{cXo}, s[{SX}:{SX+3}], s{sWC} offen offset:{256*j}")
    all_srds((1, 7, 2, 4, 5))
    e(f"v_lshlrev_b32 v{vTmp+7}, 3, v{vR}\nv_bfe_u32 v{vTmp+6}, v{vL}, 2, 2\nv_add_u32 v{vTmp+7}, v{vTmp+7}, v{vTmp+6}")
    e(f"v_mul_u32_u24 v{vTmp+7}, 192, v{vTmp+7}\nv_bfe_u32 v{vTmp+6}, v{vL}, 4, 1\nv_lshl_add_u32 v{vTmp+7}, v{vTmp+6}, 5, v{vTmp+7}")
    e(f"v_and_b32 v{vTmp+6}, 3, v{vL}\nv_lshl_add_u32 v{vTmp+7}, v{vTmp+6}, 3, v{vTmp+7}")
    e(f"v_and_b32 v{vTmp+8}, 7, v{vL}\nv_bfe_u32 v{vTmp+6}, v{vL}, 4, 1\nv_lshl_add_u32 v{vTmp+9}, v{vTmp+6}, 3, v{vTmp+8}\nv_lshlrev_b32 v{vTmp+9}, 8, v{vTmp+9}")
    e(f"v_bfe_u32 v{vTmp+6}, v{vL}, 3, 1\nv_lshl_add_u32 v{vTmp+9}, v{vTmp+6}, 7, v{vTmp+9}\nv_add_u32 v{vTmp+9}, s{sLX}, v{vTmp+9}")
    for j in range(4):
        e(f"s_add_u32 s{sT}, s{sW}, {j}\ns_and_b32 s{sT}, s{sT}, 3\ns_mul_i32 s{sT2}, s{sT}, 3072\nv_add_u32 v{vT+j}, s{sT2}, v{vTmp+7}")
        e(f"s_lshl_b32 s{sT}, s{sT}, 1\nv_add_u32 v{vTmp+6}, s{sT}, v{vR}\nv_xor_b32 v{vTmp+6}, v{vTmp+6}, v{vTmp+8}\nv_lshl_add_u32 v{vXr+j}, v{vTmp+6}, 4, v{vTmp+9}")
    e(f"v_mov_b32 v{vTmp}, 0x3f803f80")
    for k in range(4):
        e(f"v_accvgpr_write_b32 a{AONE+k}, v{vTmp}")
    vPoC = 45
    common_setup(vPoC)
    e(f"s_lshl_b32 s{sT}, s{sMB}, 4\ns_lshl_b32 s{sT2}, s{sW}, 2\ns_add_u32 s{sT}, s{sT}, s{sT2}")
    e(f"v_lshrrev_b32 v{vTmp+7}, 3, v{vI}\nv_add_u32 v{vTmp+7}, s{sT}, v{vTmp+7}\nv_lshlrev_b32 v{vGs}, 7, v{vTmp+7}\nv_bfe_u32 v{vTmp+7}, v{vI}, 1, 2\nv_lshl_add_u32 v{vGs}, v{vTmp+7}, 4, v{vGs}\nv_add_u32 v{vGs}, {F0}, v{vGs}")
    e(f"v_bfe_u32 v{vTmp+6}, v{vL}, 4, 1\nv_mul_u32_u24 v{vHs}, 49152, v{vTmp+6}\nv_lshl_add_u32 v{vHs}, v{vR}, 8, v{vHs}")
    e(f"v_and_b32 v{vTmp+6}, 15, v{vL}\nv_lshl_add_u32 v{vHs}, v{vTmp+6}, 4, v{vHs}")
    e(f"s_lshl_b32 s{sT}, s{sMB}, 3\ns_lshl_b32 s{sT2}, s{sW}, 1\ns_add_u32 s{sT}, s{sT}, s{sT2}\ns_mul_i32 s{sT}, s{sT}, 49152\n"
      f"s_mul_i32 s{sT2}, s{sFT}, 3072\ns_add_u32 s{sT}, s{sT}, s{sT2}\ns_add_u32 s{sHB}, s{sT}, {H0}")
    e(f"v_mov_b32 v{vC2}, 0xbdd2d3e8\nv_mov_b32 v{vC2+1}, 0xbdd2d3e8\nv_mov_b32 v{vC1}, 0xc0135761\nv_mov_b32 v{vC1+1}, 0xc0135761\nv_mov_b32 v{vOne}, 1.0\nv_mov_b32 v{vOne+1}, 1.0")
    e(f"v_mov_b32 v{BU+2}, 0\nv_mov_b32 v{BU+3}, 0")
    e(f"v_lshlrev_b32 v{cP}, 11, v{vR}\nv_bfe_u32 v{vTmp+6}, v{vL}, 4, 1\nv_lshl_add_u32 v{cP}, v{vTmp+6}, 9, v{cP}")
    e(f"v_bfe_u32 v{vTmp+6}, v{vL}, 2, 2\nv_lshl_add_u32 v{cP}, v{vTmp+6}, 7, v{cP}\nv_and_b32 v{vTmp+6}, 3, v{vL}\nv_lshl_add_u32 v{cP}, v{vTmp+6}, 3, v{cP}")
    e(f"s_and_b32 s{sT}, s{sW}, 1\ns_lshl_b32 s{sT}, s{sT}, 12\ns_add_u32 s{sT}, s{sT}, {LDS_STAGE}\nv_add_u32 v{cP}, s{sT}, v{cP}\ns_mov_b32 s{sONE}, 0x3f803f80")
    sWS4 = (sWA, sWB, sWC, sWD)
    wsoff = []
    for ee in range(4):
        wsoff.append(f"s_lshl_b32 s{sT}, s{sCB}, 3\ns_lshl_b32 s{sT2}, s{sW}, 2\ns_add_u32 s{sT}, s{sT}, s{sT2}\ns_add_u32 s{sT}, s{sT}, {ee}\n"
          f"s_mul_i32 s{sT2}, s{sT}, 13108\ns_lshr_b32 s{sT2}, s{sT2}, 16\ns_mul_i32 s{sT3}, s{sT2}, 5\ns_sub_u32 s{sT}, s{sT}, s{sT3}\n"
          f"s_mul_i32 s{sT2}, s{sT2}, 48\ns_add_u32 s{sT2}, s{sT2}, s{sS2}\ns_mul_i32 s{sT2}, s{sT2}, 5\ns_add_u32 s{sT}, s{sT}, s{sT2}\n"
          f"s_lshl_b32 s{sT}, s{sT}, 10\ns_cmp_lg_u32 s{sK8}, 0\ns_cselect_b32 s{sWS4[ee]}, {WS_BYTES}, s{sT}")
    for x_ in wsoff:
        e(x_)

    def reduce32(a, t, fill):
        def pad():
            e(fill.pop(0) if fill else "s_nop 1")
        for r in (8, 4, 2, 1):
            pad()
            e(f"v_add_f32_dpp v{a}, v{a}, v{a} row_ror:{r} row_mask:0xf bank_mask:0xf")
        e(f"v_mov_b32 v{t}, v{a}")
        pad()
        e(f"v_permlane16_swap_b32 v{a}, v{t}")
        pad()
        e(f"v_add_f32 v{a}, v{a}, v{t}")

    RW = 116

    def do_repack():
        g.wait(vm=xtok)
        for rnd in range(2):
            for ee in range(2):
                for h in range(2):
                    t = g.ds(f"ds_read_b64_tr_b16 v[{vTmp+4*ee+2*h}:{vTmp+4*ee+2*h+1}], v{cP} offset:{(2*rnd+ee)*32 + h*1024}")
            g.wait(lg=t)
            for ee in range(2):
                st["ps"] = g.vmem(f"buffer_store_dwordx4 v[{vTmp+4*ee}:{vTmp+4*ee+3}], v{vL16}, s[{SWS}:{SWS+3}], s{sWS4[2*rnd+ee]} offen sc1")
            if rnd == 0:
                g.nop(2)
        st["nt"] = g.vmem(nonce_load())

    def do_stats():
        X = vTmp
        a0, a1, a2, t0, t1, s0, s1 = vTmp + 10, vTmp + 11, vTmp + 12, vTmp + 13, vTmp + 14, vTmp + 15, vTmp + 16
        g.wait(vm=xtok)
        for j in range(10):
            e(f"v_accvgpr_read_b32 v{X+j}, a{RW+j}")
        for j in range(10):
            e(f"v_lshlrev_b32 v{t0}, 16, v{X+j}\nv_and_b32 v{t1}, 0xffff0000, v{X+j}")
            e(f"v_add_f32 v{a0}, v{a0}, v{t0}\nv_add_f32 v{a1}, v{a1}, v{t1}" if j else f"v_mov_b32 v{a0}, v{t0}\nv_mov_b32 v{a1}, v{t1}")
        e(f"v_add_f32 v{a0}, v{a0}, v{a1}")
        reduce32(a0, a1, [])
        e(f"v_mul_f32 v{a0}, 0x3acccccd, v{a0}")
        e(f"v_cvt_pk_bf16_f32 v{a2}, v{a0}, v{a0}\nv_lshlrev_b32 v{a2}, 16, v{a2}")
        e(f"v_sub_f32 v{a0}, v{a0}, v{a2}")
        for j in range(10):
            e(f"v_lshlrev_b32 v{t0}, 16, v{X+j}\nv_and_b32 v{t1}, 0xffff0000, v{X+j}\nv_sub_f32 v{t0}, v{t0}, v{a2}\nv_sub_f32 v{t1}, v{t1}, v{a2}")
            e(f"v_fmac_f32 v{s0}, v{t0}, v{t0}\nv_fmac_f32 v{s1}, v{t1}, v{t1}" if j else f"v_mul_f32 v{s0}, v{t0}, v{t0}\nv_mul_f32 v{s1}, v{t1}, v{t1}")
        e(f"v_add_f32 v{s0}, v{s0}, v{s1}")
        reduce32(s0, s1, [])
        e(f"v_mul_f32 v{s0}, 0x3acccccd, v{s0}")
        e(f"v_fma_f32 v{s0}, -v{a0}, v{a0}, v{s0}\nv_max_f32 v{s0}, 0, v{s0}")
        e(f"v_cvt_pk_bf16_f32 v{s0}, v{s0}, v{s0}\nv_lshlrev_b32 v{s0}, 16, v{s0}")
        e(f"v_add_f32 v{s0}, 0x3727c5ac, v{s0}")
        e(f"v_cvt_pk_bf16_f32 v{s0}, v{s0}, v{s0}\nv_lshlrev_b32 v{s0}, 16, v{s0}")
        e(f"v_sqrt_f32 v{s0}, v{s0}\ns_nop 0")
        e(f"v_cvt_pk_bf16_f32 v{GS}, v{a2}, v{s0}")

    def send_stats():
        nonce_spin(st["nt"])
        g4 = vTmp + 10
        e(f"v_readlane_b32 s{sT}, v{GS}, 32\nv_mov_b32 v{g4}, s{sN}\nv_mov_b32 v{g4+1}, v{GS}\nv_mov_b32 v{g4+3}, s{sN}\nv_mov_b32 v{g4+2}, s{sT}")
        e(f"s_lshl_b32 s{sT}, s{sQ}, 7\ns_lshl_b32 s{sT2}, s{sW}, 4\ns_add_u32 s{sT}, s{sT}, s{sT2}\ns_add_u32 s{sT}, s{sT}, {F0}\nv_mov_b32 v{g4+4}, s{sT}")
        e(f"s_mov_b64 exec, 1")
        g.vmem(f"buffer_store_dwordx4 v[{g4}:{g4+3}], v{g4+4}, s[{SWS}:{SWS+3}], 0 offen sc1")
        e(f"s_mov_b64 exec, -1")

    NBUF = 12
    fr, xt = {}, {}
    nfr = [0]

    def xreg(c, j):
        return f"v[{XFR+4*j}:{XFR+4*j+3}]" if c % 2 == 0 else f"a[{XFA+4*j}:{XFA+4*j+3}]"

    def tr_issue(n, t):
        c, j = divmod(n, 4)
        r = FBA + 4 * (nfr[0] % NBUF)
        nfr[0] += 1
        for h in range(2):
            tok = g.ds(f"ds_read_b64_tr_b16 a[{r+2*h}:{r+2*h+1}], v{vT+j} offset:{(c % 6)*12288 + t*64 + h*768}")
        fr[(n, t)] = (r, tok)

    def open_chunk(c):
        if c:
            g.wait(lg=xt[(c - 1, 3)])
        e("s_barrier")
        stamp(1 + c, f"open{c}")
        for j in range(4):
            xt[(c, j)] = g.ds(f"ds_read_b128 {xreg(c, j)}, v{vXr+j} offset:{(c % 5)*4096}")

    def g_load():
        return f"buffer_load_dwordx4 v[{GS}:{GS+3}], v{vGs}, s[{SWS}:{SWS+3}], 0 offen sc1"

    def g_check():
        e(f"v_xor_b32 v{vF}, s{sN}, v{GS}\nv_xor_b32 v{vF+1}, s{sN}, v{GS+3}\nv_or_b32 v{vF}, v{vF}, v{vF+1}\nv_cmp_eq_u32 vcc, 0, v{vF}\ns_nop 1\ns_cmp_eq_u64 vcc, -1")

    TS = vTmp + 14
    if P.get("early"):
        do_repack()
        stamp(25, "repacked")
        do_stats()
        stamp(26, "stats_done")
    open_chunk(0)
    for n in (0, 1):
        for t in range(3):
            tr_issue(n, t)
    for n in range(40):
        c, j = divmod(n, 4)
        if j == 2 and c + 1 < 10:
            open_chunk(c + 1)
        for t in range(3):
            r, tok = fr[(n, t)]
            g.wait(lg=max(tok, xt[(c, j)]))
            cin = f"v[{ACC+16*t}:{ACC+16*t+15}]" if n else "0"
            if j == 0 and P.get("s4", 1):
                cs = f"a[{ACSA+4*t}:{ACSA+4*t+3}]" if c else "0"
                e(f"v_mfma_f32_4x4x4_16b_bf16 a[{ACSA+4*t}:{ACSA+4*t+3}], a[{AONE}:{AONE+1}], a[{r}:{r+1}], {cs}")
            elif j == 0:
                cs = f"a[{ACSA+16*t}:{ACSA+16*t+15}]" if c else "0"
                e(f"v_mfma_f32_32x32x16_bf16 a[{ACSA+16*t}:{ACSA+16*t+15}], a[{AONE}:{AONE+3}], a[{r}:{r+3}], {cs}")
            if P.get("fake16"):
                for u in range(2):
                    d = ACC + 16*t + 4*u + 8*(n % 2)
                    e(f"v_mfma_f32_16x16x32_bf16 v[{d}:{d+3}], a[{r}:{r+3}], {xreg(c, j)}, v[{d}:{d+3}]")
            else:
                e(f"v_mfma_f32_32x32x16_bf16 v[{ACC+16*t}:{ACC+16*t+15}], a[{r}:{r+3}], {xreg(c, j)}, {cin}")
            if n + 2 < 40:
                tr_issue(n + 2, t)
            if j == 0 and P.get("s4", 1):
                e(f"v_mfma_f32_4x4x4_16b_bf16 a[{ACSA+4*t}:{ACSA+4*t+3}], a[{AONE}:{AONE+1}], a[{r+2}:{r+3}], a[{ACSA+4*t}:{ACSA+4*t+3}]")
            if n == P["rp_at"] and t == 2 and not P.get("early"):
                do_repack()
            if n == P["ss_at"] and t == 2:
                if not P.get("early"):
                    do_stats()
                send_stats()
            if n == P["cp_at"] and t == 0:
                publish(B_P, st["ps"])
            if n == 37 and t == 0:
                st["wpt"] = g.vmem(f"buffer_load_dwordx2 v[{vF}:{vF+1}], v{vPoC}, s[{SWS}:{SWS+3}], 0 offen sc1")
            if n == 20 and t == 0:
                e(f"v_lshlrev_b32 v{vTmp+8}, 1, v{vI}")
                for tt in range(3):
                    st["b1"] = g.vmem(f"buffer_load_ushort v{vB1+tt}, v{vTmp+8}, s[{SB1}:{SB1+3}], s{sC1} offen offset:{tt*64}")
            if n == 28 and t == 0:
                st["gs"] = g.vmem(g_load())
            if n == 36 and t == 0:
                spin(g_check, lambda: e(g_load()), st["gs"])
                e(f"v_and_b32 v{TS}, 1, v{vL}\nv_cmp_eq_u32 vcc, 1, v{TS}\ns_nop 1\nv_cndmask_b32 v{TS}, v{GS+1}, v{GS+2}, vcc")
                e(f"v_xor_b32 v{TS}, 0x8000, v{TS}")
                e(f"v_and_b32 v{vR2}, 0xffff0000, v{TS}\nv_rcp_f32 v{vR2}, v{vR2}")
                e(f"v_and_b32 v{TS+1}, 0xffff, v{TS}\nv_lshl_or_b32 v{TS+1}, v{TS+1}, 16, v{TS+1}")
                e(f"v_cmp_gt_u32 vcc, 32, v{vL}\nv_mov_b32 v{vR2+1}, v{vR2}\ns_nop 0")
                e(f"v_cndmask_b32 v{BU}, 0, v{TS+1}, vcc\nv_cndmask_b32 v{BU+1}, 0, v{TS}, vcc")
            if n == 37 and t == 2:
                g.nop(6)
                e(f"s_lshl_b32 s{sT}, s{sW}, 3\ns_add_u32 s{sT}, s{sT}, {LDS_STAGE}\nv_lshl_add_u32 v{vTmp+8}, v{vI}, 5, s{sT}\nv_lshl_add_u32 v{vTmp+8}, v{vR}, 2, v{vTmp+8}")
                for tt in range(3):
                    sw = g.ds(f"ds_write_b32 v{vTmp+8}, a{ACSA+(4 if P.get('s4', 1) else 16)*tt} offset:{tt*1024}")
            if n == 38 and t == 2:
                g.wait(lg=sw)
                e("s_barrier")
                stamp(11, "sbar")
                e(f"v_lshlrev_b32 v{vTmp+8}, 5, v{vI}\nv_lshl_add_u32 v{vTmp+8}, v{vR}, 4, v{vTmp+8}\nv_add_u32 v{vTmp+8}, {LDS_STAGE}, v{vTmp+8}")
                SR = XFR
                for tt in range(3):
                    sr = g.ds(f"ds_read_b128 v[{SR+4*tt}:{SR+4*tt+3}], v{vTmp+8} offset:{tt*1024}")
    g.wait(vm=st["b1"], lg=sr)
    AU = vTmp
    for tt in range(3):
        s0 = SR + 4 * tt
        a = AU + 4 * tt
        e(f"v_add_f32 v{s0}, v{s0}, v{s0+1}\nv_add_f32 v{s0+2}, v{s0+2}, v{s0+3}\nv_add_f32 v{s0}, v{s0}, v{s0+2}")
        e(f"v_mov_b32 v{s0+1}, v{s0}\ns_nop 1\nv_permlane32_swap_b32 v{s0}, v{s0+1}\ns_nop 1\nv_add_f32 v{s0}, v{s0}, v{s0+1}")
        if not P.get("s4", 1):
            e(f"v_mul_f32 v{s0}, 0.5, v{s0}")
        e(f"v_and_b32 v{s0+1}, 0xffff0000, v{s0}\nv_sub_f32 v{s0}, v{s0}, v{s0+1}")
        e(f"v_and_b32 v{s0+2}, 0xffff0000, v{s0}\nv_sub_f32 v{s0}, v{s0}, v{s0+2}")
        e(f"v_lshrrev_b32 v{s0+1}, 16, v{s0+1}\nv_or_b32 v{a}, v{s0+1}, v{s0+2}")
        e(f"v_lshrrev_b32 v{s0}, 16, v{s0}\nv_lshl_or_b32 v{a+1}, v{vB1+tt}, 16, v{s0}")
        e(f"v_mov_b32 v{a+2}, 0\nv_mov_b32 v{a+3}, 0\ns_nop 1")
        e(f"v_mfma_f32_32x32x16_bf16 v[{ACC+16*tt}:{ACC+16*tt+15}], v[{a}:{a+3}], v[{BU}:{BU+3}], v[{ACC+16*tt}:{ACC+16*tt+15}]")
    wpt = st["wpt"]
    stamp(12, "gemm1_done/Lw2issued")
    G = XFR
    wl = w2_loads(vPoC, wpt) if P["cw_early"] else None
    for t in range(3):
        base = ACC + 16 * t
        for half in range(2):
            prs = range(4 * half, 4 * half + 4)
            Z = {pr: base + 2 * pr for pr in prs}
            Tq = {pr: G + 2 * (pr % 8) for pr in prs}
            for pr in prs:
                e(f"v_pk_mul_f32 v[{Z[pr]}:{Z[pr]+1}], v[{Z[pr]}:{Z[pr]+1}], v[{vR2}:{vR2+1}]")
            for pr in prs:
                e(f"v_pk_mul_f32 v[{Tq[pr]}:{Tq[pr]+1}], v[{Z[pr]}:{Z[pr]+1}], v[{Z[pr]}:{Z[pr]+1}]")
            for pr in prs:
                e(f"v_pk_fma_f32 v[{Tq[pr]}:{Tq[pr]+1}], v[{Tq[pr]}:{Tq[pr]+1}], v[{vC2}:{vC2+1}], v[{vC1}:{vC1+1}]")
            for pr in prs:
                e(f"v_pk_mul_f32 v[{Tq[pr]}:{Tq[pr]+1}], v[{Tq[pr]}:{Tq[pr]+1}], v[{Z[pr]}:{Z[pr]+1}]")
            for pr in prs:
                e(f"v_exp_f32 v{Tq[pr]}, v{Tq[pr]}\nv_exp_f32 v{Tq[pr]+1}, v{Tq[pr]+1}")
            for pr in prs:
                e(f"v_pk_add_f32 v[{Tq[pr]}:{Tq[pr]+1}], v[{Tq[pr]}:{Tq[pr]+1}], v[{vOne}:{vOne+1}]")
            for pr in prs:
                e(f"v_rcp_f32 v{Tq[pr]}, v{Tq[pr]}\nv_rcp_f32 v{Tq[pr]+1}, v{Tq[pr]+1}")
            for pr in prs:
                e(f"v_pk_mul_f32 v[{Tq[pr]}:{Tq[pr]+1}], v[{Tq[pr]}:{Tq[pr]+1}], v[{Z[pr]}:{Z[pr]+1}]")
            for pr in prs:
                e(f"v_cvt_pk_bf16_f32 v{base+8*half+(pr%4)}, v{Tq[pr]}, v{Tq[pr]+1}")
            o = base + 8 * half
            htok = g.vmem(f"buffer_store_dwordx4 v[{o}:{o+3}], v{vHs}, s[{SWS}:{SWS+3}], s{sHB} offen offset:{t*1024+half*512} sc1")
            for _ in range(P["cw_early"]):
                wl.pop(0)()
    stamp(13, "gelu_done")
    if wl is None:
        wl = w2_loads(vPoC, wpt)
    for _ in range(6):
        wl.pop(0)()
    publish(B_P | B_H, htok)
    stamp(14, "h_pub")
    e("s_barrier")
    stamp(15, "deadbar")
    while wl:
        wl.pop(0)()

    g.label("L_join")
    g.vm_done = 0
    g.lg_done = g.lg
    base_vm = g.vm
    ACC2 = 48
    HB = [f"v[{r}:{r+3}]" for r in (24, 28, 32, 36, 40, 44)] + ["a[120:123]", "a[124:127]"]
    vB2o, vRd, vOo = 12, 13, 14
    vRW = 16
    hb_next = [0]
    htoks = {}

    def h_poll():
        return f"buffer_load_dwordx2 v[{vF}:{vF+1}], v{vPh}, s[{SWS}:{SWS+3}], 0 offen sc1"

    def h_load(sg, i):
        r = HB[hb_next[0] % len(HB)]
        hb_next[0] += 1
        e(f"s_add_u32 s{sT}, s{sPH+sg}, s{sMI+i}")
        htoks[(sg, i)] = (r, g.vmem(f"buffer_load_dwordx4 {r}, v{vL16}, s[{SWS}:{SWS+3}], s{sT} offen sc1"))

    started = set()

    def mm(sg, i):
        r, tok = htoks[(sg, i)]
        g.wait(vm=tok)
        for jj in range(5):
            c = ACC2 + 20 * i + 4 * jj
            w = wreg[(sg, jj)]
            cin = f"v[{c}:{c+3}]" if (i, jj) in started else "0"
            started.add((i, jj))
            e(f"v_mfma_f32_16x16x32_bf16 v[{c}:{c+3}], a[{w}:{w+3}], {r}, {cin}")

    stamp(16, "join")
    tk = g.vmem(h_poll())
    for i in range(4):
        e(f"s_add_u32 s{sT}, s{sW}, {i+1}\ns_and_b32 s{sT}, s{sT}, 3\ns_mul_i32 s{sT2}, s{sT}, {5*7*1024}\ns_sub_u32 s{sT}, s{sW}, s{sT}\ns_sub_u32 s{sT}, s{sT}, 1")
        for d in range(2):
            e(f"s_sub_u32 s{sT3}, s{sT}, {4*d}\ns_and_b32 s{sT3}, s{sT3}, 7\ns_lshl_b32 s{sT3}, s{sT3}, 10\ns_add_u32 s{sT3}, s{sT3}, s{sT2}\nv_add_u32 v{vRW+2*i+d}, s{sT3}, v{vL16}")
    e(f"s_mul_i32 s{sT}, s{sP4}, {5*7*1024}\nv_add_u32 v{vRd}, s{sT}, v{vL16}")
    e(f"v_lshrrev_b32 v{vB2o}, 4, v{vL}\nv_lshlrev_b32 v{vB2o}, 3, v{vB2o}\ns_mul_i32 s{sK8}, s{sNT}, 160")
    e(f"v_and_b32 v{vOo}, 15, v{vL}\nv_mul_u32_u24 v{vOo}, 1280, v{vOo}\nv_add_u32 v{vOo}, v{vOo}, v{vB2o}")
    e(f"s_lshl_b32 s{sT}, s{sMT}, 6\ns_lshl_b32 s{sT3}, s{sP4}, 4\ns_add_u32 s{sT}, s{sT}, s{sT3}\ns_mul_i32 s{sT}, s{sT}, 1280\ns_add_u32 s{sHB}, s{sT}, s{sK8}")
    spin(lambda: flag_eval([vF, vF + 1], B_H), lambda: e(h_poll()), tk)
    stamp(17, "h_flag_ok")
    LAST = P["last"]
    order = [(sg, i) for sg in range(6 - LAST) for i in range(4)] + [(sg, i) for i in range(4) for sg in range(6 - LAST, 6)]
    HA = min(P["ha"], len(HB) - 1)
    for o in order[:HA]:
        h_load(*o)
    for k, o in enumerate(order):
        mm(*o)
        if k + HA < len(order):
            h_load(*order[k + HA])
        if k in (0, 7, 15):
            stamp(18 + (k + 1) // 8, f"g2_{k}")
        kk = k - 4 * (6 - LAST)
        if kk >= LAST:
            i, p = divmod(kk, LAST)
            for jj in [jj for jj in range(5) if jj * LAST // 5 == p]:
                c = ACC2 + 20 * (i - 1) + 4 * jj
                g.ds(f"ds_write_b128 v{vRW+2*(i-1)+(1 if jj >= 3 else 0)}, v[{c}:{c+3}] offset:{jj*7168}")
    stamp(21, "gemm2_done")
    C3 = ACC2 + 60
    e(f"s_cmp_lt_u32 s{sW}, 4\ns_cbranch_scc1 L_tail0")
    sv = (g.vm, g.vm_done, g.lg, g.lg_done)
    for cls in (1, 0):
        if cls == 0:
            g.label("L_tail0")
            g.vm, g.vm_done, g.lg, g.lg_done = sv
        own = (0, 1, 2) if cls == 0 else (3, 4)
        oth = (3, 4) if cls == 0 else (0, 1, 2)
        BT = 24
        for k, jj in enumerate(own):
            b2tok = g.vmem(f"buffer_load_dwordx2 v[{BT+2*k}:{BT+2*k+1}], v{vB2o}, s[{SB2}:{SB2+3}], s{sK8} offen offset:{jj*32}")
        g.nop(6)
        for jj in oth:
            c = C3 + 4 * jj
            g.ds(f"ds_write_b128 v{vRW+6+(1 if jj >= 3 else 0)}, v[{c}:{c+3}] offset:{jj*7168}")
        g.wait(lg=g.lg)
        e("s_barrier")
        stamp(22, "redbar")
        R = ACC2
        todo = [(jj, s7) for jj in own for s7 in range(7)]
        rt = {}
        nb = 14
        for k, (jj, s7) in enumerate(todo[:nb]):
            rt[k] = g.ds(f"ds_read_b128 v[{R+4*k}:{R+4*k+3}], v{vRd} offset:{jj*7168 + s7*1024}")
        g.wait(vm=b2tok)
        for k, jj in enumerate(own):
            c = C3 + 4 * jj
            T4 = 32
            e(f"v_lshlrev_b32 v{T4}, 16, v{BT+2*k}\nv_and_b32 v{T4+1}, 0xffff0000, v{BT+2*k}\nv_lshlrev_b32 v{T4+2}, 16, v{BT+2*k+1}\nv_and_b32 v{T4+3}, 0xffff0000, v{BT+2*k+1}")
            e(f"v_pk_add_f32 v[{c}:{c+1}], v[{c}:{c+1}], v[{T4}:{T4+1}]\nv_pk_add_f32 v[{c+2}:{c+3}], v[{c+2}:{c+3}], v[{T4+2}:{T4+3}]")
        for k, (jj, s7) in enumerate(todo):
            c = C3 + 4 * jj
            b = R + 4 * (k % nb)
            g.wait(lg=rt[k])
            e(f"v_pk_add_f32 v[{c}:{c+1}], v[{c}:{c+1}], v[{b}:{b+1}]\nv_pk_add_f32 v[{c+2}:{c+3}], v[{c+2}:{c+3}], v[{b+2}:{b+3}]")
            if k + nb < len(todo):
                j2, s2 = todo[k + nb]
                rt[k + nb] = g.ds(f"ds_read_b128 v[{b}:{b+3}], v{vRd} offset:{j2*7168 + s2*1024}")
            if s7 == 6:
                e(f"v_cvt_pk_bf16_f32 v{c}, v{c}, v{c+1}\nv_cvt_pk_bf16_f32 v{c+1}, v{c+2}, v{c+3}")
                g.vmem(f"buffer_store_dwordx2 v[{c}:{c+1}], v{vOo}, s[{SO}:{SO+3}], s{sHB} offen offset:{jj*32}")
        if cls == 1:
            e("s_branch L_fin")
    g.label("L_fin")
    if diag:
        stamp(23, "out_issued")
        e("s_waitcnt vmcnt(0)")
        stamp(24, "end")
        e("s_memrealtime s[100:101]\ns_waitcnt lgkmcnt(0)\nv_writelane_b32 v0, s100, 63")
        e(f"s_lshl_b32 s{sT}, s2, 2\ns_add_u32 s{sT}, s{sT}, s{sP4}\ns_lshr_b32 s{sT2}, s{sW}, 2\ns_lshl_b32 s{sT2}, s{sT2}, 10\ns_add_u32 s{sT}, s{sT}, s{sT2}\ns_lshl_b32 s{sT}, s{sT}, 8\ns_add_u32 s{sT}, s{sT}, {T0}")
        names[0] = "entry"
        open("stampnames.txt", "w").write("\n".join(names.get(i, "-") for i in range(max(names) + 1)))
        e(f"v_lshlrev_b32 v{vF}, 2, v{vL}")
        e(f"buffer_store_dword v0, v{vF}, s[{SWS}:{SWS+3}], s{sT} offen")
    g.label("L_end")
    e("s_endpgm")
    out += g.L
    out += ['.section .rodata,"a"', ".p2align 6", f".amdhsa_kernel {NAME}",
            "  .amdhsa_next_free_vgpr 256", "  .amdhsa_next_free_sgpr 102", "  .amdhsa_accum_offset 128",
            "  .amdhsa_group_segment_fixed_size 0", "  .amdhsa_kernarg_size 64", "  .amdhsa_user_sgpr_count 2",
            "  .amdhsa_user_sgpr_kernarg_segment_ptr 1", "  .amdhsa_system_sgpr_workgroup_id_x 1", ".end_amdhsa_kernel"]
    return "\n".join(out) + "\n"


if __name__ == "__main__":
    diag = "--diag" in sys.argv
    path = [a for a in sys.argv[1:] if not a.startswith("--")]
    path = path[0] if path else "standalone__mixer_channel_mlp__prompt.s"
    P = {}
    for a in sys.argv[1:]:
        if a.startswith("--p:"):
            k, v = a[4:].split("=")
            P[k] = tuple(int(x) for x in v.split(",")) if "," in v else int(v)
    open(path, "w").write(generate(diag, P))
    print("wrote", path)
```

```python
import sys
from gen import Gen, NAME

W0 = 0
H0 = 4 << 20
F0 = 12 << 20
T0 = 17 << 20
WS_BYTES = 18 << 20

LDS_W1 = 0
LDS_X = 73728
LDS_STAGE = 155648
LDS_BYTES = 163840

SPIN_MAX = 60000
B_P, B_H = 1, 2

DEF = dict(xnt=1, last=2, wp_at=7, wc_at=8, lw=5, ha=8, cw_early=0, rp_at=1, ss_at=5, cp_at=9, pf_at=(99, 99), sideL=0, l_rp=1, l_st=2, l_pub=4)


def generate(diag=False, P=None):
    P = dict(DEF, **(P or {}))
    g = Gen(diag)
    e = g.e
    SX, SW1, SB1, SW2, SB2, SO, SD, SWS = 4, 8, 12, 16, 20, 24, 28, 32
    sW, sP4 = 36, 37
    sMB, sFT, sQ, sMT, sNT, sJ, sRC = 38, 39, 40, 41, 42, 43, 44
    sN = 45
    sT, sT2, sT3 = 46, 47, 48
    sCNT = 49
    sEX = 50
    sMI = 52
    sLX, sXB, sHB, sIDX = 56, 57, 58, 59
    sC1, sCB, sS2, sWA, sWB, sWC, sWD = 60, 61, 62, 63, 64, 65, 66
    sLW, sW1o, sRX, sONE, sK8 = 67, 68, 69, 70, 71
    sPW = 76
    sPH = 82
    sU1, sU2 = 88, 89
    vL, vL16, vR, vI, vZ = 1, 2, 3, 4, 5
    vFl, vPh = 6, 7
    vF = 8
    vTmp = 12
    vT = 32
    vXr = 36
    vHs, vGs = 40, 41
    vB1 = 42
    vC2, vC1, vOne, vR2 = 46, 48, 50, 52
    XFR = 56
    ACC = 80
    XFR = 56
    GS = 72
    BU = 76
    FBA = 0
    ACSA = 48
    XFA = 96
    AONE = 112
    vXd = 32
    vW1 = 36
    vPo, vXo, vW2o, vP, vPf = 39, 40, 41, 42, 43
    XR = 44
    XF = 56
    A0, A1, A2, A3, S0 = 76, 77, 78, 79, 80
    vMS = 84
    G4 = 86
    PF = 92

    hdr = open("standalone__mixer_channel_mlp__prompt.s.ref").read().split("\n")
    head = []
    for ln in hdr:
        if ln.startswith("; @launch"):
            head.append(f"; @launch grid=(256,1,1) block=(512,1,1) lds={LDS_BYTES}")
            break
        head.append(ln)
    out = head + ['.amdgcn_target "amdgcn-amd-amdhsa--gfx950"', ".text", f".globl {NAME}", ".p2align 8",
                  f".type {NAME},@function", f"{NAME}:"]
    NT = " nt" if P["xnt"] else ""
    XP = " nt" if P.get("xp") else ""
    WP = " nt" if P.get("wp") else ""

    e("s_cmp_ge_u32 s2, 256\ns_cbranch_scc1 L_end")
    if diag:
        e("s_memtime s[98:99]\ns_memrealtime s[100:101]")
    e("s_load_dwordx16 s[76:91], s[0:1], 0")
    e(f"v_and_b32 v{vL}, 63, v0\nv_lshrrev_b32 v{vTmp}, 6, v0\nv_lshlrev_b32 v{vL16}, 4, v{vL}")
    e(f"v_readfirstlane_b32 s{sW}, v{vTmp}")
    e(f"s_and_b32 s{sT}, s2, 7\ns_lshr_b32 s{sIDX}, s2, 3")
    e(f"s_lshr_b32 s{sT2}, s{sT}, 1\ns_and_b32 s{sT3}, s{sT}, 1")
    e(f"s_lshr_b32 s{sRC}, s{sIDX}, 3\ns_lshl_b32 s{sMB}, s{sT2}, 2\ns_add_u32 s{sMB}, s{sMB}, s{sRC}")
    e(f"s_and_b32 s{sT}, s{sIDX}, 7\ns_lshl_b32 s{sFT}, s{sT3}, 3\ns_add_u32 s{sFT}, s{sFT}, s{sT}")
    e(f"s_mul_i32 s{sRC}, s{sRC}, 3\ns_add_u32 s{sRC}, s{sRC}, s{sT}\ns_cmp_ge_u32 s{sRC}, 10\ns_cselect_b32 s{sT}, 10, 0\ns_sub_u32 s{sRC}, s{sRC}, s{sT}")
    if P.get("rot") == 1:
        e(f"s_mov_b32 s{sRC}, 0")
    if P.get("rot") == 2:
        e(f"s_and_b32 s{sRC}, s{sRC}, 1\ns_mul_i32 s{sRC}, s{sRC}, 5")
    e(f"s_lshl_b32 s{sQ}, s{sMB}, 4\ns_add_u32 s{sQ}, s{sQ}, s{sFT}")
    e(f"s_lshr_b32 s{sJ}, s{sIDX}, 2\ns_lshl_b32 s{sMT}, s{sT2}, 3\ns_add_u32 s{sMT}, s{sMT}, s{sJ}")
    e(f"s_and_b32 s{sNT}, s{sIDX}, 3\ns_lshl_b32 s{sT3}, s{sT3}, 2\ns_add_u32 s{sNT}, s{sNT}, s{sT3}")
    e(f"s_and_b32 s{sP4}, s{sW}, 3\nv_lshrrev_b32 v{vR}, 5, v{vL}\nv_and_b32 v{vI}, 31, v{vL}\nv_mov_b32 v{vZ}, 0")
    e(f"s_mul_i32 s{sLX}, s{sP4}, 20480\ns_add_u32 s{sLX}, s{sLX}, {LDS_X}\ns_mul_i32 s{sC1}, s{sFT}, 192")

    names = {}

    def stamp(i, name):
        from gen import LITE
        if diag and not LITE[0]:
            names[i] = name
            e(f"s_memrealtime s[94:95]\ns_waitcnt lgkmcnt(0)\nv_writelane_b32 v0, s94, {i}")
            g.lg_done = g.lg

    def srd(r, k, nbytes):
        e(f"s_mov_b32 s{r}, s{76+2*k}\ns_mov_b32 s{r+1}, s{77+2*k}\ns_mov_b32 s{r+2}, {nbytes}\ns_mov_b32 s{r+3}, 0x00020000")

    def all_srds(order):
        tab = {0: (SX, 2621440), 1: (SW1, 1966080), 2: (SB1, 3072), 3: (SW2, 1966080), 4: (SB2, 1280), 5: (SO, 2621440), 6: (SD, 256), 7: (SWS, WS_BYTES)}
        for k in order:
            srd(tab[k][0], k, tab[k][1])

    def spin(check_emit, load_emit, tok):
        g.wait(vm=tok)
        if P.get("noside"):
            check_emit()
            return
        ok = g.newlab("ok")
        retry = g.newlab("retry")
        check_emit()
        e(f"s_cbranch_scc1 {ok}")
        e(f"s_mov_b32 s{sCNT}, {SPIN_MAX}")
        g.label(retry)
        e(f"s_sub_u32 s{sCNT}, s{sCNT}, 1\ns_cmp_eq_u32 s{sCNT}, 0\ns_cbranch_scc1 {ok}")
        load_emit()
        e("s_waitcnt vmcnt(0)")
        check_emit()
        e(f"s_cbranch_scc0 {retry}")
        g.label(ok)

    def publish(bits, tok):
        e(f"s_or_b32 s{sT}, s{sN}, {bits}\nv_mov_b32 v{vTmp+19}, s{sT}")
        g.wait(vm=tok)
        e(f"s_mov_b64 exec, 1")
        g.vmem(f"buffer_store_dword v{vTmp+19}, v{vFl}, s[{SWS}:{SWS+3}], 0 offen sc1")
        e(f"s_mov_b64 exec, -1")

    def flag_eval(regs, bit):
        m = 0xfffffffc | bit
        e(f"s_or_b32 s{sT}, s{sN}, {bit}")
        for r in regs:
            e(f"v_xor_b32 v{r}, s{sT}, v{r}")
        for r in regs[1:]:
            e(f"v_or_b32 v{regs[0]}, v{regs[0]}, v{r}")
        e(f"v_and_b32 v{regs[0]}, {m:#x}, v{regs[0]}\nv_cmp_eq_u32 vcc, 0, v{regs[0]}\ns_nop 1\ns_cmp_eq_u64 vcc, -1")

    def nonce_load():
        return f"buffer_load_dword v{vF}, v{vZ}, s[{SD}:{SD+3}], 0 offen sc1"

    def nonce_spin(tok):
        spin(lambda: e(f"v_readfirstlane_b32 s{sN}, v{vF}\ns_nop 3\ns_cmp_lg_u32 s{sN}, 0"), lambda: e(nonce_load()), tok)

    def common_setup(vpo):
        e(f"s_lshl_b32 s{sT}, s{sQ}, 7\ns_lshl_b32 s{sT2}, s{sW}, 2\ns_add_u32 s{sT}, s{sT}, s{sT2}\ns_add_u32 s{sT}, s{sT}, {F0+64}\nv_mov_b32 v{vFl}, s{sT}")
        e(f"s_mul_i32 s{sCNT}, s{sJ}, 3\ns_lshr_b32 s{sCNT}, s{sCNT}, 2\ns_mul_i32 s{sU1}, s{sW}, 6\ns_mul_i32 s{sU2}, s{sNT}, 48\ns_add_u32 s{sU2}, s{sU2}, s{sU1}")
        for sg in range(6):
            e(f"s_add_u32 s{sT}, s{sCNT}, s{sU1}\ns_lshl_b32 s{sPH+sg}, s{sT}, 10\ns_add_u32 s{sT}, s{sCNT}, s{sU2}\ns_mul_i32 s{sPW+sg}, s{sT}, 5120\n"
              f"s_add_u32 s{sCNT}, s{sCNT}, 1\ns_cmp_eq_u32 s{sCNT}, 6\ns_cselect_b32 s{sCNT}, 0, s{sCNT}")
        for i in range(4):
            e(f"s_add_u32 s{sT}, s{sW}, {i+1}\ns_and_b32 s{sT}, s{sT}, 3\ns_lshl_b32 s{sT2}, s{sMT}, 2\ns_add_u32 s{sT}, s{sT}, s{sT2}\n"
              f"s_mul_i32 s{sT}, s{sT}, 49152\ns_add_u32 s{sMI+i}, s{sT}, {H0}")
        e(f"v_cmp_le_u32 vcc, 6, v{vL}\ns_mul_i32 s{sT}, s{sNT}, 5\ns_nop 0\nv_cndmask_b32 v{vTmp+7}, 0, 1, vcc")
        e(f"v_lshl_add_u32 v{vTmp+6}, v{vTmp+7}, 2, s{sT}\nv_lshrrev_b32 v{vTmp+6}, 3, v{vTmp+6}\nv_mul_u32_u24 v{vTmp+6}, 48, v{vTmp+6}")
        e(f"v_mul_u32_u24 v{vTmp+7}, 6, v{vTmp+7}\nv_sub_u32 v{vTmp+7}, v{vL}, v{vTmp+7}\nv_add3_u32 v{vTmp+6}, v{vTmp+6}, v{vTmp+7}, s{sU1}")
        e(f"v_cmp_gt_u32 vcc, 12, v{vL}\nv_readfirstlane_b32 s{sT}, v{vTmp+6}\ns_nop 1\nv_mov_b32 v{vTmp+7}, s{sT}\nv_cndmask_b32 v{vpo}, v{vTmp+7}, v{vTmp+6}, vcc")
        e(f"v_lshlrev_b32 v{vpo}, 7, v{vpo}\nv_add_u32 v{vpo}, {F0+64+(16 if P['sideL'] else 0)}, v{vpo}")
        e(f"s_lshl_b32 s{sT}, s{sMB}, 4\ns_lshl_b32 s{sT2}, s{sW}, 1\ns_add_u32 s{sT}, s{sT}, s{sT2}\nv_and_b32 v{vTmp+7}, 1, v{vL}\nv_add_u32 v{vTmp+7}, s{sT}, v{vTmp+7}")
        e(f"s_and_b32 s{sT2}, s{sMT}, 1\ns_lshl_b32 s{sT2}, s{sT2}, 3\ns_add_u32 s{sT2}, s{sT2}, {F0+64}\nv_lshlrev_b32 v{vPh}, 7, v{vTmp+7}\nv_add_u32 v{vPh}, s{sT2}, v{vPh}")

    F4 = [vF, vF + 1, vF + 2, vF + 3]
    worder = [(sg, jj) for sg in range(6) for jj in range(5)]
    wreg = {k: 4 * i for i, k in enumerate(worder)}

    def w2_loads(vpo, tokp=None):
        wp = f"buffer_load_dwordx2 v[{vF}:{vF+1}], v{vpo}, s[{SWS}:{SWS+3}], 0 offen sc1"
        if tokp is None:
            tokp = g.vmem(wp)
        spin(lambda: flag_eval(F4[:2], B_P), lambda: e(wp), tokp)
        ops = []
        for (sg, jj) in worder:
            def f(sg=sg, jj=jj):
                r = wreg[(sg, jj)]
                if jj < 4:
                    so, imm = f"s{sPW+sg}", jj * 1024
                else:
                    e(f"s_add_u32 s{sT}, s{sPW+sg}, 4096")
                    so, imm = f"s{sT}", 0
                g.vmem(f"buffer_load_dwordx4 a[{r}:{r+3}], v{vL16}, s[{SWS}:{SWS+3}], {so} offen offset:{imm} sc1")
            ops.append(f)
        return ops

    cXo, cW2o, cP = 54, 55, 30
    sWS4 = (sWA, sWB, 72, 73)
    sSA, sSB = 74, 75
    st = {}

    def side_addr1():
        e(f"v_mul_u32_u24 v{cXo}, 1280, v{vR}\nv_lshl_add_u32 v{cXo}, v{vI}, 3, v{cXo}")
        e(f"s_lshl_b32 s{sT}, s{sQ}, 3\ns_lshl_b32 s{sT2}, s{sP4}, 1\ns_add_u32 s{sT}, s{sT}, s{sT2}\ns_mul_i32 s{sSA}, s{sT}, 1280")
        e(f"s_mul_i32 s{sCB}, s{sQ}, 1366\ns_lshr_b32 s{sCB}, s{sCB}, 16\ns_mul_i32 s{sT3}, s{sCB}, 48\ns_sub_u32 s{sS2}, s{sQ}, s{sT3}")
        e(f"v_lshrrev_b32 v{cW2o}, 3, v{vL}\nv_mul_u32_u24 v{cW2o}, 1280, v{cW2o}\nv_and_b32 v{vTmp+6}, 7, v{vL}\nv_lshl_add_u32 v{cW2o}, v{vTmp+6}, 4, v{cW2o}")
        e(f"s_mul_i32 s{sSB}, s{sS2}, {32*1280}\ns_lshl_b32 s{sT2}, s{sCB}, 8\ns_add_u32 s{sSB}, s{sSB}, s{sT2}\ns_lshl_b32 s{sT2}, s{sP4}, 7\ns_add_u32 s{sSB}, s{sSB}, s{sT2}")
        e(f"s_cmp_ge_u32 s{sQ}, 240\ns_cselect_b32 s{sK8}, 1, 0\ns_lshr_b32 s{sT}, s{sP4}, 1\ns_or_b32 s{sK8}, s{sK8}, s{sT}")

    def side_loads():
        lab = g.newlab("nononce")
        e(f"s_or_b32 s{sT}, s2, s{sP4}\ns_cmp_lg_u32 s{sT}, 0\ns_cbranch_scc1 {lab}")
        e(f"s_memrealtime s[{sEX}:{sEX+1}]\ns_waitcnt lgkmcnt(0)")
        e(f"s_lshl_b32 s{sT}, s{sEX}, 2\ns_or_b32 s{sT}, s{sT}, 0x80000000\nv_mov_b32 v{vTmp+4}, s{sT}")
        e(f"s_mov_b64 exec, 1")
        e(f"buffer_store_dword v{vTmp+4}, v{vZ}, s[{SD}:{SD+3}], 0 offen sc1")
        e(f"s_mov_b64 exec, -1")
        g.label(lab)
        lab_np = g.newlab("nopiece")
        e(f"s_cmp_lg_u32 s{sK8}, 0\ns_cbranch_scc1 {lab_np}")
        e(f"s_lshl_b32 s{sT2}, s{sP4}, 12\ns_add_u32 m0, s{sT2}, {LDS_STAGE}")
        for d in range(4):
            e(f"s_add_u32 m0, m0, 1024\ns_add_u32 s{sSB}, s{sSB}, {8*1280}" if d else "s_nop 0")
            e(f"buffer_load_dwordx4 v{cW2o}, s[{SW2}:{SW2+3}], s{sSB} offen{NT} lds")
        g.label(lab_np)
        for j in range(5):
            st["x"] = g.vmem(f"buffer_load_dwordx2 a[{116+2*j}:{117+2*j}], v{cXo}, s[{SX}:{SX+3}], s{sSA} offen offset:{256*j}")

    def side_addr2():
        e(f"v_lshlrev_b32 v{cP}, 11, v{vR}\nv_bfe_u32 v{vTmp+6}, v{vL}, 4, 1\nv_lshl_add_u32 v{cP}, v{vTmp+6}, 9, v{cP}")
        e(f"v_bfe_u32 v{vTmp+6}, v{vL}, 2, 2\nv_lshl_add_u32 v{cP}, v{vTmp+6}, 7, v{cP}\nv_and_b32 v{vTmp+6}, 3, v{vL}\nv_lshl_add_u32 v{cP}, v{vTmp+6}, 3, v{cP}")
        e(f"s_and_b32 s{sT}, s{sP4}, 1\ns_lshl_b32 s{sT}, s{sT}, 12\ns_add_u32 s{sT}, s{sT}, {LDS_STAGE}\nv_add_u32 v{cP}, s{sT}, v{cP}\ns_mov_b32 s{sONE}, 0x3f803f80")
        wsoff = []
        for ee in range(4):
            wsoff.append(f"s_lshl_b32 s{sT}, s{sCB}, 3\ns_lshl_b32 s{sT2}, s{sP4}, 2\ns_add_u32 s{sT}, s{sT}, s{sT2}\ns_add_u32 s{sT}, s{sT}, {ee}\n"
              f"s_mul_i32 s{sT2}, s{sT}, 13108\ns_lshr_b32 s{sT2}, s{sT2}, 16\ns_mul_i32 s{sT3}, s{sT2}, 5\ns_sub_u32 s{sT}, s{sT}, s{sT3}\n"
              f"s_mul_i32 s{sT2}, s{sT2}, 48\ns_add_u32 s{sT2}, s{sT2}, s{sS2}\ns_mul_i32 s{sT2}, s{sT2}, 5\ns_add_u32 s{sT}, s{sT}, s{sT2}\n"
              f"s_lshl_b32 s{sT}, s{sT}, 10\ns_cmp_lg_u32 s{sK8}, 0\ns_cselect_b32 s{sWS4[ee]}, {WS_BYTES}, s{sT}")
        for x_ in wsoff:
            e(x_)


    def reduce32(a, t, fill):
        def pad():
            e(fill.pop(0) if fill else "s_nop 1")
        for r in (8, 4, 2, 1):
            pad()
            e(f"v_add_f32_dpp v{a}, v{a}, v{a} row_ror:{r} row_mask:0xf bank_mask:0xf")
        e(f"v_mov_b32 v{t}, v{a}")
        pad()
        e(f"v_permlane16_swap_b32 v{a}, v{t}")
        pad()
        e(f"v_add_f32 v{a}, v{a}, v{t}")

    RW = 116

    def do_repack():
        if P.get("noside"):
            st["ps"] = g.vm
            st["nt"] = g.vmem(nonce_load())
            return
        g.wait(vm=st["x"])
        for rnd in range(2):
            for ee in range(2):
                for h in range(2):
                    t = g.ds(f"ds_read_b64_tr_b16 v[{vTmp+4*ee+2*h}:{vTmp+4*ee+2*h+1}], v{cP} offset:{(2*rnd+ee)*32 + h*1024}")
            g.wait(lg=t)
            for ee in range(2):
                st["ps"] = g.vmem(f"buffer_store_dwordx4 v[{vTmp+4*ee}:{vTmp+4*ee+3}], v{vL16}, s[{SWS}:{SWS+3}], s{sWS4[2*rnd+ee]} offen sc1")
            if rnd == 0:
                g.nop(2)
        if not P["sideL"]:
            st["nt"] = g.vmem(nonce_load())

    def do_stats():
        if P.get("noside"):
            return
        X = vTmp
        a0, a1, a2, t0, t1, s0, s1 = vTmp + 10, vTmp + 11, vTmp + 12, vTmp + 13, vTmp + 14, vTmp + 15, vTmp + 16
        g.wait(vm=st["x"])
        for j in range(10):
            e(f"v_accvgpr_read_b32 v{X+j}, a{RW+j}")
        for j in range(10):
            e(f"v_lshlrev_b32 v{t0}, 16, v{X+j}\nv_and_b32 v{t1}, 0xffff0000, v{X+j}")
            e(f"v_add_f32 v{a0}, v{a0}, v{t0}\nv_add_f32 v{a1}, v{a1}, v{t1}" if j else f"v_mov_b32 v{a0}, v{t0}\nv_mov_b32 v{a1}, v{t1}")
        e(f"v_add_f32 v{a0}, v{a0}, v{a1}")
        reduce32(a0, a1, [])
        e(f"v_mul_f32 v{a0}, 0x3acccccd, v{a0}")
        e(f"v_cvt_pk_bf16_f32 v{a2}, v{a0}, v{a0}\nv_lshlrev_b32 v{a2}, 16, v{a2}")
        e(f"v_sub_f32 v{a0}, v{a0}, v{a2}")
        for j in range(10):
            e(f"v_lshlrev_b32 v{t0}, 16, v{X+j}\nv_and_b32 v{t1}, 0xffff0000, v{X+j}\nv_sub_f32 v{t0}, v{t0}, v{a2}\nv_sub_f32 v{t1}, v{t1}, v{a2}")
            e(f"v_fmac_f32 v{s0}, v{t0}, v{t0}\nv_fmac_f32 v{s1}, v{t1}, v{t1}" if j else f"v_mul_f32 v{s0}, v{t0}, v{t0}\nv_mul_f32 v{s1}, v{t1}, v{t1}")
        e(f"v_add_f32 v{s0}, v{s0}, v{s1}")
        reduce32(s0, s1, [])
        e(f"v_mul_f32 v{s0}, 0x3acccccd, v{s0}")
        e(f"v_fma_f32 v{s0}, -v{a0}, v{a0}, v{s0}\nv_max_f32 v{s0}, 0, v{s0}")
        e(f"v_cvt_pk_bf16_f32 v{s0}, v{s0}, v{s0}\nv_lshlrev_b32 v{s0}, 16, v{s0}")
        e(f"v_add_f32 v{s0}, 0x3727c5ac, v{s0}")
        e(f"v_cvt_pk_bf16_f32 v{s0}, v{s0}, v{s0}\nv_lshlrev_b32 v{s0}, 16, v{s0}")
        e(f"v_sqrt_f32 v{s0}, v{s0}\ns_nop 0")
        e(f"v_cvt_pk_bf16_f32 v{GS}, v{a2}, v{s0}")

    def send_stats(sp=True):
        if sp:
            nonce_spin(st["nt"])
        g4 = vTmp + 10
        e(f"v_readlane_b32 s{sT}, v{GS}, 32\nv_mov_b32 v{g4}, s{sN}\nv_mov_b32 v{g4+1}, v{GS}\nv_mov_b32 v{g4+3}, s{sN}\nv_mov_b32 v{g4+2}, s{sT}")
        e(f"s_lshl_b32 s{sT}, s{sQ}, 7\ns_lshl_b32 s{sT2}, s{sP4}, 4\ns_add_u32 s{sT}, s{sT}, s{sT2}\ns_add_u32 s{sT}, s{sT}, {F0}\nv_mov_b32 v{g4+4}, s{sT}")
        e(f"s_mov_b64 exec, 1")
        g.vmem(f"buffer_store_dwordx4 v[{g4}:{g4+3}], v{g4+4}, s[{SWS}:{SWS+3}], 0 offen sc1")
        e(f"s_mov_b64 exec, -1")

    e(f"s_cmp_lt_u32 s{sW}, 4\ns_cbranch_scc1 L_cpath")
    e(f"v_lshrrev_b32 v{vTmp+6}, 4, v{vL}\nv_bfe_u32 v{vTmp+7}, v{vL}, 3, 1\nv_and_b32 v{vTmp+8}, 7, v{vL}")
    for d in range(2):
        e(f"v_add_u32 v{vTmp+9}, {4*d}, v{vTmp+6}")
        e(f"v_xor_b32 v{vTmp+10}, v{vTmp+8}, v{vTmp+9}\nv_lshl_add_u32 v{vTmp+9}, v{vTmp+7}, 3, v{vTmp+9}")
        e(f"v_mul_u32_u24 v{vTmp+9}, 1280, v{vTmp+9}\nv_lshl_add_u32 v{vXd+d}, v{vTmp+10}, 4, v{vTmp+9}\nv_add_u32 v{vXd+d+2}, {16*1280}, v{vXd+d}")
    e(f"s_lshl_b32 s{sXB}, s{sMB}, 2\ns_add_u32 s{sXB}, s{sXB}, s{sP4}\ns_mul_i32 s{sXB}, s{sXB}, {32*1280}\ns_mul_i32 s{sLW}, s{sP4}, 3072")
    for i in range(3):
        e(f"v_add_u32 v{vTmp+6}, {64*i}, v{vL}\nv_mul_u32_u24 v{vTmp+7}, 5462, v{vTmp+6}\nv_lshrrev_b32 v{vTmp+7}, 16, v{vTmp+7}")
        e(f"v_mul_u32_u24 v{vTmp+8}, 12, v{vTmp+7}\nv_sub_u32 v{vTmp+8}, v{vTmp+6}, v{vTmp+8}")
        e(f"v_mul_u32_u24 v{vTmp+7}, 3072, v{vTmp+7}\nv_lshl_add_u32 v{vW1+i}, v{vTmp+8}, 4, v{vTmp+7}")
    e(f"s_mul_i32 s{sT}, s{sP4}, {16*3072}\ns_add_u32 s{sW1o}, s{sC1}, s{sT}")
    e("s_waitcnt lgkmcnt(0)")
    if diag:
        e("v_writelane_b32 v0, s100, 62\nv_writelane_b32 v0, s100, 0")
    if P.get("prio") in (2, 3):
        e("s_setprio 1")
    all_srds((0, 1))
    if P.get("lin"):
        for k in range(4):
            if P["lin"] & 1:
                e(f"v_add_u32 v{vXd+k}, {k*1024}, v{vL16}")
        for k in range(3):
            if P["lin"] & 2:
                e(f"v_add_u32 v{vW1+k}, {k*1024}, v{vL16}")
    stamp(29, "L_first")
    ctok = {}

    def chunk_dmas(c):
        e(f"s_lshl_b32 s{sWC}, s{sRC}, 7\ns_add_u32 s{sWC}, s{sWC}, s{sXB}")
        e(f"s_mul_i32 s{sWD}, s{sRC}, {64*3072}\ns_add_u32 s{sWD}, s{sWD}, s{sW1o}")
        for k in range(4):
            e(f"s_add_u32 m0, s{sLX}, {(c % 5)*4096 + k*1024}")
            e(f"s_add_u32 s{sRC}, s{sRC}, 1" if k == 0 else "s_nop 0")
            g.vmem(f"buffer_load_dwordx4 v{vXd+k}, s[{SX}:{SX+3}], s{sWC} offen{XP} lds")
            if k < 3:
                e(f"s_add_u32 m0, s{sLW}, {LDS_W1 + (c % 6)*12288 + k*1024}")
                e(f"s_cmp_eq_u32 s{sRC}, 10\ns_cselect_b32 s{sRC}, 0, s{sRC}" if k == 0 else "s_nop 0")
                g.vmem(f"buffer_load_dwordx4 v{vW1+k}, s[{SW1}:{SW1+3}], s{sWD} offen{WP} lds")
        ctok[c] = g.vm

    if P.get("ldelay"):
        all_srds((3, 6, 7, 2, 4, 5))
        common_setup(vPo)
    chunk_dmas(0)
    if not P.get("c1late"):
        chunk_dmas(1)
    if P["sideL"]:
        all_srds((3, 6, 7, 2, 4, 5))
        side_addr1()
        side_loads()
        side_addr2()
    wl = []
    for c in range(10):
        if c == 0:
            stamp(27, "L_issued")
        g.wait(vm=ctok[c])
        if c == 0:
            stamp(28, "L_data0")
        e("s_barrier")
        stamp(1 + c, f"open{c}")
        if c == 0 and P.get("c1late"):
            chunk_dmas(1)
        if c + 2 < 10:
            chunk_dmas(c + 2)
        if c == 0 and not P.get("ldelay") and not P["sideL"]:
            all_srds((3, 6, 7, 2, 4, 5))
        if P["sideL"]:
            if c == P["l_rp"]:
                do_repack()
            if c == P["l_st"]:
                do_stats()
            if c == max(3, P["l_st"]):
                st["ss"] = True
            if c == P["l_pub"]:
                publish(B_P, st["ps"])
        if c == 1 and not P.get("ldelay"):
            common_setup(vPo)
        if c == 2:
            e(f"s_sub_u32 s{sT}, s{sJ}, s{sW}\ns_mul_i32 s{sT}, s{sT}, {6*128}\nv_add_u32 v{vPf}, s{sT}, v{vPo}")
            e(f"s_mul_i32 s{sT}, s{sNT}, 48\ns_mul_i32 s{sT2}, s{sJ}, 6\ns_add_u32 s{sT}, s{sT}, s{sT2}\ns_mul_i32 s{sT}, s{sT}, 5120\ns_mul_i32 s{sT2}, s{sP4}, 7680\ns_add_u32 s{sRX}, s{sT}, s{sT2}")
            st["nt"] = g.vmem(nonce_load())
        if c == 3:
            nonce_spin(st["nt"])
        if st.get("ss") is True:
            st["ss"] = False
            send_stats(False)
        if c in P["pf_at"]:
            g.wait(vm=st["pf"])
            lab = g.newlab("nopf")
            flag_eval([vF + 2, vF + 3], B_P)
            e(f"s_cbranch_scc0 {lab}")
            e(f"s_cmp_eq_u32 s{sRX}, -1\ns_cbranch_scc1 {lab}")
            for k in range(8):
                if k == 4:
                    e(f"s_add_u32 s{sRX}, s{sRX}, 4096")
                if k < 7:
                    e(f"buffer_load_dwordx4 v[{64+4*k}:{67+4*k}], v{vL16}, s[{SWS}:{SWS+3}], s{sRX} offen offset:{(k%4)*1024} sc1")
                else:
                    e(f"buffer_load_dwordx4 v[{64+4*k}:{67+4*k}], v{vL16}, s[{SWS}:{SWS+3}], s{sRX} offen offset:{2*1024+512} sc1")
            e(f"s_mov_b32 s{sRX}, -1")
            g.label(lab)
        if c + 1 in P["pf_at"]:
            st["pf"] = g.vmem(f"buffer_load_dwordx2 v[{vF+2}:{vF+3}], v{vPf}, s[{SWS}:{SWS+3}], 0 offen sc1")
        if c == P["wp_at"]:
            st["wp"] = g.vmem(f"buffer_load_dwordx2 v[{vF}:{vF+1}], v{vPo}, s[{SWS}:{SWS+3}], 0 offen sc1")
        if c == P["wc_at"]:
            wl = w2_loads(vPo, st["wp"])
        if c >= P["wc_at"]:
            for _ in range(P["lw"]):
                wl.pop(0)()
    e("s_barrier")
    stamp(11, "sbar")
    while wl:
        wl.pop(0)()
    stamp(12, "gemm1_done/Lw2issued")
    e("s_barrier")
    stamp(15, "deadbar")
    e("s_branch L_join")

    g.label("L_cpath")
    if P.get("prio") == 1:
        e("s_setprio 1")
    g.vm_done = g.vm
    g.lg_done = g.lg
    if not P["sideL"]:
        side_addr1()
    e("s_waitcnt lgkmcnt(0)")
    if diag:
        e("v_writelane_b32 v0, s100, 62\nv_writelane_b32 v0, s100, 0")
    all_srds((0, 3, 6))
    if not P["sideL"]:
        side_loads()
    all_srds((1, 7, 2, 4, 5))
    e(f"v_lshlrev_b32 v{vTmp+7}, 3, v{vR}\nv_bfe_u32 v{vTmp+6}, v{vL}, 2, 2\nv_add_u32 v{vTmp+7}, v{vTmp+7}, v{vTmp+6}")
    e(f"v_mul_u32_u24 v{vTmp+7}, 192, v{vTmp+7}\nv_bfe_u32 v{vTmp+6}, v{vL}, 4, 1\nv_lshl_add_u32 v{vTmp+7}, v{vTmp+6}, 5, v{vTmp+7}")
    e(f"v_and_b32 v{vTmp+6}, 3, v{vL}\nv_lshl_add_u32 v{vTmp+7}, v{vTmp+6}, 3, v{vTmp+7}")
    e(f"v_and_b32 v{vTmp+8}, 7, v{vL}\nv_bfe_u32 v{vTmp+6}, v{vL}, 4, 1\nv_lshl_add_u32 v{vTmp+9}, v{vTmp+6}, 3, v{vTmp+8}\nv_lshlrev_b32 v{vTmp+9}, 8, v{vTmp+9}")
    e(f"v_bfe_u32 v{vTmp+6}, v{vL}, 3, 1\nv_lshl_add_u32 v{vTmp+9}, v{vTmp+6}, 7, v{vTmp+9}\nv_add_u32 v{vTmp+9}, s{sLX}, v{vTmp+9}")
    for j in range(4):
        e(f"s_add_u32 s{sT}, s{sW}, {j}\ns_and_b32 s{sT}, s{sT}, 3\ns_mul_i32 s{sT2}, s{sT}, 3072\nv_add_u32 v{vT+j}, s{sT2}, v{vTmp+7}")
        e(f"s_lshl_b32 s{sT}, s{sT}, 1\nv_add_u32 v{vTmp+6}, s{sT}, v{vR}\nv_xor_b32 v{vTmp+6}, v{vTmp+6}, v{vTmp+8}\nv_lshl_add_u32 v{vXr+j}, v{vTmp+6}, 4, v{vTmp+9}")
    e(f"v_mov_b32 v{vTmp}, 0x3f803f80")
    for k in range(4):
        e(f"v_accvgpr_write_b32 a{AONE+k}, v{vTmp}")
    vPoC = 45
    common_setup(vPoC)
    e(f"s_lshl_b32 s{sT}, s{sMB}, 4\ns_lshl_b32 s{sT2}, s{sW}, 2\ns_add_u32 s{sT}, s{sT}, s{sT2}")
    e(f"v_lshrrev_b32 v{vTmp+7}, 3, v{vI}\nv_add_u32 v{vTmp+7}, s{sT}, v{vTmp+7}\nv_lshlrev_b32 v{vGs}, 7, v{vTmp+7}\nv_bfe_u32 v{vTmp+7}, v{vI}, 1, 2\nv_lshl_add_u32 v{vGs}, v{vTmp+7}, 4, v{vGs}\nv_add_u32 v{vGs}, {F0}, v{vGs}")
    e(f"v_bfe_u32 v{vTmp+6}, v{vL}, 4, 1\nv_mul_u32_u24 v{vHs}, 49152, v{vTmp+6}\nv_lshl_add_u32 v{vHs}, v{vR}, 8, v{vHs}")
    e(f"v_and_b32 v{vTmp+6}, 15, v{vL}\nv_lshl_add_u32 v{vHs}, v{vTmp+6}, 4, v{vHs}")
    e(f"s_lshl_b32 s{sT}, s{sMB}, 3\ns_lshl_b32 s{sT2}, s{sW}, 1\ns_add_u32 s{sT}, s{sT}, s{sT2}\ns_mul_i32 s{sT}, s{sT}, 49152\n"
      f"s_mul_i32 s{sT2}, s{sFT}, 3072\ns_add_u32 s{sT}, s{sT}, s{sT2}\ns_add_u32 s{sHB}, s{sT}, {H0}")
    e(f"v_mov_b32 v{vC2}, 0xbdd2d3e8\nv_mov_b32 v{vC2+1}, 0xbdd2d3e8\nv_mov_b32 v{vC1}, 0xc0135761\nv_mov_b32 v{vC1+1}, 0xc0135761\nv_mov_b32 v{vOne}, 1.0\nv_mov_b32 v{vOne+1}, 1.0")
    e(f"v_mov_b32 v{BU+2}, 0\nv_mov_b32 v{BU+3}, 0")
    if not P["sideL"]:
        side_addr2()
    NBUF = 12
    fr, xt = {}, {}
    nfr = [0]

    def xreg(c, j):
        return f"v[{XFR+4*j}:{XFR+4*j+3}]" if c % 2 == 0 else f"a[{XFA+4*j}:{XFA+4*j+3}]"

    def tr_issue(n, t):
        c, j = divmod(n, 4)
        r = FBA + 4 * (nfr[0] % NBUF)
        nfr[0] += 1
        for h in range(2):
            tok = g.ds(f"ds_read_b64_tr_b16 a[{r+2*h}:{r+2*h+1}], v{vT+j} offset:{(c % 6)*12288 + t*64 + h*768}")
        fr[(n, t)] = (r, tok)

    def open_chunk(c):
        if c:
            g.wait(lg=xt[(c - 1, 3)])
        e("s_barrier")
        stamp(1 + c, f"open{c}")
        for j in range(4):
            xt[(c, j)] = g.ds(f"ds_read_b128 {xreg(c, j)}, v{vXr+j} offset:{(c % 5)*4096}")

    def g_load():
        return f"buffer_load_dwordx4 v[{GS}:{GS+3}], v{vGs}, s[{SWS}:{SWS+3}], 0 offen sc1"

    def g_check():
        e(f"v_xor_b32 v{vF}, s{sN}, v{GS}\nv_xor_b32 v{vF+1}, s{sN}, v{GS+3}\nv_or_b32 v{vF}, v{vF}, v{vF+1}\nv_cmp_eq_u32 vcc, 0, v{vF}\ns_nop 1\ns_cmp_eq_u64 vcc, -1")

    TS = vTmp + 14
    if P.get("early"):
        do_repack()
        stamp(25, "repacked")
        do_stats()
        stamp(26, "stats_done")
    stamp(28, "C_ready")
    open_chunk(0)
    for n in (0, 1):
        for t in range(3):
            tr_issue(n, t)
    for n in range(40):
        c, j = divmod(n, 4)
        if j == 2 and c + 1 < 10:
            open_chunk(c + 1)
        for t in range(3):
            r, tok = fr[(n, t)]
            g.wait(lg=max(tok, xt[(c, j)]))
            cin = f"v[{ACC+16*t}:{ACC+16*t+15}]" if n else "0"
            if j == 0 and P.get("s4", 1):
                cs = f"a[{ACSA+4*t}:{ACSA+4*t+3}]" if c else "0"
                e(f"v_mfma_f32_4x4x4_16b_bf16 a[{ACSA+4*t}:{ACSA+4*t+3}], a[{AONE}:{AONE+1}], a[{r}:{r+1}], {cs}")
            elif j == 0:
                cs = f"a[{ACSA+16*t}:{ACSA+16*t+15}]" if c else "0"
                e(f"v_mfma_f32_32x32x16_bf16 a[{ACSA+16*t}:{ACSA+16*t+15}], a[{AONE}:{AONE+3}], a[{r}:{r+3}], {cs}")
            if P.get("fake16"):
                for u in range(2):
                    d = ACC + 16*t + 4*u + 8*(n % 2)
                    e(f"v_mfma_f32_16x16x32_bf16 v[{d}:{d+3}], a[{r}:{r+3}], {xreg(c, j)}, v[{d}:{d+3}]")
            else:
                e(f"v_mfma_f32_32x32x16_bf16 v[{ACC+16*t}:{ACC+16*t+15}], a[{r}:{r+3}], {xreg(c, j)}, {cin}")
            if n + 2 < 40:
                tr_issue(n + 2, t)
            if j == 0 and P.get("s4", 1):
                e(f"v_mfma_f32_4x4x4_16b_bf16 a[{ACSA+4*t}:{ACSA+4*t+3}], a[{AONE}:{AONE+1}], a[{r+2}:{r+3}], a[{ACSA+4*t}:{ACSA+4*t+3}]")
            if P["sideL"]:
                if n == 16 and t == 0:
                    st["nt"] = g.vmem(nonce_load())
                if n == 24 and t == 0:
                    nonce_spin(st["nt"])
            elif n == P["rp_at"] and t == 2 and not P.get("early"):
                do_repack()
            if n == P["ss_at"] and t == 2 and not P["sideL"]:
                if not P.get("early"):
                    do_stats()
                send_stats()
            if n == P["cp_at"] and t == 0 and not P["sideL"]:
                publish(B_P, st["ps"])
            if n == 37 and t == 0:
                st["wpt"] = g.vmem(f"buffer_load_dwordx2 v[{vF}:{vF+1}], v{vPoC}, s[{SWS}:{SWS+3}], 0 offen sc1")
            if n == 20 and t == 0:
                e(f"v_lshlrev_b32 v{vTmp+8}, 1, v{vI}")
                for tt in range(3):
                    st["b1"] = g.vmem(f"buffer_load_ushort v{vB1+tt}, v{vTmp+8}, s[{SB1}:{SB1+3}], s{sC1} offen offset:{tt*64}")
            if n == 28 and t == 0:
                st["gs"] = g.vmem(g_load())
            if n == 36 and t == 0:
                spin(g_check, lambda: e(g_load()), st["gs"])
                e(f"v_and_b32 v{TS}, 1, v{vL}\nv_cmp_eq_u32 vcc, 1, v{TS}\ns_nop 1\nv_cndmask_b32 v{TS}, v{GS+1}, v{GS+2}, vcc")
                e(f"v_xor_b32 v{TS}, 0x8000, v{TS}")
                e(f"v_and_b32 v{vR2}, 0xffff0000, v{TS}\nv_rcp_f32 v{vR2}, v{vR2}")
                e(f"v_and_b32 v{TS+1}, 0xffff, v{TS}\nv_lshl_or_b32 v{TS+1}, v{TS+1}, 16, v{TS+1}")
                e(f"v_cmp_gt_u32 vcc, 32, v{vL}\nv_mov_b32 v{vR2+1}, v{vR2}\ns_nop 0")
                e(f"v_cndmask_b32 v{BU}, 0, v{TS+1}, vcc\nv_cndmask_b32 v{BU+1}, 0, v{TS}, vcc")
            if n == 37 and t == 2:
                g.nop(6)
                e(f"s_lshl_b32 s{sT}, s{sW}, 3\ns_add_u32 s{sT}, s{sT}, {LDS_STAGE}\nv_lshl_add_u32 v{vTmp+8}, v{vI}, 5, s{sT}\nv_lshl_add_u32 v{vTmp+8}, v{vR}, 2, v{vTmp+8}")
                for tt in range(3):
                    sw = g.ds(f"ds_write_b32 v{vTmp+8}, a{ACSA+(4 if P.get('s4', 1) else 16)*tt} offset:{tt*1024}")
            if n == 38 and t == 2:
                g.wait(lg=sw)
                e("s_barrier")
                stamp(11, "sbar")
                e(f"v_lshlrev_b32 v{vTmp+8}, 5, v{vI}\nv_lshl_add_u32 v{vTmp+8}, v{vR}, 4, v{vTmp+8}\nv_add_u32 v{vTmp+8}, {LDS_STAGE}, v{vTmp+8}")
                SR = XFR
                for tt in range(3):
                    sr = g.ds(f"ds_read_b128 v[{SR+4*tt}:{SR+4*tt+3}], v{vTmp+8} offset:{tt*1024}")
    g.wait(vm=st["b1"], lg=sr)
    AU = vTmp
    for tt in range(3):
        s0 = SR + 4 * tt
        a = AU + 4 * tt
        e(f"v_add_f32 v{s0}, v{s0}, v{s0+1}\nv_add_f32 v{s0+2}, v{s0+2}, v{s0+3}\nv_add_f32 v{s0}, v{s0}, v{s0+2}")
        e(f"v_mov_b32 v{s0+1}, v{s0}\ns_nop 1\nv_permlane32_swap_b32 v{s0}, v{s0+1}\ns_nop 1\nv_add_f32 v{s0}, v{s0}, v{s0+1}")
        if not P.get("s4", 1):
            e(f"v_mul_f32 v{s0}, 0.5, v{s0}")
        e(f"v_and_b32 v{s0+1}, 0xffff0000, v{s0}\nv_sub_f32 v{s0}, v{s0}, v{s0+1}")
        e(f"v_and_b32 v{s0+2}, 0xffff0000, v{s0}\nv_sub_f32 v{s0}, v{s0}, v{s0+2}")
        e(f"v_lshrrev_b32 v{s0+1}, 16, v{s0+1}\nv_or_b32 v{a}, v{s0+1}, v{s0+2}")
        e(f"v_lshrrev_b32 v{s0}, 16, v{s0}\nv_lshl_or_b32 v{a+1}, v{vB1+tt}, 16, v{s0}")
        e(f"v_mov_b32 v{a+2}, 0\nv_mov_b32 v{a+3}, 0\ns_nop 1")
        e(f"v_mfma_f32_32x32x16_bf16 v[{ACC+16*tt}:{ACC+16*tt+15}], v[{a}:{a+3}], v[{BU}:{BU+3}], v[{ACC+16*tt}:{ACC+16*tt+15}]")
    wpt = st["wpt"]
    stamp(12, "gemm1_done/Lw2issued")
    G = XFR
    wl = w2_loads(vPoC, wpt) if P["cw_early"] else None
    for t in range(3):
        base = ACC + 16 * t
        for half in range(2):
            prs = range(4 * half, 4 * half + 4)
            Z = {pr: base + 2 * pr for pr in prs}
            Tq = {pr: G + 2 * (pr % 8) for pr in prs}
            for pr in prs:
                e(f"v_pk_mul_f32 v[{Z[pr]}:{Z[pr]+1}], v[{Z[pr]}:{Z[pr]+1}], v[{vR2}:{vR2+1}]")
            for pr in prs:
                e(f"v_pk_mul_f32 v[{Tq[pr]}:{Tq[pr]+1}], v[{Z[pr]}:{Z[pr]+1}], v[{Z[pr]}:{Z[pr]+1}]")
            for pr in prs:
                e(f"v_pk_fma_f32 v[{Tq[pr]}:{Tq[pr]+1}], v[{Tq[pr]}:{Tq[pr]+1}], v[{vC2}:{vC2+1}], v[{vC1}:{vC1+1}]")
            for pr in prs:
                e(f"v_pk_mul_f32 v[{Tq[pr]}:{Tq[pr]+1}], v[{Tq[pr]}:{Tq[pr]+1}], v[{Z[pr]}:{Z[pr]+1}]")
            for pr in prs:
                e(f"v_exp_f32 v{Tq[pr]}, v{Tq[pr]}\nv_exp_f32 v{Tq[pr]+1}, v{Tq[pr]+1}")
            for pr in prs:
                e(f"v_pk_add_f32 v[{Tq[pr]}:{Tq[pr]+1}], v[{Tq[pr]}:{Tq[pr]+1}], v[{vOne}:{vOne+1}]")
            for pr in prs:
                e(f"v_rcp_f32 v{Tq[pr]}, v{Tq[pr]}\nv_rcp_f32 v{Tq[pr]+1}, v{Tq[pr]+1}")
            for pr in prs:
                e(f"v_pk_mul_f32 v[{Tq[pr]}:{Tq[pr]+1}], v[{Tq[pr]}:{Tq[pr]+1}], v[{Z[pr]}:{Z[pr]+1}]")
            for pr in prs:
                e(f"v_cvt_pk_bf16_f32 v{base+8*half+(pr%4)}, v{Tq[pr]}, v{Tq[pr]+1}")
            o = base + 8 * half
            htok = g.vmem(f"buffer_store_dwordx4 v[{o}:{o+3}], v{vHs}, s[{SWS}:{SWS+3}], s{sHB} offen offset:{t*1024+half*512} sc1")
            for _ in range(P["cw_early"]):
                wl.pop(0)()
    stamp(13, "gelu_done")
    if wl is None:
        wl = w2_loads(vPoC, wpt)
    for _ in range(6):
        wl.pop(0)()
    publish(B_P | B_H, htok)
    stamp(14, "h_pub")
    e("s_barrier")
    stamp(15, "deadbar")
    while wl:
        wl.pop(0)()

    g.label("L_join")
    if P.get("prio") in (1, 2):
        e("s_setprio 0")
    g.vm_done = 0
    g.lg_done = g.lg
    base_vm = g.vm
    ACC2 = 48
    HB = [f"v[{r}:{r+3}]" for r in (24, 28, 32, 36, 40, 44)] + ["a[120:123]", "a[124:127]"]
    vB2o, vRd, vOo = 12, 13, 14
    vRW = 16
    hb_next = [0]
    htoks = {}

    def h_poll():
        return f"buffer_load_dwordx2 v[{vF}:{vF+1}], v{vPh}, s[{SWS}:{SWS+3}], 0 offen sc1"

    def h_load(sg, i):
        r = HB[hb_next[0] % len(HB)]
        hb_next[0] += 1
        e(f"s_add_u32 s{sT}, s{sPH+sg}, s{sMI+i}")
        htoks[(sg, i)] = (r, g.vmem(f"buffer_load_dwordx4 {r}, v{vL16}, s[{SWS}:{SWS+3}], s{sT} offen sc1"))

    started = set()

    def mm(sg, i):
        r, tok = htoks[(sg, i)]
        g.wait(vm=tok)
        for jj in range(5):
            c = ACC2 + 20 * i + 4 * jj
            w = wreg[(sg, jj)]
            cin = f"v[{c}:{c+3}]" if (i, jj) in started else "0"
            started.add((i, jj))
            e(f"v_mfma_f32_16x16x32_bf16 v[{c}:{c+3}], a[{w}:{w+3}], {r}, {cin}")

    stamp(16, "join")
    tk = g.vmem(h_poll())
    for i in range(4):
        e(f"s_add_u32 s{sT}, s{sW}, {i+1}\ns_and_b32 s{sT}, s{sT}, 3\ns_mul_i32 s{sT2}, s{sT}, {5*7*1024}\ns_sub_u32 s{sT}, s{sW}, s{sT}\ns_sub_u32 s{sT}, s{sT}, 1")
        for d in range(2):
            e(f"s_sub_u32 s{sT3}, s{sT}, {4*d}\ns_and_b32 s{sT3}, s{sT3}, 7\ns_lshl_b32 s{sT3}, s{sT3}, 10\ns_add_u32 s{sT3}, s{sT3}, s{sT2}\nv_add_u32 v{vRW+2*i+d}, s{sT3}, v{vL16}")
    e(f"s_mul_i32 s{sT}, s{sP4}, {5*7*1024}\nv_add_u32 v{vRd}, s{sT}, v{vL16}")
    e(f"v_lshrrev_b32 v{vB2o}, 4, v{vL}\nv_lshlrev_b32 v{vB2o}, 3, v{vB2o}\ns_mul_i32 s{sK8}, s{sNT}, 160")
    e(f"v_and_b32 v{vOo}, 15, v{vL}\nv_mul_u32_u24 v{vOo}, 1280, v{vOo}\nv_add_u32 v{vOo}, v{vOo}, v{vB2o}")
    e(f"s_lshl_b32 s{sT}, s{sMT}, 6\ns_lshl_b32 s{sT3}, s{sP4}, 4\ns_add_u32 s{sT}, s{sT}, s{sT3}\ns_mul_i32 s{sT}, s{sT}, 1280\ns_add_u32 s{sHB}, s{sT}, s{sK8}")
    spin(lambda: flag_eval([vF, vF + 1], B_H), lambda: e(h_poll()), tk)
    stamp(17, "h_flag_ok")
    LAST = P["last"]
    order = [(sg, i) for sg in range(6 - LAST) for i in range(4)] + [(sg, i) for i in range(4) for sg in range(6 - LAST, 6)]
    HA = min(P["ha"], len(HB) - 1)
    for o in order[:HA]:
        h_load(*o)
    for k, o in enumerate(order):
        mm(*o)
        if k + HA < len(order):
            h_load(*order[k + HA])
        if k in (0, 7, 15):
            stamp(18 + (k + 1) // 8, f"g2_{k}")
        kk = k - 4 * (6 - LAST)
        if kk >= LAST:
            i, p = divmod(kk, LAST)
            for jj in [jj for jj in range(5) if jj * LAST // 5 == p]:
                c = ACC2 + 20 * (i - 1) + 4 * jj
                g.ds(f"ds_write_b128 v{vRW+2*(i-1)+(1 if jj >= 3 else 0)}, v[{c}:{c+3}] offset:{jj*7168}")
    stamp(21, "gemm2_done")
    C3 = ACC2 + 60
    e(f"s_cmp_lt_u32 s{sW}, 4\ns_cbranch_scc1 L_tail0")
    sv = (g.vm, g.vm_done, g.lg, g.lg_done)
    for cls in (1, 0):
        if cls == 0:
            g.label("L_tail0")
            g.vm, g.vm_done, g.lg, g.lg_done = sv
        own = (0, 1, 2) if cls == 0 else (3, 4)
        oth = (3, 4) if cls == 0 else (0, 1, 2)
        BT = 24
        for k, jj in enumerate(own):
            b2tok = g.vmem(f"buffer_load_dwordx2 v[{BT+2*k}:{BT+2*k+1}], v{vB2o}, s[{SB2}:{SB2+3}], s{sK8} offen offset:{jj*32}")
        g.nop(6)
        for jj in oth:
            c = C3 + 4 * jj
            g.ds(f"ds_write_b128 v{vRW+6+(1 if jj >= 3 else 0)}, v[{c}:{c+3}] offset:{jj*7168}")
        g.wait(lg=g.lg)
        e("s_barrier")
        stamp(22, "redbar")
        R = ACC2
        todo = [(jj, s7) for jj in own for s7 in range(7)]
        rt = {}
        nb = 14
        for k, (jj, s7) in enumerate(todo[:nb]):
            rt[k] = g.ds(f"ds_read_b128 v[{R+4*k}:{R+4*k+3}], v{vRd} offset:{jj*7168 + s7*1024}")
        g.wait(vm=b2tok)
        for k, jj in enumerate(own):
            c = C3 + 4 * jj
            T4 = 32
            e(f"v_lshlrev_b32 v{T4}, 16, v{BT+2*k}\nv_and_b32 v{T4+1}, 0xffff0000, v{BT+2*k}\nv_lshlrev_b32 v{T4+2}, 16, v{BT+2*k+1}\nv_and_b32 v{T4+3}, 0xffff0000, v{BT+2*k+1}")
            e(f"v_pk_add_f32 v[{c}:{c+1}], v[{c}:{c+1}], v[{T4}:{T4+1}]\nv_pk_add_f32 v[{c+2}:{c+3}], v[{c+2}:{c+3}], v[{T4+2}:{T4+3}]")
        for k, (jj, s7) in enumerate(todo):
            c = C3 + 4 * jj
            b = R + 4 * (k % nb)
            g.wait(lg=rt[k])
            e(f"v_pk_add_f32 v[{c}:{c+1}], v[{c}:{c+1}], v[{b}:{b+1}]\nv_pk_add_f32 v[{c+2}:{c+3}], v[{c+2}:{c+3}], v[{b+2}:{b+3}]")
            if k + nb < len(todo):
                j2, s2 = todo[k + nb]
                rt[k + nb] = g.ds(f"ds_read_b128 v[{b}:{b+3}], v{vRd} offset:{j2*7168 + s2*1024}")
            if s7 == 6:
                e(f"v_cvt_pk_bf16_f32 v{c}, v{c}, v{c+1}\nv_cvt_pk_bf16_f32 v{c+1}, v{c+2}, v{c+3}")
                g.vmem(f"buffer_store_dwordx2 v[{c}:{c+1}], v{vOo}, s[{SO}:{SO+3}], s{sHB} offen offset:{jj*32}")
        if cls == 1:
            e("s_branch L_fin")
    g.label("L_fin")
    if diag:
        stamp(23, "out_issued")
        e("s_waitcnt vmcnt(0)")
        stamp(24, "end")
        e("s_memrealtime s[100:101]\ns_waitcnt lgkmcnt(0)\nv_writelane_b32 v0, s100, 63")
        e(f"s_lshl_b32 s{sT}, s2, 2\ns_add_u32 s{sT}, s{sT}, s{sP4}\ns_lshr_b32 s{sT2}, s{sW}, 2\ns_lshl_b32 s{sT2}, s{sT2}, 10\ns_add_u32 s{sT}, s{sT}, s{sT2}\ns_lshl_b32 s{sT}, s{sT}, 8\ns_add_u32 s{sT}, s{sT}, {T0}")
        names[0] = "entry"
        open("stampnames.txt", "w").write("\n".join(names.get(i, "-") for i in range(max(names) + 1)))
        e(f"v_lshlrev_b32 v{vF}, 2, v{vL}")
        e(f"buffer_store_dword v0, v{vF}, s[{SWS}:{SWS+3}], s{sT} offen")
    g.label("L_end")
    e("s_endpgm")
    out += g.L
    out += ['.section .rodata,"a"', ".p2align 6", f".amdhsa_kernel {NAME}",
            "  .amdhsa_next_free_vgpr 256", "  .amdhsa_next_free_sgpr 102", "  .amdhsa_accum_offset 128",
            "  .amdhsa_group_segment_fixed_size 0", "  .amdhsa_kernarg_size 64", "  .amdhsa_user_sgpr_count 2",
            "  .amdhsa_user_sgpr_kernarg_segment_ptr 1", "  .amdhsa_system_sgpr_workgroup_id_x 1", ".end_amdhsa_kernel"]
    return "\n".join(out) + "\n"


if __name__ == "__main__":
    diag = "--diag" in sys.argv
    path = [a for a in sys.argv[1:] if not a.startswith("--")]
    path = path[0] if path else "standalone__mixer_channel_mlp__prompt.s"
    P = {}
    for a in sys.argv[1:]:
        if a.startswith("--p:"):
            k, v = a[4:].split("=")
            P[k] = tuple(int(x) for x in v.split(",")) if "," in v else int(v)
    open(path, "w").write(generate(diag, P))
    print("wrote", path)
```

```python
import sys
from gen import Gen, NAME

W0 = 0
H0 = 4 << 20
F0 = 12 << 20
T0 = 17 << 20
WS_BYTES = 18 << 20

LDS_W1 = 0
LDS_X = 73728
LDS_STAGE = 155648
LDS_BYTES = 163840

SPIN_MAX = 60000
B_P, B_H = 1, 2

DEF = dict(rot=2, xnt=1, last=2, wp_at=7, wc_at=8, lw=5, ha=8, cw_early=0, rp_at=1, ss_at=5, cp_at=9, pf_at=(99, 99), sideL=0, l_rp=1, l_st=2, l_pub=4)


def generate(diag=False, P=None):
    P = dict(DEF, **(P or {}))
    g = Gen(diag)
    e = g.e
    SX, SW1, SB1, SW2, SB2, SO, SD, SWS = 4, 8, 12, 16, 20, 24, 28, 32
    sW, sP4 = 36, 37
    sMB, sFT, sQ, sMT, sNT, sJ, sRC = 38, 39, 40, 41, 42, 43, 44
    sN = 45
    sT, sT2, sT3 = 46, 47, 48
    sCNT = 49
    sEX = 50
    sMI = 52
    sLX, sXB, sHB, sIDX = 56, 57, 58, 59
    sC1, sCB, sS2, sWA, sWB, sWC, sWD = 60, 61, 62, 63, 64, 65, 66
    sLW, sW1o, sRX, sONE, sK8 = 67, 68, 69, 70, 71
    sPW = 76
    sPH = 82
    sU1, sU2 = 88, 89
    vL, vL16, vR, vI, vZ = 1, 2, 3, 4, 5
    vFl, vPh = 6, 7
    vF = 8
    vTmp = 12
    vT = 32
    vXr = 36
    vHs, vGs = 40, 41
    vB1 = 42
    vC2, vC1, vOne, vR2 = 46, 48, 50, 52
    XFR = 56
    ACC = 80
    XFR = 56
    GS = 72
    BU = 76
    FBA = 0
    ACSA = 48
    XFA = 96
    AONE = 112
    vXd = 32
    vW1 = 36
    vPo, vXo, vW2o, vP, vPf = 39, 40, 41, 42, 43
    XR = 44
    XF = 56
    A0, A1, A2, A3, S0 = 76, 77, 78, 79, 80
    vMS = 84
    G4 = 86
    PF = 92

    hdr = open("standalone__mixer_channel_mlp__prompt.s.ref").read().split("\n")
    head = []
    for ln in hdr:
        if ln.startswith("; @launch"):
            head.append(f"; @launch grid=(256,1,1) block=(512,1,1) lds={LDS_BYTES}")
            break
        head.append(ln)
    out = head + ['.amdgcn_target "amdgcn-amd-amdhsa--gfx950"', ".text", f".globl {NAME}", ".p2align 8",
                  f".type {NAME},@function", f"{NAME}:"]
    NT = " nt" if P["xnt"] else ""
    XP = " nt" if P.get("xp") else ""
    WP = " nt" if P.get("wp") else ""

    e("s_cmp_ge_u32 s2, 256\ns_cbranch_scc1 L_end")
    if diag:
        e("s_memtime s[98:99]\ns_memrealtime s[100:101]")
    e("s_load_dwordx16 s[76:91], s[0:1], 0")
    e(f"v_and_b32 v{vL}, 63, v0\nv_lshrrev_b32 v{vTmp}, 6, v0\nv_lshlrev_b32 v{vL16}, 4, v{vL}")
    e(f"v_readfirstlane_b32 s{sW}, v{vTmp}")
    e(f"s_and_b32 s{sT}, s2, 7\ns_lshr_b32 s{sIDX}, s2, 3")
    e(f"s_lshr_b32 s{sT2}, s{sT}, 1\ns_and_b32 s{sT3}, s{sT}, 1")
    e(f"s_lshr_b32 s{sRC}, s{sIDX}, 3\ns_lshl_b32 s{sMB}, s{sT2}, 2\ns_add_u32 s{sMB}, s{sMB}, s{sRC}")
    e(f"s_and_b32 s{sT}, s{sIDX}, 7\ns_lshl_b32 s{sFT}, s{sT3}, 3\ns_add_u32 s{sFT}, s{sFT}, s{sT}")
    e(f"s_mul_i32 s{sRC}, s{sRC}, 3\ns_add_u32 s{sRC}, s{sRC}, s{sT}\ns_cmp_ge_u32 s{sRC}, 10\ns_cselect_b32 s{sT}, 10, 0\ns_sub_u32 s{sRC}, s{sRC}, s{sT}")
    if P.get("rot") == 1:
        e(f"s_mov_b32 s{sRC}, 0")
    if P.get("rot") == 3:
        e(f"s_mul_i32 s{sT}, s{sRC}, 86\ns_lshr_b32 s{sT}, s{sT}, 8\ns_mul_i32 s{sT}, s{sT}, 3\ns_sub_u32 s{sRC}, s{sRC}, s{sT}\ns_mul_i32 s{sRC}, s{sRC}, 3")
    if P.get("rot") == 4:
        e(f"s_and_b32 s{sRC}, s{sRC}, 3\ns_mul_i32 s{sRC}, s{sRC}, 5\ns_lshr_b32 s{sRC}, s{sRC}, 1")
    if P.get("rot") == 5:
        e(f"s_and_b32 s{sRC}, s{sRC}, 1")
    if P.get("rot") == 2:
        e(f"s_and_b32 s{sRC}, s{sRC}, 1\ns_mul_i32 s{sRC}, s{sRC}, 5")
    e(f"s_lshl_b32 s{sQ}, s{sMB}, 4\ns_add_u32 s{sQ}, s{sQ}, s{sFT}")
    e(f"s_lshr_b32 s{sJ}, s{sIDX}, 2\ns_lshl_b32 s{sMT}, s{sT2}, 3\ns_add_u32 s{sMT}, s{sMT}, s{sJ}")
    e(f"s_and_b32 s{sNT}, s{sIDX}, 3\ns_lshl_b32 s{sT3}, s{sT3}, 2\ns_add_u32 s{sNT}, s{sNT}, s{sT3}")
    e(f"s_and_b32 s{sP4}, s{sW}, 3\nv_lshrrev_b32 v{vR}, 5, v{vL}\nv_and_b32 v{vI}, 31, v{vL}\nv_mov_b32 v{vZ}, 0")
    e(f"s_mul_i32 s{sLX}, s{sP4}, 20480\ns_add_u32 s{sLX}, s{sLX}, {LDS_X}\ns_mul_i32 s{sC1}, s{sFT}, 192")

    names = {}

    def stamp(i, name):
        from gen import LITE
        if diag and not LITE[0]:
            names[i] = name
            e(f"s_memrealtime s[94:95]\ns_waitcnt lgkmcnt(0)\nv_writelane_b32 v0, s94, {i}")
            g.lg_done = g.lg

    def srd(r, k, nbytes):
        e(f"s_mov_b32 s{r}, s{76+2*k}\ns_mov_b32 s{r+1}, s{77+2*k}\ns_mov_b32 s{r+2}, {nbytes}\ns_mov_b32 s{r+3}, 0x00020000")

    def all_srds(order):
        tab = {0: (SX, 2621440), 1: (SW1, 1966080), 2: (SB1, 3072), 3: (SW2, 1966080), 4: (SB2, 1280), 5: (SO, 2621440), 6: (SD, 256), 7: (SWS, WS_BYTES)}
        for k in order:
            srd(tab[k][0], k, tab[k][1])

    def spin(check_emit, load_emit, tok):
        g.wait(vm=tok)
        if P.get("noside"):
            check_emit()
            return
        ok = g.newlab("ok")
        retry = g.newlab("retry")
        check_emit()
        e(f"s_cbranch_scc1 {ok}")
        e(f"s_mov_b32 s{sCNT}, {SPIN_MAX}")
        g.label(retry)
        e(f"s_sub_u32 s{sCNT}, s{sCNT}, 1\ns_cmp_eq_u32 s{sCNT}, 0\ns_cbranch_scc1 {ok}")
        load_emit()
        e("s_waitcnt vmcnt(0)")
        check_emit()
        e(f"s_cbranch_scc0 {retry}")
        g.label(ok)

    def publish(bits, tok):
        e(f"s_or_b32 s{sT}, s{sN}, {bits}\nv_mov_b32 v{vTmp+19}, s{sT}")
        g.wait(vm=tok)
        e(f"s_mov_b64 exec, 1")
        g.vmem(f"buffer_store_dword v{vTmp+19}, v{vFl}, s[{SWS}:{SWS+3}], 0 offen sc1")
        e(f"s_mov_b64 exec, -1")

    def flag_eval(regs, bit):
        m = 0xfffffffc | bit
        e(f"s_or_b32 s{sT}, s{sN}, {bit}")
        for r in regs:
            e(f"v_xor_b32 v{r}, s{sT}, v{r}")
        for r in regs[1:]:
            e(f"v_or_b32 v{regs[0]}, v{regs[0]}, v{r}")
        e(f"v_and_b32 v{regs[0]}, {m:#x}, v{regs[0]}\nv_cmp_eq_u32 vcc, 0, v{regs[0]}\ns_nop 1\ns_cmp_eq_u64 vcc, -1")

    def nonce_load():
        return f"buffer_load_dword v{vF}, v{vZ}, s[{SD}:{SD+3}], 0 offen sc1"

    def nonce_spin(tok):
        spin(lambda: e(f"v_readfirstlane_b32 s{sN}, v{vF}\ns_nop 3\ns_cmp_lg_u32 s{sN}, 0"), lambda: e(nonce_load()), tok)

    RHO = {0: f"s_mul_i32 s{sCNT}, s{sJ}, 3\ns_lshr_b32 s{sCNT}, s{sCNT}, 2", 1: f"s_mov_b32 s{sCNT}, 0", 2: f"s_and_b32 s{sCNT}, s{sJ}, 1\ns_mul_i32 s{sCNT}, s{sCNT}, 3"}[P.get("rho", 0)]

    def common_setup(vpo):
        e(f"s_lshl_b32 s{sT}, s{sQ}, 7\ns_lshl_b32 s{sT2}, s{sW}, 2\ns_add_u32 s{sT}, s{sT}, s{sT2}\ns_add_u32 s{sT}, s{sT}, {F0+64}\nv_mov_b32 v{vFl}, s{sT}")
        e(f"{RHO}\ns_mul_i32 s{sU1}, s{sW}, 6\ns_mul_i32 s{sU2}, s{sNT}, 48\ns_add_u32 s{sU2}, s{sU2}, s{sU1}")
        for sg in range(6):
            e(f"s_add_u32 s{sT}, s{sCNT}, s{sU1}\ns_lshl_b32 s{sPH+sg}, s{sT}, 10\ns_add_u32 s{sT}, s{sCNT}, s{sU2}\ns_mul_i32 s{sPW+sg}, s{sT}, 5120\n"
              f"s_add_u32 s{sCNT}, s{sCNT}, 1\ns_cmp_eq_u32 s{sCNT}, 6\ns_cselect_b32 s{sCNT}, 0, s{sCNT}")
        for i in range(4):
            e(f"s_add_u32 s{sT}, s{sW}, {i+1}\ns_and_b32 s{sT}, s{sT}, 3\ns_lshl_b32 s{sT2}, s{sMT}, 2\ns_add_u32 s{sT}, s{sT}, s{sT2}\n"
              f"s_mul_i32 s{sT}, s{sT}, 49152\ns_add_u32 s{sMI+i}, s{sT}, {H0}")
        e(f"v_cmp_le_u32 vcc, 6, v{vL}\ns_mul_i32 s{sT}, s{sNT}, 5\ns_nop 0\nv_cndmask_b32 v{vTmp+7}, 0, 1, vcc")
        e(f"v_lshl_add_u32 v{vTmp+6}, v{vTmp+7}, 2, s{sT}\nv_lshrrev_b32 v{vTmp+6}, 3, v{vTmp+6}\nv_mul_u32_u24 v{vTmp+6}, 48, v{vTmp+6}")
        e(f"v_mul_u32_u24 v{vTmp+7}, 6, v{vTmp+7}\nv_sub_u32 v{vTmp+7}, v{vL}, v{vTmp+7}\nv_add3_u32 v{vTmp+6}, v{vTmp+6}, v{vTmp+7}, s{sU1}")
        e(f"v_cmp_gt_u32 vcc, 12, v{vL}\nv_readfirstlane_b32 s{sT}, v{vTmp+6}\ns_nop 1\nv_mov_b32 v{vTmp+7}, s{sT}\nv_cndmask_b32 v{vpo}, v{vTmp+7}, v{vTmp+6}, vcc")
        e(f"v_lshlrev_b32 v{vpo}, 7, v{vpo}\nv_add_u32 v{vpo}, {F0+64+(16 if P['sideL'] else 0)}, v{vpo}")
        e(f"s_lshl_b32 s{sT}, s{sMB}, 4\ns_lshl_b32 s{sT2}, s{sW}, 1\ns_add_u32 s{sT}, s{sT}, s{sT2}\nv_and_b32 v{vTmp+7}, 1, v{vL}\nv_add_u32 v{vTmp+7}, s{sT}, v{vTmp+7}")
        e(f"s_and_b32 s{sT2}, s{sMT}, 1\ns_lshl_b32 s{sT2}, s{sT2}, 3\ns_add_u32 s{sT2}, s{sT2}, {F0+64}\nv_lshlrev_b32 v{vPh}, 7, v{vTmp+7}\nv_add_u32 v{vPh}, s{sT2}, v{vPh}")

    F4 = [vF, vF + 1, vF + 2, vF + 3]
    worder = [(sg, jj) for sg in range(6) for jj in range(5)]
    wreg = {k: 4 * i for i, k in enumerate(worder)}

    def w2_loads(vpo, tokp=None):
        wp = f"buffer_load_dwordx2 v[{vF}:{vF+1}], v{vpo}, s[{SWS}:{SWS+3}], 0 offen sc1"
        if tokp is None:
            tokp = g.vmem(wp)
        spin(lambda: flag_eval(F4[:2], B_P), lambda: e(wp), tokp)
        ops = []
        for (sg, jj) in worder:
            def f(sg=sg, jj=jj):
                r = wreg[(sg, jj)]
                if jj < 4:
                    so, imm = f"s{sPW+sg}", jj * 1024
                else:
                    e(f"s_add_u32 s{sT}, s{sPW+sg}, 4096")
                    so, imm = f"s{sT}", 0
                g.vmem(f"buffer_load_dwordx4 a[{r}:{r+3}], v{vL16}, s[{SWS}:{SWS+3}], {so} offen offset:{imm} sc1")
            ops.append(f)
        return ops

    cXo, cW2o, cP = 54, 55, 30
    sWS4 = (sWA, sWB, 72, 73)
    sSA, sSB = 74, 75
    st = {}

    def side_addr1():
        e(f"v_mul_u32_u24 v{cXo}, 1280, v{vR}\nv_lshl_add_u32 v{cXo}, v{vI}, 3, v{cXo}")
        e(f"s_lshl_b32 s{sT}, s{sQ}, 3\ns_lshl_b32 s{sT2}, s{sP4}, 1\ns_add_u32 s{sT}, s{sT}, s{sT2}\ns_mul_i32 s{sSA}, s{sT}, 1280")
        e(f"s_mul_i32 s{sCB}, s{sQ}, 1366\ns_lshr_b32 s{sCB}, s{sCB}, 16\ns_mul_i32 s{sT3}, s{sCB}, 48\ns_sub_u32 s{sS2}, s{sQ}, s{sT3}")
        e(f"v_lshrrev_b32 v{cW2o}, 3, v{vL}\nv_mul_u32_u24 v{cW2o}, 1280, v{cW2o}\nv_and_b32 v{vTmp+6}, 7, v{vL}\nv_lshl_add_u32 v{cW2o}, v{vTmp+6}, 4, v{cW2o}")
        e(f"s_mul_i32 s{sSB}, s{sS2}, {32*1280}\ns_lshl_b32 s{sT2}, s{sCB}, 8\ns_add_u32 s{sSB}, s{sSB}, s{sT2}\ns_lshl_b32 s{sT2}, s{sP4}, 7\ns_add_u32 s{sSB}, s{sSB}, s{sT2}")
        e(f"s_cmp_ge_u32 s{sQ}, 240\ns_cselect_b32 s{sK8}, 1, 0\ns_lshr_b32 s{sT}, s{sP4}, 1\ns_or_b32 s{sK8}, s{sK8}, s{sT}")

    def side_loads():
        lab = g.newlab("nononce")
        e(f"s_or_b32 s{sT}, s2, s{sP4}\ns_cmp_lg_u32 s{sT}, 0\ns_cbranch_scc1 {lab}")
        e(f"s_memrealtime s[{sEX}:{sEX+1}]\ns_waitcnt lgkmcnt(0)")
        e(f"s_lshl_b32 s{sT}, s{sEX}, 2\ns_or_b32 s{sT}, s{sT}, 0x80000000\nv_mov_b32 v{vTmp+4}, s{sT}")
        e(f"s_mov_b64 exec, 1")
        e(f"buffer_store_dword v{vTmp+4}, v{vZ}, s[{SD}:{SD+3}], 0 offen sc1")
        e(f"s_mov_b64 exec, -1")
        g.label(lab)
        lab_np = g.newlab("nopiece")
        e(f"s_cmp_lg_u32 s{sK8}, 0\ns_cbranch_scc1 {lab_np}")
        e(f"s_lshl_b32 s{sT2}, s{sP4}, 12\ns_add_u32 m0, s{sT2}, {LDS_STAGE}")
        for d in range(4):
            e(f"s_add_u32 m0, m0, 1024\ns_add_u32 s{sSB}, s{sSB}, {8*1280}" if d else "s_nop 0")
            e(f"buffer_load_dwordx4 v{cW2o}, s[{SW2}:{SW2+3}], s{sSB} offen{NT} lds")
        g.label(lab_np)
        for j in range(5):
            st["x"] = g.vmem(f"buffer_load_dwordx2 a[{116+2*j}:{117+2*j}], v{cXo}, s[{SX}:{SX+3}], s{sSA} offen offset:{256*j}")

    def side_addr2():
        e(f"v_lshlrev_b32 v{cP}, 11, v{vR}\nv_bfe_u32 v{vTmp+6}, v{vL}, 4, 1\nv_lshl_add_u32 v{cP}, v{vTmp+6}, 9, v{cP}")
        e(f"v_bfe_u32 v{vTmp+6}, v{vL}, 2, 2\nv_lshl_add_u32 v{cP}, v{vTmp+6}, 7, v{cP}\nv_and_b32 v{vTmp+6}, 3, v{vL}\nv_lshl_add_u32 v{cP}, v{vTmp+6}, 3, v{cP}")
        e(f"s_and_b32 s{sT}, s{sP4}, 1\ns_lshl_b32 s{sT}, s{sT}, 12\ns_add_u32 s{sT}, s{sT}, {LDS_STAGE}\nv_add_u32 v{cP}, s{sT}, v{cP}\ns_mov_b32 s{sONE}, 0x3f803f80")
        wsoff = []
        for ee in range(4):
            wsoff.append(f"s_lshl_b32 s{sT}, s{sCB}, 3\ns_lshl_b32 s{sT2}, s{sP4}, 2\ns_add_u32 s{sT}, s{sT}, s{sT2}\ns_add_u32 s{sT}, s{sT}, {ee}\n"
              f"s_mul_i32 s{sT2}, s{sT}, 13108\ns_lshr_b32 s{sT2}, s{sT2}, 16\ns_mul_i32 s{sT3}, s{sT2}, 5\ns_sub_u32 s{sT}, s{sT}, s{sT3}\n"
              f"s_mul_i32 s{sT2}, s{sT2}, 48\ns_add_u32 s{sT2}, s{sT2}, s{sS2}\ns_mul_i32 s{sT2}, s{sT2}, 5\ns_add_u32 s{sT}, s{sT}, s{sT2}\n"
              f"s_lshl_b32 s{sT}, s{sT}, 10\ns_cmp_lg_u32 s{sK8}, 0\ns_cselect_b32 s{sWS4[ee]}, {WS_BYTES}, s{sT}")
        for x_ in wsoff:
            e(x_)


    def reduce32(a, t, fill):
        def pad():
            e(fill.pop(0) if fill else "s_nop 1")
        for r in (8, 4, 2, 1):
            pad()
            e(f"v_add_f32_dpp v{a}, v{a}, v{a} row_ror:{r} row_mask:0xf bank_mask:0xf")
        e(f"v_mov_b32 v{t}, v{a}")
        pad()
        e(f"v_permlane16_swap_b32 v{a}, v{t}")
        pad()
        e(f"v_add_f32 v{a}, v{a}, v{t}")

    RW = 116

    def do_repack():
        if P.get("noside"):
            st["ps"] = g.vm
            st["nt"] = g.vmem(nonce_load())
            return
        g.wait(vm=st["x"])
        for rnd in range(2):
            for ee in range(2):
                for h in range(2):
                    t = g.ds(f"ds_read_b64_tr_b16 v[{vTmp+4*ee+2*h}:{vTmp+4*ee+2*h+1}], v{cP} offset:{(2*rnd+ee)*32 + h*1024}")
            g.wait(lg=t)
            for ee in range(2):
                st["ps"] = g.vmem(f"buffer_store_dwordx4 v[{vTmp+4*ee}:{vTmp+4*ee+3}], v{vL16}, s[{SWS}:{SWS+3}], s{sWS4[2*rnd+ee]} offen sc1")
            if rnd == 0:
                g.nop(2)
        if not P["sideL"]:
            st["nt"] = g.vmem(nonce_load())

    def do_stats():
        if P.get("noside"):
            return
        X = vTmp
        a0, a1, a2, t0, t1, s0, s1 = vTmp + 10, vTmp + 11, vTmp + 12, vTmp + 13, vTmp + 14, vTmp + 15, vTmp + 16
        g.wait(vm=st["x"])
        for j in range(10):
            e(f"v_accvgpr_read_b32 v{X+j}, a{RW+j}")
        for j in range(10):
            e(f"v_lshlrev_b32 v{t0}, 16, v{X+j}\nv_and_b32 v{t1}, 0xffff0000, v{X+j}")
            e(f"v_add_f32 v{a0}, v{a0}, v{t0}\nv_add_f32 v{a1}, v{a1}, v{t1}" if j else f"v_mov_b32 v{a0}, v{t0}\nv_mov_b32 v{a1}, v{t1}")
        e(f"v_add_f32 v{a0}, v{a0}, v{a1}")
        reduce32(a0, a1, [])
        e(f"v_mul_f32 v{a0}, 0x3acccccd, v{a0}")
        e(f"v_cvt_pk_bf16_f32 v{a2}, v{a0}, v{a0}\nv_lshlrev_b32 v{a2}, 16, v{a2}")
        e(f"v_sub_f32 v{a0}, v{a0}, v{a2}")
        for j in range(10):
            e(f"v_lshlrev_b32 v{t0}, 16, v{X+j}\nv_and_b32 v{t1}, 0xffff0000, v{X+j}\nv_sub_f32 v{t0}, v{t0}, v{a2}\nv_sub_f32 v{t1}, v{t1}, v{a2}")
            e(f"v_fmac_f32 v{s0}, v{t0}, v{t0}\nv_fmac_f32 v{s1}, v{t1}, v{t1}" if j else f"v_mul_f32 v{s0}, v{t0}, v{t0}\nv_mul_f32 v{s1}, v{t1}, v{t1}")
        e(f"v_add_f32 v{s0}, v{s0}, v{s1}")
        reduce32(s0, s1, [])
        e(f"v_mul_f32 v{s0}, 0x3acccccd, v{s0}")
        e(f"v_fma_f32 v{s0}, -v{a0}, v{a0}, v{s0}\nv_max_f32 v{s0}, 0, v{s0}")
        e(f"v_cvt_pk_bf16_f32 v{s0}, v{s0}, v{s0}\nv_lshlrev_b32 v{s0}, 16, v{s0}")
        e(f"v_add_f32 v{s0}, 0x3727c5ac, v{s0}")
        e(f"v_cvt_pk_bf16_f32 v{s0}, v{s0}, v{s0}\nv_lshlrev_b32 v{s0}, 16, v{s0}")
        e(f"v_sqrt_f32 v{s0}, v{s0}\ns_nop 0")
        e(f"v_cvt_pk_bf16_f32 v{GS}, v{a2}, v{s0}")

    def send_stats(sp=True):
        if sp:
            nonce_spin(st["nt"])
        g4 = vTmp + 10
        e(f"v_readlane_b32 s{sT}, v{GS}, 32\nv_mov_b32 v{g4}, s{sN}\nv_mov_b32 v{g4+1}, v{GS}\nv_mov_b32 v{g4+3}, s{sN}\nv_mov_b32 v{g4+2}, s{sT}")
        e(f"s_lshl_b32 s{sT}, s{sQ}, 7\ns_lshl_b32 s{sT2}, s{sP4}, 4\ns_add_u32 s{sT}, s{sT}, s{sT2}\ns_add_u32 s{sT}, s{sT}, {F0}\nv_mov_b32 v{g4+4}, s{sT}")
        e(f"s_mov_b64 exec, 1")
        g.vmem(f"buffer_store_dwordx4 v[{g4}:{g4+3}], v{g4+4}, s[{SWS}:{SWS+3}], 0 offen sc1")
        e(f"s_mov_b64 exec, -1")

    e(f"s_cmp_lt_u32 s{sW}, 4\ns_cbranch_scc1 L_cpath")
    e(f"v_lshrrev_b32 v{vTmp+6}, 4, v{vL}\nv_bfe_u32 v{vTmp+7}, v{vL}, 3, 1\nv_and_b32 v{vTmp+8}, 7, v{vL}")
    for d in range(2):
        e(f"v_add_u32 v{vTmp+9}, {4*d}, v{vTmp+6}")
        e(f"v_xor_b32 v{vTmp+10}, v{vTmp+8}, v{vTmp+9}\nv_lshl_add_u32 v{vTmp+9}, v{vTmp+7}, 3, v{vTmp+9}")
        e(f"v_mul_u32_u24 v{vTmp+9}, 1280, v{vTmp+9}\nv_lshl_add_u32 v{vXd+d}, v{vTmp+10}, 4, v{vTmp+9}\nv_add_u32 v{vXd+d+2}, {16*1280}, v{vXd+d}")
    e(f"s_lshl_b32 s{sXB}, s{sMB}, 2\ns_add_u32 s{sXB}, s{sXB}, s{sP4}\ns_mul_i32 s{sXB}, s{sXB}, {32*1280}\ns_mul_i32 s{sLW}, s{sP4}, 3072")
    for i in range(3):
        e(f"v_add_u32 v{vTmp+6}, {64*i}, v{vL}\nv_mul_u32_u24 v{vTmp+7}, 5462, v{vTmp+6}\nv_lshrrev_b32 v{vTmp+7}, 16, v{vTmp+7}")
        e(f"v_mul_u32_u24 v{vTmp+8}, 12, v{vTmp+7}\nv_sub_u32 v{vTmp+8}, v{vTmp+6}, v{vTmp+8}")
        e(f"v_mul_u32_u24 v{vTmp+7}, 3072, v{vTmp+7}\nv_lshl_add_u32 v{vW1+i}, v{vTmp+8}, 4, v{vTmp+7}")
    e(f"s_mul_i32 s{sT}, s{sP4}, {16*3072}\ns_add_u32 s{sW1o}, s{sC1}, s{sT}")
    e("s_waitcnt lgkmcnt(0)")
    if diag:
        e("v_writelane_b32 v0, s100, 62\nv_writelane_b32 v0, s100, 0")
    if P.get("prio") in (2, 3):
        e("s_setprio 1")
    all_srds((0, 1))
    if P.get("lin"):
        for k in range(4):
            if P["lin"] & 1:
                e(f"v_add_u32 v{vXd+k}, {k*1024}, v{vL16}")
        for k in range(3):
            if P["lin"] & 2:
                e(f"v_add_u32 v{vW1+k}, {k*1024}, v{vL16}")
    stamp(29, "L_first")
    ctok = {}

    def chunk_dmas(c):
        e(f"s_lshl_b32 s{sWC}, s{sRC}, 7\ns_add_u32 s{sWC}, s{sWC}, s{sXB}")
        e(f"s_mul_i32 s{sWD}, s{sRC}, {64*3072}\ns_add_u32 s{sWD}, s{sWD}, s{sW1o}")
        for k in range(4):
            e(f"s_add_u32 m0, s{sLX}, {(c % 5)*4096 + k*1024}")
            e(f"s_add_u32 s{sRC}, s{sRC}, 1" if k == 0 else "s_nop 0")
            g.vmem(f"buffer_load_dwordx4 v{vXd+k}, s[{SX}:{SX+3}], s{sWC} offen{XP} lds")
            if k < 3:
                e(f"s_add_u32 m0, s{sLW}, {LDS_W1 + (c % 6)*12288 + k*1024}")
                e(f"s_cmp_eq_u32 s{sRC}, 10\ns_cselect_b32 s{sRC}, 0, s{sRC}" if k == 0 else "s_nop 0")
                g.vmem(f"buffer_load_dwordx4 v{vW1+k}, s[{SW1}:{SW1+3}], s{sWD} offen{WP} lds")
        ctok[c] = g.vm

    if P.get("ldelay"):
        all_srds((3, 6, 7, 2, 4, 5))
        common_setup(vPo)
    chunk_dmas(0)
    if not P.get("c1late"):
        chunk_dmas(1)
    if P["sideL"]:
        all_srds((3, 6, 7, 2, 4, 5))
        side_addr1()
        side_loads()
        side_addr2()
    wl = []
    for c in range(10):
        if c == 0:
            stamp(27, "L_issued")
        g.wait(vm=ctok[c])
        if c == 0:
            stamp(28, "L_data0")
        e("s_barrier")
        stamp(1 + c, f"open{c}")
        if c == 0 and P.get("c1late"):
            chunk_dmas(1)
        if c + 2 < 10:
            chunk_dmas(c + 2)
        if c == 0 and not P.get("ldelay") and not P["sideL"]:
            all_srds((3, 6, 7, 2, 4, 5))
        if P["sideL"]:
            if c == P["l_rp"]:
                do_repack()
            if c == P["l_st"]:
                do_stats()
            if c == max(3, P["l_st"]):
                st["ss"] = True
            if c == P["l_pub"]:
                publish(B_P, st["ps"])
        if c == 1 and not P.get("ldelay"):
            common_setup(vPo)
        if c == 2:
            e(f"s_sub_u32 s{sT}, s{sJ}, s{sW}\ns_mul_i32 s{sT}, s{sT}, {6*128}\nv_add_u32 v{vPf}, s{sT}, v{vPo}")
            e(f"s_mul_i32 s{sT}, s{sNT}, 48\ns_mul_i32 s{sT2}, s{sJ}, 6\ns_add_u32 s{sT}, s{sT}, s{sT2}\ns_mul_i32 s{sT}, s{sT}, 5120\ns_mul_i32 s{sT2}, s{sP4}, 7680\ns_add_u32 s{sRX}, s{sT}, s{sT2}")
            st["nt"] = g.vmem(nonce_load())
        if c == 3:
            nonce_spin(st["nt"])
        if st.get("ss") is True:
            st["ss"] = False
            send_stats(False)
        if c in P["pf_at"]:
            g.wait(vm=st["pf"])
            lab = g.newlab("nopf")
            flag_eval([vF + 2, vF + 3], B_P)
            e(f"s_cbranch_scc0 {lab}")
            e(f"s_cmp_eq_u32 s{sRX}, -1\ns_cbranch_scc1 {lab}")
            for k in range(8):
                if k == 4:
                    e(f"s_add_u32 s{sRX}, s{sRX}, 4096")
                if k < 7:
                    e(f"buffer_load_dwordx4 v[{64+4*k}:{67+4*k}], v{vL16}, s[{SWS}:{SWS+3}], s{sRX} offen offset:{(k%4)*1024} sc1")
                else:
                    e(f"buffer_load_dwordx4 v[{64+4*k}:{67+4*k}], v{vL16}, s[{SWS}:{SWS+3}], s{sRX} offen offset:{2*1024+512} sc1")
            e(f"s_mov_b32 s{sRX}, -1")
            g.label(lab)
        if c + 1 in P["pf_at"]:
            st["pf"] = g.vmem(f"buffer_load_dwordx2 v[{vF+2}:{vF+3}], v{vPf}, s[{SWS}:{SWS+3}], 0 offen sc1")
        if c == P["wp_at"]:
            st["wp"] = g.vmem(f"buffer_load_dwordx2 v[{vF}:{vF+1}], v{vPo}, s[{SWS}:{SWS+3}], 0 offen sc1")
        if c == P["wc_at"]:
            wl = w2_loads(vPo, st["wp"])
        if c >= P["wc_at"]:
            for _ in range(P["lw"]):
                wl.pop(0)()
    e("s_barrier")
    stamp(11, "sbar")
    while wl:
        wl.pop(0)()
    stamp(12, "gemm1_done/Lw2issued")
    e("s_barrier")
    stamp(15, "deadbar")
    e("s_branch L_join")

    g.label("L_cpath")
    if P.get("prio") == 1:
        e("s_setprio 1")
    g.vm_done = g.vm
    g.lg_done = g.lg
    if not P["sideL"]:
        side_addr1()
    e("s_waitcnt lgkmcnt(0)")
    if diag:
        e("v_writelane_b32 v0, s100, 62\nv_writelane_b32 v0, s100, 0")
    all_srds((0, 3, 6))
    if not P["sideL"]:
        side_loads()
    all_srds((1, 7, 2, 4, 5))
    e(f"v_lshlrev_b32 v{vTmp+7}, 3, v{vR}\nv_bfe_u32 v{vTmp+6}, v{vL}, 2, 2\nv_add_u32 v{vTmp+7}, v{vTmp+7}, v{vTmp+6}")
    e(f"v_mul_u32_u24 v{vTmp+7}, 192, v{vTmp+7}\nv_bfe_u32 v{vTmp+6}, v{vL}, 4, 1\nv_lshl_add_u32 v{vTmp+7}, v{vTmp+6}, 5, v{vTmp+7}")
    e(f"v_and_b32 v{vTmp+6}, 3, v{vL}\nv_lshl_add_u32 v{vTmp+7}, v{vTmp+6}, 3, v{vTmp+7}")
    e(f"v_and_b32 v{vTmp+8}, 7, v{vL}\nv_bfe_u32 v{vTmp+6}, v{vL}, 4, 1\nv_lshl_add_u32 v{vTmp+9}, v{vTmp+6}, 3, v{vTmp+8}\nv_lshlrev_b32 v{vTmp+9}, 8, v{vTmp+9}")
    e(f"v_bfe_u32 v{vTmp+6}, v{vL}, 3, 1\nv_lshl_add_u32 v{vTmp+9}, v{vTmp+6}, 7, v{vTmp+9}\nv_add_u32 v{vTmp+9}, s{sLX}, v{vTmp+9}")
    for j in range(4):
        e(f"s_add_u32 s{sT}, s{sW}, {j}\ns_and_b32 s{sT}, s{sT}, 3\ns_mul_i32 s{sT2}, s{sT}, 3072\nv_add_u32 v{vT+j}, s{sT2}, v{vTmp+7}")
        e(f"s_lshl_b32 s{sT}, s{sT}, 1\nv_add_u32 v{vTmp+6}, s{sT}, v{vR}\nv_xor_b32 v{vTmp+6}, v{vTmp+6}, v{vTmp+8}\nv_lshl_add_u32 v{vXr+j}, v{vTmp+6}, 4, v{vTmp+9}")
    e(f"v_mov_b32 v{vTmp}, 0x3f803f80")
    for k in range(4):
        e(f"v_accvgpr_write_b32 a{AONE+k}, v{vTmp}")
    vPoC = 45
    common_setup(vPoC)
    e(f"s_lshl_b32 s{sT}, s{sMB}, 4\ns_lshl_b32 s{sT2}, s{sW}, 2\ns_add_u32 s{sT}, s{sT}, s{sT2}")
    e(f"v_lshrrev_b32 v{vTmp+7}, 3, v{vI}\nv_add_u32 v{vTmp+7}, s{sT}, v{vTmp+7}\nv_lshlrev_b32 v{vGs}, 7, v{vTmp+7}\nv_bfe_u32 v{vTmp+7}, v{vI}, 1, 2\nv_lshl_add_u32 v{vGs}, v{vTmp+7}, 4, v{vGs}\nv_add_u32 v{vGs}, {F0}, v{vGs}")
    e(f"v_bfe_u32 v{vTmp+6}, v{vL}, 4, 1\nv_mul_u32_u24 v{vHs}, 49152, v{vTmp+6}\nv_lshl_add_u32 v{vHs}, v{vR}, 8, v{vHs}")
    e(f"v_and_b32 v{vTmp+6}, 15, v{vL}\nv_lshl_add_u32 v{vHs}, v{vTmp+6}, 4, v{vHs}")
    e(f"s_lshl_b32 s{sT}, s{sMB}, 3\ns_lshl_b32 s{sT2}, s{sW}, 1\ns_add_u32 s{sT}, s{sT}, s{sT2}\ns_mul_i32 s{sT}, s{sT}, 49152\n"
      f"s_mul_i32 s{sT2}, s{sFT}, 3072\ns_add_u32 s{sT}, s{sT}, s{sT2}\ns_add_u32 s{sHB}, s{sT}, {H0}")
    e(f"v_mov_b32 v{vC2}, 0xbdd2d3e8\nv_mov_b32 v{vC2+1}, 0xbdd2d3e8\nv_mov_b32 v{vC1}, 0xc0135761\nv_mov_b32 v{vC1+1}, 0xc0135761\nv_mov_b32 v{vOne}, 1.0\nv_mov_b32 v{vOne+1}, 1.0")
    e(f"v_mov_b32 v{BU+2}, 0\nv_mov_b32 v{BU+3}, 0")
    if not P["sideL"]:
        side_addr2()
    NBUF = 12
    fr, xt = {}, {}
    nfr = [0]

    def xreg(c, j):
        return f"v[{XFR+4*j}:{XFR+4*j+3}]" if c % 2 == 0 else f"a[{XFA+4*j}:{XFA+4*j+3}]"

    def tr_issue(n, t):
        c, j = divmod(n, 4)
        r = FBA + 4 * (nfr[0] % NBUF)
        nfr[0] += 1
        for h in range(2):
            tok = g.ds(f"ds_read_b64_tr_b16 a[{r+2*h}:{r+2*h+1}], v{vT+j} offset:{(c % 6)*12288 + t*64 + h*768}")
        fr[(n, t)] = (r, tok)

    def open_chunk(c):
        if c:
            g.wait(lg=xt[(c - 1, 3)])
        e("s_barrier")
        stamp(1 + c, f"open{c}")
        for j in range(4):
            xt[(c, j)] = g.ds(f"ds_read_b128 {xreg(c, j)}, v{vXr+j} offset:{(c % 5)*4096}")

    def g_load():
        return f"buffer_load_dwordx4 v[{GS}:{GS+3}], v{vGs}, s[{SWS}:{SWS+3}], 0 offen sc1"

    def g_check():
        e(f"v_xor_b32 v{vF}, s{sN}, v{GS}\nv_xor_b32 v{vF+1}, s{sN}, v{GS+3}\nv_or_b32 v{vF}, v{vF}, v{vF+1}\nv_cmp_eq_u32 vcc, 0, v{vF}\ns_nop 1\ns_cmp_eq_u64 vcc, -1")

    TS = vTmp + 14
    if P.get("early"):
        do_repack()
        stamp(25, "repacked")
        do_stats()
        stamp(26, "stats_done")
    stamp(28, "C_ready")
    open_chunk(0)
    for n in (0, 1):
        for t in range(3):
            tr_issue(n, t)
    for n in range(40):
        c, j = divmod(n, 4)
        if j == 2 and c + 1 < 10:
            open_chunk(c + 1)
        for t in range(3):
            r, tok = fr[(n, t)]
            g.wait(lg=max(tok, xt[(c, j)]))
            cin = f"v[{ACC+16*t}:{ACC+16*t+15}]" if n else "0"
            if j == 0 and P.get("s4", 1):
                cs = f"a[{ACSA+4*t}:{ACSA+4*t+3}]" if c else "0"
                e(f"v_mfma_f32_4x4x4_16b_bf16 a[{ACSA+4*t}:{ACSA+4*t+3}], a[{AONE}:{AONE+1}], a[{r}:{r+1}], {cs}")
            elif j == 0:
                cs = f"a[{ACSA+16*t}:{ACSA+16*t+15}]" if c else "0"
                e(f"v_mfma_f32_32x32x16_bf16 a[{ACSA+16*t}:{ACSA+16*t+15}], a[{AONE}:{AONE+3}], a[{r}:{r+3}], {cs}")
            if P.get("fake16"):
                for u in range(2):
                    d = ACC + 16*t + 4*u + 8*(n % 2)
                    e(f"v_mfma_f32_16x16x32_bf16 v[{d}:{d+3}], a[{r}:{r+3}], {xreg(c, j)}, v[{d}:{d+3}]")
            else:
                e(f"v_mfma_f32_32x32x16_bf16 v[{ACC+16*t}:{ACC+16*t+15}], a[{r}:{r+3}], {xreg(c, j)}, {cin}")
            if n + 2 < 40:
                tr_issue(n + 2, t)
            if j == 0 and P.get("s4", 1):
                e(f"v_mfma_f32_4x4x4_16b_bf16 a[{ACSA+4*t}:{ACSA+4*t+3}], a[{AONE}:{AONE+1}], a[{r+2}:{r+3}], a[{ACSA+4*t}:{ACSA+4*t+3}]")
            if P["sideL"]:
                if n == 16 and t == 0:
                    st["nt"] = g.vmem(nonce_load())
                if n == 24 and t == 0:
                    nonce_spin(st["nt"])
            elif n == P["rp_at"] and t == 2 and not P.get("early"):
                do_repack()
            if n == P["ss_at"] and t == 2 and not P["sideL"]:
                if not P.get("early"):
                    do_stats()
                send_stats()
            if n == P["cp_at"] and t == 0 and not P["sideL"]:
                publish(B_P, st["ps"])
            if n == 37 and t == 0:
                st["wpt"] = g.vmem(f"buffer_load_dwordx2 v[{vF}:{vF+1}], v{vPoC}, s[{SWS}:{SWS+3}], 0 offen sc1")
            if n == 20 and t == 0:
                e(f"v_lshlrev_b32 v{vTmp+8}, 1, v{vI}")
                for tt in range(3):
                    st["b1"] = g.vmem(f"buffer_load_ushort v{vB1+tt}, v{vTmp+8}, s[{SB1}:{SB1+3}], s{sC1} offen offset:{tt*64}")
            if n == 28 and t == 0:
                st["gs"] = g.vmem(g_load())
            if n == 36 and t == 0:
                spin(g_check, lambda: e(g_load()), st["gs"])
                e(f"v_and_b32 v{TS}, 1, v{vL}\nv_cmp_eq_u32 vcc, 1, v{TS}\ns_nop 1\nv_cndmask_b32 v{TS}, v{GS+1}, v{GS+2}, vcc")
                e(f"v_xor_b32 v{TS}, 0x8000, v{TS}")
                e(f"v_and_b32 v{vR2}, 0xffff0000, v{TS}\nv_rcp_f32 v{vR2}, v{vR2}")
                e(f"v_and_b32 v{TS+1}, 0xffff, v{TS}\nv_lshl_or_b32 v{TS+1}, v{TS+1}, 16, v{TS+1}")
                e(f"v_cmp_gt_u32 vcc, 32, v{vL}\nv_mov_b32 v{vR2+1}, v{vR2}\ns_nop 0")
                e(f"v_cndmask_b32 v{BU}, 0, v{TS+1}, vcc\nv_cndmask_b32 v{BU+1}, 0, v{TS}, vcc")
            if n == 37 and t == 2:
                g.nop(6)
                e(f"s_lshl_b32 s{sT}, s{sW}, 3\ns_add_u32 s{sT}, s{sT}, {LDS_STAGE}\nv_lshl_add_u32 v{vTmp+8}, v{vI}, 5, s{sT}\nv_lshl_add_u32 v{vTmp+8}, v{vR}, 2, v{vTmp+8}")
                for tt in range(3):
                    sw = g.ds(f"ds_write_b32 v{vTmp+8}, a{ACSA+(4 if P.get('s4', 1) else 16)*tt} offset:{tt*1024}")
            if n == 38 and t == 2:
                g.wait(lg=sw)
                e("s_barrier")
                stamp(11, "sbar")
                e(f"v_lshlrev_b32 v{vTmp+8}, 5, v{vI}\nv_lshl_add_u32 v{vTmp+8}, v{vR}, 4, v{vTmp+8}\nv_add_u32 v{vTmp+8}, {LDS_STAGE}, v{vTmp+8}")
                SR = XFR
                for tt in range(3):
                    sr = g.ds(f"ds_read_b128 v[{SR+4*tt}:{SR+4*tt+3}], v{vTmp+8} offset:{tt*1024}")
    g.wait(vm=st["b1"], lg=sr)
    AU = vTmp
    for tt in range(3):
        s0 = SR + 4 * tt
        a = AU + 4 * tt
        e(f"v_add_f32 v{s0}, v{s0}, v{s0+1}\nv_add_f32 v{s0+2}, v{s0+2}, v{s0+3}\nv_add_f32 v{s0}, v{s0}, v{s0+2}")
        e(f"v_mov_b32 v{s0+1}, v{s0}\ns_nop 1\nv_permlane32_swap_b32 v{s0}, v{s0+1}\ns_nop 1\nv_add_f32 v{s0}, v{s0}, v{s0+1}")
        if not P.get("s4", 1):
            e(f"v_mul_f32 v{s0}, 0.5, v{s0}")
        e(f"v_and_b32 v{s0+1}, 0xffff0000, v{s0}\nv_sub_f32 v{s0}, v{s0}, v{s0+1}")
        e(f"v_and_b32 v{s0+2}, 0xffff0000, v{s0}\nv_sub_f32 v{s0}, v{s0}, v{s0+2}")
        e(f"v_lshrrev_b32 v{s0+1}, 16, v{s0+1}\nv_or_b32 v{a}, v{s0+1}, v{s0+2}")
        e(f"v_lshrrev_b32 v{s0}, 16, v{s0}\nv_lshl_or_b32 v{a+1}, v{vB1+tt}, 16, v{s0}")
        e(f"v_mov_b32 v{a+2}, 0\nv_mov_b32 v{a+3}, 0\ns_nop 1")
        e(f"v_mfma_f32_32x32x16_bf16 v[{ACC+16*tt}:{ACC+16*tt+15}], v[{a}:{a+3}], v[{BU}:{BU+3}], v[{ACC+16*tt}:{ACC+16*tt+15}]")
    wpt = st["wpt"]
    stamp(12, "gemm1_done/Lw2issued")
    G = XFR
    wl = w2_loads(vPoC, wpt) if P["cw_early"] else None
    for t in range(3):
        base = ACC + 16 * t
        for half in range(2):
            prs = range(4 * half, 4 * half + 4)
            Z = {pr: base + 2 * pr for pr in prs}
            Tq = {pr: G + 2 * (pr % 8) for pr in prs}
            for pr in prs:
                e(f"v_pk_mul_f32 v[{Z[pr]}:{Z[pr]+1}], v[{Z[pr]}:{Z[pr]+1}], v[{vR2}:{vR2+1}]")
            for pr in prs:
                e(f"v_pk_mul_f32 v[{Tq[pr]}:{Tq[pr]+1}], v[{Z[pr]}:{Z[pr]+1}], v[{Z[pr]}:{Z[pr]+1}]")
            for pr in prs:
                e(f"v_pk_fma_f32 v[{Tq[pr]}:{Tq[pr]+1}], v[{Tq[pr]}:{Tq[pr]+1}], v[{vC2}:{vC2+1}], v[{vC1}:{vC1+1}]")
            for pr in prs:
                e(f"v_pk_mul_f32 v[{Tq[pr]}:{Tq[pr]+1}], v[{Tq[pr]}:{Tq[pr]+1}], v[{Z[pr]}:{Z[pr]+1}]")
            for pr in prs:
                e(f"v_exp_f32 v{Tq[pr]}, v{Tq[pr]}\nv_exp_f32 v{Tq[pr]+1}, v{Tq[pr]+1}")
            for pr in prs:
                e(f"v_pk_add_f32 v[{Tq[pr]}:{Tq[pr]+1}], v[{Tq[pr]}:{Tq[pr]+1}], v[{vOne}:{vOne+1}]")
            for pr in prs:
                e(f"v_rcp_f32 v{Tq[pr]}, v{Tq[pr]}\nv_rcp_f32 v{Tq[pr]+1}, v{Tq[pr]+1}")
            for pr in prs:
                e(f"v_pk_mul_f32 v[{Tq[pr]}:{Tq[pr]+1}], v[{Tq[pr]}:{Tq[pr]+1}], v[{Z[pr]}:{Z[pr]+1}]")
            for pr in prs:
                e(f"v_cvt_pk_bf16_f32 v{base+8*half+(pr%4)}, v{Tq[pr]}, v{Tq[pr]+1}")
            o = base + 8 * half
            htok = g.vmem(f"buffer_store_dwordx4 v[{o}:{o+3}], v{vHs}, s[{SWS}:{SWS+3}], s{sHB} offen offset:{t*1024+half*512} sc1")
            for _ in range(P["cw_early"]):
                wl.pop(0)()
    stamp(13, "gelu_done")
    if wl is None:
        wl = w2_loads(vPoC, wpt)
    for _ in range(6):
        wl.pop(0)()
    publish(B_P | B_H, htok)
    stamp(14, "h_pub")
    e("s_barrier")
    stamp(15, "deadbar")
    while wl:
        wl.pop(0)()

    g.label("L_join")
    if P.get("prio") in (1, 2):
        e("s_setprio 0")
    g.vm_done = 0
    g.lg_done = g.lg
    base_vm = g.vm
    ACC2 = 48
    HB = [f"v[{r}:{r+3}]" for r in (24, 28, 32, 36, 40, 44)] + ["a[120:123]", "a[124:127]"]
    vB2o, vRd, vOo = 12, 13, 14
    vRW = 16
    hb_next = [0]
    htoks = {}

    def h_poll():
        return f"buffer_load_dwordx2 v[{vF}:{vF+1}], v{vPh}, s[{SWS}:{SWS+3}], 0 offen sc1"

    def h_load(sg, i):
        r = HB[hb_next[0] % len(HB)]
        hb_next[0] += 1
        e(f"s_add_u32 s{sT}, s{sPH+sg}, s{sMI+i}")
        htoks[(sg, i)] = (r, g.vmem(f"buffer_load_dwordx4 {r}, v{vL16}, s[{SWS}:{SWS+3}], s{sT} offen sc1"))

    started = set()

    def mm(sg, i):
        r, tok = htoks[(sg, i)]
        g.wait(vm=tok)
        for jj in range(5):
            c = ACC2 + 20 * i + 4 * jj
            w = wreg[(sg, jj)]
            cin = f"v[{c}:{c+3}]" if (i, jj) in started else "0"
            started.add((i, jj))
            e(f"v_mfma_f32_16x16x32_bf16 v[{c}:{c+3}], a[{w}:{w+3}], {r}, {cin}")

    stamp(16, "join")
    tk = g.vmem(h_poll())
    for i in range(4):
        e(f"s_add_u32 s{sT}, s{sW}, {i+1}\ns_and_b32 s{sT}, s{sT}, 3\ns_mul_i32 s{sT2}, s{sT}, {5*7*1024}\ns_sub_u32 s{sT}, s{sW}, s{sT}\ns_sub_u32 s{sT}, s{sT}, 1")
        for d in range(2):
            e(f"s_sub_u32 s{sT3}, s{sT}, {4*d}\ns_and_b32 s{sT3}, s{sT3}, 7\ns_lshl_b32 s{sT3}, s{sT3}, 10\ns_add_u32 s{sT3}, s{sT3}, s{sT2}\nv_add_u32 v{vRW+2*i+d}, s{sT3}, v{vL16}")
    e(f"s_mul_i32 s{sT}, s{sP4}, {5*7*1024}\nv_add_u32 v{vRd}, s{sT}, v{vL16}")
    e(f"v_lshrrev_b32 v{vB2o}, 4, v{vL}\nv_lshlrev_b32 v{vB2o}, 3, v{vB2o}\ns_mul_i32 s{sK8}, s{sNT}, 160")
    e(f"v_and_b32 v{vOo}, 15, v{vL}\nv_mul_u32_u24 v{vOo}, 1280, v{vOo}\nv_add_u32 v{vOo}, v{vOo}, v{vB2o}")
    e(f"s_lshl_b32 s{sT}, s{sMT}, 6\ns_lshl_b32 s{sT3}, s{sP4}, 4\ns_add_u32 s{sT}, s{sT}, s{sT3}\ns_mul_i32 s{sT}, s{sT}, 1280\ns_add_u32 s{sHB}, s{sT}, s{sK8}")
    spin(lambda: flag_eval([vF, vF + 1], B_H), lambda: e(h_poll()), tk)
    stamp(17, "h_flag_ok")
    LAST = P["last"]
    order = [(sg, i) for sg in range(6 - LAST) for i in range(4)] + [(sg, i) for i in range(4) for sg in range(6 - LAST, 6)]
    HA = min(P["ha"], len(HB) - 1)
    for o in order[:HA]:
        h_load(*o)
    for k, o in enumerate(order):
        mm(*o)
        if k + HA < len(order):
            h_load(*order[k + HA])
        if k in (0, 7, 15):
            stamp(18 + (k + 1) // 8, f"g2_{k}")
        kk = k - 4 * (6 - LAST)
        if kk >= LAST:
            i, p = divmod(kk, LAST)
            for jj in [jj for jj in range(5) if jj * LAST // 5 == p]:
                c = ACC2 + 20 * (i - 1) + 4 * jj
                g.ds(f"ds_write_b128 v{vRW+2*(i-1)+(1 if jj >= 3 else 0)}, v[{c}:{c+3}] offset:{jj*7168}")
    stamp(21, "gemm2_done")
    C3 = ACC2 + 60
    e(f"s_cmp_lt_u32 s{sW}, 4\ns_cbranch_scc1 L_tail0")
    sv = (g.vm, g.vm_done, g.lg, g.lg_done)
    for cls in (1, 0):
        if cls == 0:
            g.label("L_tail0")
            g.vm, g.vm_done, g.lg, g.lg_done = sv
        own = (0, 1, 2) if cls == 0 else (3, 4)
        oth = (3, 4) if cls == 0 else (0, 1, 2)
        BT = 24
        for k, jj in enumerate(own):
            b2tok = g.vmem(f"buffer_load_dwordx2 v[{BT+2*k}:{BT+2*k+1}], v{vB2o}, s[{SB2}:{SB2+3}], s{sK8} offen offset:{jj*32}")
        g.nop(6)
        for jj in oth:
            c = C3 + 4 * jj
            g.ds(f"ds_write_b128 v{vRW+6+(1 if jj >= 3 else 0)}, v[{c}:{c+3}] offset:{jj*7168}")
        g.wait(lg=g.lg)
        e("s_barrier")
        stamp(22, "redbar")
        R = ACC2
        todo = [(jj, s7) for jj in own for s7 in range(7)]
        rt = {}
        nb = 14
        for k, (jj, s7) in enumerate(todo[:nb]):
            rt[k] = g.ds(f"ds_read_b128 v[{R+4*k}:{R+4*k+3}], v{vRd} offset:{jj*7168 + s7*1024}")
        g.wait(vm=b2tok)
        for k, jj in enumerate(own):
            c = C3 + 4 * jj
            T4 = 32
            e(f"v_lshlrev_b32 v{T4}, 16, v{BT+2*k}\nv_and_b32 v{T4+1}, 0xffff0000, v{BT+2*k}\nv_lshlrev_b32 v{T4+2}, 16, v{BT+2*k+1}\nv_and_b32 v{T4+3}, 0xffff0000, v{BT+2*k+1}")
            e(f"v_pk_add_f32 v[{c}:{c+1}], v[{c}:{c+1}], v[{T4}:{T4+1}]\nv_pk_add_f32 v[{c+2}:{c+3}], v[{c+2}:{c+3}], v[{T4+2}:{T4+3}]")
        for k, (jj, s7) in enumerate(todo):
            c = C3 + 4 * jj
            b = R + 4 * (k % nb)
            g.wait(lg=rt[k])
            e(f"v_pk_add_f32 v[{c}:{c+1}], v[{c}:{c+1}], v[{b}:{b+1}]\nv_pk_add_f32 v[{c+2}:{c+3}], v[{c+2}:{c+3}], v[{b+2}:{b+3}]")
            if k + nb < len(todo):
                j2, s2 = todo[k + nb]
                rt[k + nb] = g.ds(f"ds_read_b128 v[{b}:{b+3}], v{vRd} offset:{j2*7168 + s2*1024}")
            if s7 == 6:
                e(f"v_cvt_pk_bf16_f32 v{c}, v{c}, v{c+1}\nv_cvt_pk_bf16_f32 v{c+1}, v{c+2}, v{c+3}")
                g.vmem(f"buffer_store_dwordx2 v[{c}:{c+1}], v{vOo}, s[{SO}:{SO+3}], s{sHB} offen offset:{jj*32}")
        if cls == 1:
            e("s_branch L_fin")
    g.label("L_fin")
    if diag:
        stamp(23, "out_issued")
        e("s_waitcnt vmcnt(0)")
        stamp(24, "end")
        e("s_memrealtime s[100:101]\ns_waitcnt lgkmcnt(0)\nv_writelane_b32 v0, s100, 63")
        e(f"s_lshl_b32 s{sT}, s2, 2\ns_add_u32 s{sT}, s{sT}, s{sP4}\ns_lshr_b32 s{sT2}, s{sW}, 2\ns_lshl_b32 s{sT2}, s{sT2}, 10\ns_add_u32 s{sT}, s{sT}, s{sT2}\ns_lshl_b32 s{sT}, s{sT}, 8\ns_add_u32 s{sT}, s{sT}, {T0}")
        names[0] = "entry"
        open("stampnames.txt", "w").write("\n".join(names.get(i, "-") for i in range(max(names) + 1)))
        e(f"v_lshlrev_b32 v{vF}, 2, v{vL}")
        e(f"buffer_store_dword v0, v{vF}, s[{SWS}:{SWS+3}], s{sT} offen")
    g.label("L_end")
    e("s_endpgm")
    out += g.L
    out += ['.section .rodata,"a"', ".p2align 6", f".amdhsa_kernel {NAME}",
            "  .amdhsa_next_free_vgpr 256", "  .amdhsa_next_free_sgpr 102", "  .amdhsa_accum_offset 128",
            "  .amdhsa_group_segment_fixed_size 0", "  .amdhsa_kernarg_size 64", "  .amdhsa_user_sgpr_count 2",
            "  .amdhsa_user_sgpr_kernarg_segment_ptr 1", "  .amdhsa_system_sgpr_workgroup_id_x 1", ".end_amdhsa_kernel"]
    return "\n".join(out) + "\n"


if __name__ == "__main__":
    diag = "--diag" in sys.argv
    path = [a for a in sys.argv[1:] if not a.startswith("--")]
    path = path[0] if path else "standalone__mixer_channel_mlp__prompt.s"
    P = {}
    for a in sys.argv[1:]:
        if a.startswith("--p:"):
            k, v = a[4:].split("=")
            P[k] = tuple(int(x) for x in v.split(",")) if "," in v else int(v)
    open(path, "w").write(generate(diag, P))
    print("wrote", path)
```

```python
import sys
from gen import Gen, NAME

W0 = 0
H0 = 4 << 20
F0 = 12 << 20
T0 = 17 << 20
WS_BYTES = 18 << 20

LDS_W1 = 0
LDS_X = 73728
LDS_STAGE = 155648
LDS_BYTES = 163840

SPIN_MAX = 60000
B_P, B_H = 1, 2

DEF = dict(rot=2, xnt=1, last=2, wp_at=7, wc_at=8, lw=5, ha=8, cw_early=0, rp_at=1, ss_at=5, cp_at=9, pf_at=(99, 99), sideL=0, l_rp=1, l_st=2, l_pub=4)


def generate(diag=False, P=None):
    P = dict(DEF, **(P or {}))
    g = Gen(diag)
    e = g.e
    SX, SW1, SB1, SW2, SB2, SO, SD, SWS = 4, 8, 12, 16, 20, 24, 28, 32
    sW, sP4 = 36, 37
    sMB, sFT, sQ, sMT, sNT, sJ, sRC = 38, 39, 40, 41, 42, 43, 44
    sN = 45
    sT, sT2, sT3 = 46, 47, 48
    sCNT = 49
    sEX = 50
    sMI = 52
    sLX, sXB, sHB, sIDX = 56, 57, 58, 59
    sC1, sCB, sS2, sWA, sWB, sWC, sWD = 60, 61, 62, 63, 64, 65, 66
    sLW, sW1o, sRX, sONE, sK8 = 67, 68, 69, 70, 71
    sPW = 76
    sPH = 82
    sU1, sU2 = 88, 89
    vL, vL16, vR, vI, vZ = 1, 2, 3, 4, 5
    vFl, vPh = 6, 7
    vF = 8
    vTmp = 12
    vT = 32
    vXr = 36
    vHs, vGs = 40, 41
    vB1 = 42
    vC2, vC1, vOne, vR2 = 46, 48, 50, 52
    XFR = 56
    ACC = 80
    XFR = 56
    GS = 72
    BU = 76
    FBA = 0
    ACSA = 48
    XFA = 96
    AONE = 112
    vXd = 32
    vW1 = 36
    vPo, vXo, vW2o, vP, vPf = 39, 40, 41, 42, 43
    XR = 44
    XF = 56
    A0, A1, A2, A3, S0 = 76, 77, 78, 79, 80
    vMS = 84
    G4 = 86
    PF = 92

    hdr = open("standalone__mixer_channel_mlp__prompt.s.ref").read().split("\n")
    head = []
    for ln in hdr:
        if ln.startswith("; @launch"):
            head.append(f"; @launch grid=(256,1,1) block=(512,1,1) lds={LDS_BYTES}")
            break
        head.append(ln)
    out = head + ['.amdgcn_target "amdgcn-amd-amdhsa--gfx950"', ".text", f".globl {NAME}", ".p2align 8",
                  f".type {NAME},@function", f"{NAME}:"]
    NT = " nt" if P["xnt"] else ""
    XP = " nt" if P.get("xp") else ""
    WP = " nt" if P.get("wp") else ""

    e("s_cmp_ge_u32 s2, 256\ns_cbranch_scc1 L_end")
    if diag:
        e("s_memtime s[98:99]\ns_memrealtime s[100:101]")
    e("s_load_dwordx16 s[76:91], s[0:1], 0")
    e(f"v_and_b32 v{vL}, 63, v0\nv_lshrrev_b32 v{vTmp}, 6, v0\nv_lshlrev_b32 v{vL16}, 4, v{vL}")
    e(f"v_readfirstlane_b32 s{sW}, v{vTmp}")
    e(f"s_and_b32 s{sT}, s2, 7\ns_lshr_b32 s{sIDX}, s2, 3")
    e(f"s_lshr_b32 s{sT2}, s{sT}, 1\ns_and_b32 s{sT3}, s{sT}, 1")
    e(f"s_lshr_b32 s{sRC}, s{sIDX}, 3\ns_lshl_b32 s{sMB}, s{sT2}, 2\ns_add_u32 s{sMB}, s{sMB}, s{sRC}")
    e(f"s_and_b32 s{sT}, s{sIDX}, 7\ns_lshl_b32 s{sFT}, s{sT3}, 3\ns_add_u32 s{sFT}, s{sFT}, s{sT}")
    e(f"s_mul_i32 s{sRC}, s{sRC}, 3\ns_add_u32 s{sRC}, s{sRC}, s{sT}\ns_cmp_ge_u32 s{sRC}, 10\ns_cselect_b32 s{sT}, 10, 0\ns_sub_u32 s{sRC}, s{sRC}, s{sT}")
    if P.get("rot") == 1:
        e(f"s_mov_b32 s{sRC}, 0")
    if P.get("rot") == 3:
        e(f"s_mul_i32 s{sT}, s{sRC}, 86\ns_lshr_b32 s{sT}, s{sT}, 8\ns_mul_i32 s{sT}, s{sT}, 3\ns_sub_u32 s{sRC}, s{sRC}, s{sT}\ns_mul_i32 s{sRC}, s{sRC}, 3")
    if P.get("rot") == 4:
        e(f"s_and_b32 s{sRC}, s{sRC}, 3\ns_mul_i32 s{sRC}, s{sRC}, 5\ns_lshr_b32 s{sRC}, s{sRC}, 1")
    if P.get("rot") == 5:
        e(f"s_and_b32 s{sRC}, s{sRC}, 1")
    if P.get("rot") == 2:
        e(f"s_and_b32 s{sRC}, s{sRC}, 1\ns_mul_i32 s{sRC}, s{sRC}, 5")
    e(f"s_lshl_b32 s{sQ}, s{sMB}, 4\ns_add_u32 s{sQ}, s{sQ}, s{sFT}")
    e(f"s_lshr_b32 s{sJ}, s{sIDX}, 2\ns_lshl_b32 s{sMT}, s{sT2}, 3\ns_add_u32 s{sMT}, s{sMT}, s{sJ}")
    e(f"s_and_b32 s{sNT}, s{sIDX}, 3\ns_lshl_b32 s{sT3}, s{sT3}, 2\ns_add_u32 s{sNT}, s{sNT}, s{sT3}")
    e(f"s_and_b32 s{sP4}, s{sW}, 3\nv_lshrrev_b32 v{vR}, 5, v{vL}\nv_and_b32 v{vI}, 31, v{vL}\nv_mov_b32 v{vZ}, 0")
    e(f"s_mul_i32 s{sLX}, s{sP4}, 20480\ns_add_u32 s{sLX}, s{sLX}, {LDS_X}\ns_mul_i32 s{sC1}, s{sFT}, 192")

    names = {}

    def stamp(i, name):
        from gen import LITE
        if diag and not LITE[0]:
            names[i] = name
            e(f"s_memrealtime s[94:95]\ns_waitcnt lgkmcnt(0)\nv_writelane_b32 v0, s94, {i}")
            g.lg_done = g.lg

    def srd(r, k, nbytes):
        e(f"s_mov_b32 s{r}, s{76+2*k}\ns_mov_b32 s{r+1}, s{77+2*k}\ns_mov_b32 s{r+2}, {nbytes}\ns_mov_b32 s{r+3}, 0x00020000")

    def all_srds(order):
        tab = {0: (SX, 2621440), 1: (SW1, 1966080), 2: (SB1, 3072), 3: (SW2, 1966080), 4: (SB2, 1280), 5: (SO, 2621440), 6: (SD, 256), 7: (SWS, WS_BYTES)}
        for k in order:
            srd(tab[k][0], k, tab[k][1])

    def spin(check_emit, load_emit, tok):
        g.wait(vm=tok)
        if P.get("noside"):
            check_emit()
            return
        ok = g.newlab("ok")
        retry = g.newlab("retry")
        check_emit()
        e(f"s_cbranch_scc1 {ok}")
        e(f"s_mov_b32 s{sCNT}, {SPIN_MAX}")
        g.label(retry)
        e(f"s_sub_u32 s{sCNT}, s{sCNT}, 1\ns_cmp_eq_u32 s{sCNT}, 0\ns_cbranch_scc1 {ok}")
        load_emit()
        e("s_waitcnt vmcnt(0)")
        check_emit()
        e(f"s_cbranch_scc0 {retry}")
        g.label(ok)

    def publish(bits, tok):
        e(f"s_or_b32 s{sT}, s{sN}, {bits}\nv_mov_b32 v{vTmp+19}, s{sT}")
        g.wait(vm=tok)
        e(f"s_mov_b64 exec, 1")
        g.vmem(f"buffer_store_dword v{vTmp+19}, v{vFl}, s[{SWS}:{SWS+3}], 0 offen sc1")
        e(f"s_mov_b64 exec, -1")

    def flag_eval(regs, bit):
        m = 0xfffffffc | bit
        e(f"s_or_b32 s{sT}, s{sN}, {bit}")
        for r in regs:
            e(f"v_xor_b32 v{r}, s{sT}, v{r}")
        for r in regs[1:]:
            e(f"v_or_b32 v{regs[0]}, v{regs[0]}, v{r}")
        e(f"v_and_b32 v{regs[0]}, {m:#x}, v{regs[0]}\nv_cmp_eq_u32 vcc, 0, v{regs[0]}\ns_nop 1\ns_cmp_eq_u64 vcc, -1")

    def nonce_load():
        return f"buffer_load_dword v{vF}, v{vZ}, s[{SD}:{SD+3}], 0 offen sc1"

    def nonce_spin(tok):
        spin(lambda: e(f"v_readfirstlane_b32 s{sN}, v{vF}\ns_nop 3\ns_cmp_lg_u32 s{sN}, 0"), lambda: e(nonce_load()), tok)

    RHO = {0: f"s_mul_i32 s{sCNT}, s{sJ}, 3\ns_lshr_b32 s{sCNT}, s{sCNT}, 2", 1: f"s_mov_b32 s{sCNT}, 0", 2: f"s_and_b32 s{sCNT}, s{sJ}, 1\ns_mul_i32 s{sCNT}, s{sCNT}, 3",
           3: f"s_mul_i32 s{sCNT}, s{sJ}, 3\ns_lshr_b32 s{sCNT}, s{sCNT}, 2\ns_and_b32 s{sT}, s{sIDX}, 1\ns_mul_i32 s{sT}, s{sT}, 3\ns_add_u32 s{sCNT}, s{sCNT}, s{sT}\ns_cmp_ge_u32 s{sCNT}, 6\ns_cselect_b32 s{sT}, 6, 0\ns_sub_u32 s{sCNT}, s{sCNT}, s{sT}",
           4: f"s_xor_b32 s{sCNT}, s{sJ}, s{sIDX}\ns_and_b32 s{sCNT}, s{sCNT}, 1\ns_mul_i32 s{sCNT}, s{sCNT}, 3",
           5: f"s_mul_i32 s{sCNT}, s{sJ}, 3\ns_lshr_b32 s{sCNT}, s{sCNT}, 2\ns_and_b32 s{sT}, s{sIDX}, 1\ns_mul_i32 s{sT}, s{sT}, 2\ns_add_u32 s{sCNT}, s{sCNT}, s{sT}\ns_cmp_ge_u32 s{sCNT}, 6\ns_cselect_b32 s{sT}, 6, 0\ns_sub_u32 s{sCNT}, s{sCNT}, s{sT}"}[P.get("rho", 0)]

    def common_setup(vpo):
        e(f"s_lshl_b32 s{sT}, s{sQ}, 7\ns_lshl_b32 s{sT2}, s{sW}, 2\ns_add_u32 s{sT}, s{sT}, s{sT2}\ns_add_u32 s{sT}, s{sT}, {F0+64}\nv_mov_b32 v{vFl}, s{sT}")
        e(f"{RHO}\ns_mul_i32 s{sU1}, s{sW}, 6\ns_mul_i32 s{sU2}, s{sNT}, 48\ns_add_u32 s{sU2}, s{sU2}, s{sU1}")
        for sg in range(6):
            e(f"s_add_u32 s{sT}, s{sCNT}, s{sU1}\ns_lshl_b32 s{sPH+sg}, s{sT}, 10\ns_add_u32 s{sT}, s{sCNT}, s{sU2}\ns_mul_i32 s{sPW+sg}, s{sT}, 5120\n"
              f"s_add_u32 s{sCNT}, s{sCNT}, 1\ns_cmp_eq_u32 s{sCNT}, 6\ns_cselect_b32 s{sCNT}, 0, s{sCNT}")
        for i in range(4):
            e(f"s_add_u32 s{sT}, s{sW}, {i+1}\ns_and_b32 s{sT}, s{sT}, 3\ns_lshl_b32 s{sT2}, s{sMT}, 2\ns_add_u32 s{sT}, s{sT}, s{sT2}\n"
              f"s_mul_i32 s{sT}, s{sT}, 49152\ns_add_u32 s{sMI+i}, s{sT}, {H0}")
        e(f"v_cmp_le_u32 vcc, 6, v{vL}\ns_mul_i32 s{sT}, s{sNT}, 5\ns_nop 0\nv_cndmask_b32 v{vTmp+7}, 0, 1, vcc")
        e(f"v_lshl_add_u32 v{vTmp+6}, v{vTmp+7}, 2, s{sT}\nv_lshrrev_b32 v{vTmp+6}, 3, v{vTmp+6}\nv_mul_u32_u24 v{vTmp+6}, 48, v{vTmp+6}")
        e(f"v_mul_u32_u24 v{vTmp+7}, 6, v{vTmp+7}\nv_sub_u32 v{vTmp+7}, v{vL}, v{vTmp+7}\nv_add3_u32 v{vTmp+6}, v{vTmp+6}, v{vTmp+7}, s{sU1}")
        e(f"v_cmp_gt_u32 vcc, 12, v{vL}\nv_readfirstlane_b32 s{sT}, v{vTmp+6}\ns_nop 1\nv_mov_b32 v{vTmp+7}, s{sT}\nv_cndmask_b32 v{vpo}, v{vTmp+7}, v{vTmp+6}, vcc")
        e(f"v_lshlrev_b32 v{vpo}, 7, v{vpo}\nv_add_u32 v{vpo}, {F0+64+(16 if P['sideL'] else 0)}, v{vpo}")
        e(f"s_lshl_b32 s{sT}, s{sMB}, 4\ns_lshl_b32 s{sT2}, s{sW}, 1\ns_add_u32 s{sT}, s{sT}, s{sT2}\nv_and_b32 v{vTmp+7}, 1, v{vL}\nv_add_u32 v{vTmp+7}, s{sT}, v{vTmp+7}")
        e(f"s_and_b32 s{sT2}, s{sMT}, 1\ns_lshl_b32 s{sT2}, s{sT2}, 3\ns_add_u32 s{sT2}, s{sT2}, {F0+64}\nv_lshlrev_b32 v{vPh}, 7, v{vTmp+7}\nv_add_u32 v{vPh}, s{sT2}, v{vPh}")

    F4 = [vF, vF + 1, vF + 2, vF + 3]
    worder = [(sg, jj) for sg in range(6) for jj in range(5)]
    wreg = {k: 4 * i for i, k in enumerate(worder)}

    def w2_loads(vpo, tokp=None):
        wp = f"buffer_load_dwordx2 v[{vF}:{vF+1}], v{vpo}, s[{SWS}:{SWS+3}], 0 offen sc1"
        if tokp is None:
            tokp = g.vmem(wp)
        spin(lambda: flag_eval(F4[:2], B_P), lambda: e(wp), tokp)
        ops = []
        for (sg, jj) in worder:
            def f(sg=sg, jj=jj):
                r = wreg[(sg, jj)]
                if jj < 4:
                    so, imm = f"s{sPW+sg}", jj * 1024
                else:
                    e(f"s_add_u32 s{sT}, s{sPW+sg}, 4096")
                    so, imm = f"s{sT}", 0
                g.vmem(f"buffer_load_dwordx4 a[{r}:{r+3}], v{vL16}, s[{SWS}:{SWS+3}], {so} offen offset:{imm} sc1")
            ops.append(f)
        return ops

    cXo, cW2o, cP = 54, 55, 30
    sWS4 = (sWA, sWB, 72, 73)
    sSA, sSB = 74, 75
    st = {}

    def side_addr1():
        e(f"v_mul_u32_u24 v{cXo}, 1280, v{vR}\nv_lshl_add_u32 v{cXo}, v{vI}, 3, v{cXo}")
        e(f"s_lshl_b32 s{sT}, s{sQ}, 3\ns_lshl_b32 s{sT2}, s{sP4}, 1\ns_add_u32 s{sT}, s{sT}, s{sT2}\ns_mul_i32 s{sSA}, s{sT}, 1280")
        e(f"s_mul_i32 s{sCB}, s{sQ}, 1366\ns_lshr_b32 s{sCB}, s{sCB}, 16\ns_mul_i32 s{sT3}, s{sCB}, 48\ns_sub_u32 s{sS2}, s{sQ}, s{sT3}")
        e(f"v_lshrrev_b32 v{cW2o}, 3, v{vL}\nv_mul_u32_u24 v{cW2o}, 1280, v{cW2o}\nv_and_b32 v{vTmp+6}, 7, v{vL}\nv_lshl_add_u32 v{cW2o}, v{vTmp+6}, 4, v{cW2o}")
        e(f"s_mul_i32 s{sSB}, s{sS2}, {32*1280}\ns_lshl_b32 s{sT2}, s{sCB}, 8\ns_add_u32 s{sSB}, s{sSB}, s{sT2}\ns_lshl_b32 s{sT2}, s{sP4}, 7\ns_add_u32 s{sSB}, s{sSB}, s{sT2}")
        e(f"s_cmp_ge_u32 s{sQ}, 240\ns_cselect_b32 s{sK8}, 1, 0\ns_lshr_b32 s{sT}, s{sP4}, 1\ns_or_b32 s{sK8}, s{sK8}, s{sT}")

    def side_loads():
        lab = g.newlab("nononce")
        e(f"s_or_b32 s{sT}, s2, s{sP4}\ns_cmp_lg_u32 s{sT}, 0\ns_cbranch_scc1 {lab}")
        e(f"s_memrealtime s[{sEX}:{sEX+1}]\ns_waitcnt lgkmcnt(0)")
        e(f"s_lshl_b32 s{sT}, s{sEX}, 2\ns_or_b32 s{sT}, s{sT}, 0x80000000\nv_mov_b32 v{vTmp+4}, s{sT}")
        e(f"s_mov_b64 exec, 1")
        e(f"buffer_store_dword v{vTmp+4}, v{vZ}, s[{SD}:{SD+3}], 0 offen sc1")
        e(f"s_mov_b64 exec, -1")
        g.label(lab)
        lab_np = g.newlab("nopiece")
        e(f"s_cmp_lg_u32 s{sK8}, 0\ns_cbranch_scc1 {lab_np}")
        e(f"s_lshl_b32 s{sT2}, s{sP4}, 12\ns_add_u32 m0, s{sT2}, {LDS_STAGE}")
        for d in range(4):
            e(f"s_add_u32 m0, m0, 1024\ns_add_u32 s{sSB}, s{sSB}, {8*1280}" if d else "s_nop 0")
            e(f"buffer_load_dwordx4 v{cW2o}, s[{SW2}:{SW2+3}], s{sSB} offen{NT} lds")
        g.label(lab_np)
        for j in range(5):
            st["x"] = g.vmem(f"buffer_load_dwordx2 a[{116+2*j}:{117+2*j}], v{cXo}, s[{SX}:{SX+3}], s{sSA} offen offset:{256*j}")

    def side_addr2():
        e(f"v_lshlrev_b32 v{cP}, 11, v{vR}\nv_bfe_u32 v{vTmp+6}, v{vL}, 4, 1\nv_lshl_add_u32 v{cP}, v{vTmp+6}, 9, v{cP}")
        e(f"v_bfe_u32 v{vTmp+6}, v{vL}, 2, 2\nv_lshl_add_u32 v{cP}, v{vTmp+6}, 7, v{cP}\nv_and_b32 v{vTmp+6}, 3, v{vL}\nv_lshl_add_u32 v{cP}, v{vTmp+6}, 3, v{cP}")
        e(f"s_and_b32 s{sT}, s{sP4}, 1\ns_lshl_b32 s{sT}, s{sT}, 12\ns_add_u32 s{sT}, s{sT}, {LDS_STAGE}\nv_add_u32 v{cP}, s{sT}, v{cP}\ns_mov_b32 s{sONE}, 0x3f803f80")
        wsoff = []
        for ee in range(4):
            wsoff.append(f"s_lshl_b32 s{sT}, s{sCB}, 3\ns_lshl_b32 s{sT2}, s{sP4}, 2\ns_add_u32 s{sT}, s{sT}, s{sT2}\ns_add_u32 s{sT}, s{sT}, {ee}\n"
              f"s_mul_i32 s{sT2}, s{sT}, 13108\ns_lshr_b32 s{sT2}, s{sT2}, 16\ns_mul_i32 s{sT3}, s{sT2}, 5\ns_sub_u32 s{sT}, s{sT}, s{sT3}\n"
              f"s_mul_i32 s{sT2}, s{sT2}, 48\ns_add_u32 s{sT2}, s{sT2}, s{sS2}\ns_mul_i32 s{sT2}, s{sT2}, 5\ns_add_u32 s{sT}, s{sT}, s{sT2}\n"
              f"s_lshl_b32 s{sT}, s{sT}, 10\ns_cmp_lg_u32 s{sK8}, 0\ns_cselect_b32 s{sWS4[ee]}, {WS_BYTES}, s{sT}")
        for x_ in wsoff:
            e(x_)


    def reduce32(a, t, fill):
        def pad():
            e(fill.pop(0) if fill else "s_nop 1")
        for r in (8, 4, 2, 1):
            pad()
            e(f"v_add_f32_dpp v{a}, v{a}, v{a} row_ror:{r} row_mask:0xf bank_mask:0xf")
        e(f"v_mov_b32 v{t}, v{a}")
        pad()
        e(f"v_permlane16_swap_b32 v{a}, v{t}")
        pad()
        e(f"v_add_f32 v{a}, v{a}, v{t}")

    RW = 116

    def do_repack():
        if P.get("noside"):
            st["ps"] = g.vm
            st["nt"] = g.vmem(nonce_load())
            return
        g.wait(vm=st["x"])
        for rnd in range(2):
            for ee in range(2):
                for h in range(2):
                    t = g.ds(f"ds_read_b64_tr_b16 v[{vTmp+4*ee+2*h}:{vTmp+4*ee+2*h+1}], v{cP} offset:{(2*rnd+ee)*32 + h*1024}")
            g.wait(lg=t)
            for ee in range(2):
                st["ps"] = g.vmem(f"buffer_store_dwordx4 v[{vTmp+4*ee}:{vTmp+4*ee+3}], v{vL16}, s[{SWS}:{SWS+3}], s{sWS4[2*rnd+ee]} offen sc1")
            if rnd == 0:
                g.nop(2)
        if not P["sideL"]:
            st["nt"] = g.vmem(nonce_load())

    def do_stats():
        if P.get("noside"):
            return
        X = vTmp
        a0, a1, a2, t0, t1, s0, s1 = vTmp + 10, vTmp + 11, vTmp + 12, vTmp + 13, vTmp + 14, vTmp + 15, vTmp + 16
        g.wait(vm=st["x"])
        for j in range(10):
            e(f"v_accvgpr_read_b32 v{X+j}, a{RW+j}")
        for j in range(10):
            e(f"v_lshlrev_b32 v{t0}, 16, v{X+j}\nv_and_b32 v{t1}, 0xffff0000, v{X+j}")
            e(f"v_add_f32 v{a0}, v{a0}, v{t0}\nv_add_f32 v{a1}, v{a1}, v{t1}" if j else f"v_mov_b32 v{a0}, v{t0}\nv_mov_b32 v{a1}, v{t1}")
        e(f"v_add_f32 v{a0}, v{a0}, v{a1}")
        reduce32(a0, a1, [])
        e(f"v_mul_f32 v{a0}, 0x3acccccd, v{a0}")
        e(f"v_cvt_pk_bf16_f32 v{a2}, v{a0}, v{a0}\nv_lshlrev_b32 v{a2}, 16, v{a2}")
        e(f"v_sub_f32 v{a0}, v{a0}, v{a2}")
        for j in range(10):
            e(f"v_lshlrev_b32 v{t0}, 16, v{X+j}\nv_and_b32 v{t1}, 0xffff0000, v{X+j}\nv_sub_f32 v{t0}, v{t0}, v{a2}\nv_sub_f32 v{t1}, v{t1}, v{a2}")
            e(f"v_fmac_f32 v{s0}, v{t0}, v{t0}\nv_fmac_f32 v{s1}, v{t1}, v{t1}" if j else f"v_mul_f32 v{s0}, v{t0}, v{t0}\nv_mul_f32 v{s1}, v{t1}, v{t1}")
        e(f"v_add_f32 v{s0}, v{s0}, v{s1}")
        reduce32(s0, s1, [])
        e(f"v_mul_f32 v{s0}, 0x3acccccd, v{s0}")
        e(f"v_fma_f32 v{s0}, -v{a0}, v{a0}, v{s0}\nv_max_f32 v{s0}, 0, v{s0}")
        e(f"v_cvt_pk_bf16_f32 v{s0}, v{s0}, v{s0}\nv_lshlrev_b32 v{s0}, 16, v{s0}")
        e(f"v_add_f32 v{s0}, 0x3727c5ac, v{s0}")
        e(f"v_cvt_pk_bf16_f32 v{s0}, v{s0}, v{s0}\nv_lshlrev_b32 v{s0}, 16, v{s0}")
        e(f"v_sqrt_f32 v{s0}, v{s0}\ns_nop 0")
        e(f"v_cvt_pk_bf16_f32 v{GS}, v{a2}, v{s0}")

    def send_stats(sp=True):
        if sp:
            nonce_spin(st["nt"])
        g4 = vTmp + 10
        e(f"v_readlane_b32 s{sT}, v{GS}, 32\nv_mov_b32 v{g4}, s{sN}\nv_mov_b32 v{g4+1}, v{GS}\nv_mov_b32 v{g4+3}, s{sN}\nv_mov_b32 v{g4+2}, s{sT}")
        e(f"s_lshl_b32 s{sT}, s{sQ}, 7\ns_lshl_b32 s{sT2}, s{sP4}, 4\ns_add_u32 s{sT}, s{sT}, s{sT2}\ns_add_u32 s{sT}, s{sT}, {F0}\nv_mov_b32 v{g4+4}, s{sT}")
        e(f"s_mov_b64 exec, 1")
        g.vmem(f"buffer_store_dwordx4 v[{g4}:{g4+3}], v{g4+4}, s[{SWS}:{SWS+3}], 0 offen sc1")
        e(f"s_mov_b64 exec, -1")

    e(f"s_cmp_lt_u32 s{sW}, 4\ns_cbranch_scc1 L_cpath")
    e(f"v_lshrrev_b32 v{vTmp+6}, 4, v{vL}\nv_bfe_u32 v{vTmp+7}, v{vL}, 3, 1\nv_and_b32 v{vTmp+8}, 7, v{vL}")
    for d in range(2):
        e(f"v_add_u32 v{vTmp+9}, {4*d}, v{vTmp+6}")
        e(f"v_xor_b32 v{vTmp+10}, v{vTmp+8}, v{vTmp+9}\nv_lshl_add_u32 v{vTmp+9}, v{vTmp+7}, 3, v{vTmp+9}")
        e(f"v_mul_u32_u24 v{vTmp+9}, 1280, v{vTmp+9}\nv_lshl_add_u32 v{vXd+d}, v{vTmp+10}, 4, v{vTmp+9}\nv_add_u32 v{vXd+d+2}, {16*1280}, v{vXd+d}")
    e(f"s_lshl_b32 s{sXB}, s{sMB}, 2\ns_add_u32 s{sXB}, s{sXB}, s{sP4}\ns_mul_i32 s{sXB}, s{sXB}, {32*1280}\ns_mul_i32 s{sLW}, s{sP4}, 3072")
    for i in range(3):
        e(f"v_add_u32 v{vTmp+6}, {64*i}, v{vL}\nv_mul_u32_u24 v{vTmp+7}, 5462, v{vTmp+6}\nv_lshrrev_b32 v{vTmp+7}, 16, v{vTmp+7}")
        e(f"v_mul_u32_u24 v{vTmp+8}, 12, v{vTmp+7}\nv_sub_u32 v{vTmp+8}, v{vTmp+6}, v{vTmp+8}")
        e(f"v_mul_u32_u24 v{vTmp+7}, 3072, v{vTmp+7}\nv_lshl_add_u32 v{vW1+i}, v{vTmp+8}, 4, v{vTmp+7}")
    e(f"s_mul_i32 s{sT}, s{sP4}, {16*3072}\ns_add_u32 s{sW1o}, s{sC1}, s{sT}")
    e("s_waitcnt lgkmcnt(0)")
    if diag:
        e("v_writelane_b32 v0, s100, 62\nv_writelane_b32 v0, s100, 0")
    if P.get("prio") in (2, 3):
        e("s_setprio 1")
    all_srds((0, 1))
    if P.get("lin"):
        for k in range(4):
            if P["lin"] & 1:
                e(f"v_add_u32 v{vXd+k}, {k*1024}, v{vL16}")
        for k in range(3):
            if P["lin"] & 2:
                e(f"v_add_u32 v{vW1+k}, {k*1024}, v{vL16}")
    stamp(29, "L_first")
    ctok = {}

    def chunk_dmas(c):
        e(f"s_lshl_b32 s{sWC}, s{sRC}, 7\ns_add_u32 s{sWC}, s{sWC}, s{sXB}")
        e(f"s_mul_i32 s{sWD}, s{sRC}, {64*3072}\ns_add_u32 s{sWD}, s{sWD}, s{sW1o}")
        for k in range(4):
            e(f"s_add_u32 m0, s{sLX}, {(c % 5)*4096 + k*1024}")
            e(f"s_add_u32 s{sRC}, s{sRC}, 1" if k == 0 else "s_nop 0")
            g.vmem(f"buffer_load_dwordx4 v{vXd+k}, s[{SX}:{SX+3}], s{sWC} offen{XP} lds")
            if k < 3:
                e(f"s_add_u32 m0, s{sLW}, {LDS_W1 + (c % 6)*12288 + k*1024}")
                e(f"s_cmp_eq_u32 s{sRC}, 10\ns_cselect_b32 s{sRC}, 0, s{sRC}" if k == 0 else "s_nop 0")
                g.vmem(f"buffer_load_dwordx4 v{vW1+k}, s[{SW1}:{SW1+3}], s{sWD} offen{WP} lds")
        ctok[c] = g.vm

    if P.get("ldelay"):
        all_srds((3, 6, 7, 2, 4, 5))
        common_setup(vPo)
    chunk_dmas(0)
    if not P.get("c1late"):
        chunk_dmas(1)
    if P["sideL"]:
        all_srds((3, 6, 7, 2, 4, 5))
        side_addr1()
        side_loads()
        side_addr2()
    wl = []
    for c in range(10):
        if c == 0:
            stamp(27, "L_issued")
        g.wait(vm=ctok[c])
        if c == 0:
            stamp(28, "L_data0")
        e("s_barrier")
        stamp(1 + c, f"open{c}")
        if c == 0 and P.get("c1late"):
            chunk_dmas(1)
        if c + 2 < 10:
            chunk_dmas(c + 2)
        if c == 0 and not P.get("ldelay") and not P["sideL"]:
            all_srds((3, 6, 7, 2, 4, 5))
        if P["sideL"]:
            if c == P["l_rp"]:
                do_repack()
            if c == P["l_st"]:
                do_stats()
            if c == max(3, P["l_st"]):
                st["ss"] = True
            if c == P["l_pub"]:
                publish(B_P, st["ps"])
        if c == 1 and not P.get("ldelay"):
            common_setup(vPo)
        if c == 2:
            e(f"s_sub_u32 s{sT}, s{sJ}, s{sW}\ns_mul_i32 s{sT}, s{sT}, {6*128}\nv_add_u32 v{vPf}, s{sT}, v{vPo}")
            e(f"s_mul_i32 s{sT}, s{sNT}, 48\ns_mul_i32 s{sT2}, s{sJ}, 6\ns_add_u32 s{sT}, s{sT}, s{sT2}\ns_mul_i32 s{sT}, s{sT}, 5120\ns_mul_i32 s{sT2}, s{sP4}, 7680\ns_add_u32 s{sRX}, s{sT}, s{sT2}")
            st["nt"] = g.vmem(nonce_load())
        if c == 3:
            nonce_spin(st["nt"])
        if st.get("ss") is True:
            st["ss"] = False
            send_stats(False)
        if c in P["pf_at"]:
            g.wait(vm=st["pf"])
            lab = g.newlab("nopf")
            flag_eval([vF + 2, vF + 3], B_P)
            e(f"s_cbranch_scc0 {lab}")
            e(f"s_cmp_eq_u32 s{sRX}, -1\ns_cbranch_scc1 {lab}")
            for k in range(8):
                if k == 4:
                    e(f"s_add_u32 s{sRX}, s{sRX}, 4096")
                if k < 7:
                    e(f"buffer_load_dwordx4 v[{64+4*k}:{67+4*k}], v{vL16}, s[{SWS}:{SWS+3}], s{sRX} offen offset:{(k%4)*1024} sc1")
                else:
                    e(f"buffer_load_dwordx4 v[{64+4*k}:{67+4*k}], v{vL16}, s[{SWS}:{SWS+3}], s{sRX} offen offset:{2*1024+512} sc1")
            e(f"s_mov_b32 s{sRX}, -1")
            g.label(lab)
        if c + 1 in P["pf_at"]:
            st["pf"] = g.vmem(f"buffer_load_dwordx2 v[{vF+2}:{vF+3}], v{vPf}, s[{SWS}:{SWS+3}], 0 offen sc1")
        if c == P["wp_at"]:
            st["wp"] = g.vmem(f"buffer_load_dwordx2 v[{vF}:{vF+1}], v{vPo}, s[{SWS}:{SWS+3}], 0 offen sc1")
        if c == P["wc_at"]:
            wl = w2_loads(vPo, st["wp"])
        if c >= P["wc_at"]:
            for _ in range(P["lw"]):
                wl.pop(0)()
    e("s_barrier")
    stamp(11, "sbar")
    while wl:
        wl.pop(0)()
    stamp(12, "gemm1_done/Lw2issued")
    e("s_barrier")
    stamp(15, "deadbar")
    e("s_branch L_join")

    g.label("L_cpath")
    if P.get("prio") == 1:
        e("s_setprio 1")
    g.vm_done = g.vm
    g.lg_done = g.lg
    if not P["sideL"]:
        side_addr1()
    e("s_waitcnt lgkmcnt(0)")
    if diag:
        e("v_writelane_b32 v0, s100, 62\nv_writelane_b32 v0, s100, 0")
    all_srds((0, 3, 6))
    if not P["sideL"]:
        side_loads()
    all_srds((1, 7, 2, 4, 5))
    e(f"v_lshlrev_b32 v{vTmp+7}, 3, v{vR}\nv_bfe_u32 v{vTmp+6}, v{vL}, 2, 2\nv_add_u32 v{vTmp+7}, v{vTmp+7}, v{vTmp+6}")
    e(f"v_mul_u32_u24 v{vTmp+7}, 192, v{vTmp+7}\nv_bfe_u32 v{vTmp+6}, v{vL}, 4, 1\nv_lshl_add_u32 v{vTmp+7}, v{vTmp+6}, 5, v{vTmp+7}")
    e(f"v_and_b32 v{vTmp+6}, 3, v{vL}\nv_lshl_add_u32 v{vTmp+7}, v{vTmp+6}, 3, v{vTmp+7}")
    e(f"v_and_b32 v{vTmp+8}, 7, v{vL}\nv_bfe_u32 v{vTmp+6}, v{vL}, 4, 1\nv_lshl_add_u32 v{vTmp+9}, v{vTmp+6}, 3, v{vTmp+8}\nv_lshlrev_b32 v{vTmp+9}, 8, v{vTmp+9}")
    e(f"v_bfe_u32 v{vTmp+6}, v{vL}, 3, 1\nv_lshl_add_u32 v{vTmp+9}, v{vTmp+6}, 7, v{vTmp+9}\nv_add_u32 v{vTmp+9}, s{sLX}, v{vTmp+9}")
    for j in range(4):
        e(f"s_add_u32 s{sT}, s{sW}, {j}\ns_and_b32 s{sT}, s{sT}, 3\ns_mul_i32 s{sT2}, s{sT}, 3072\nv_add_u32 v{vT+j}, s{sT2}, v{vTmp+7}")
        e(f"s_lshl_b32 s{sT}, s{sT}, 1\nv_add_u32 v{vTmp+6}, s{sT}, v{vR}\nv_xor_b32 v{vTmp+6}, v{vTmp+6}, v{vTmp+8}\nv_lshl_add_u32 v{vXr+j}, v{vTmp+6}, 4, v{vTmp+9}")
    e(f"v_mov_b32 v{vTmp}, 0x3f803f80")
    for k in range(4):
        e(f"v_accvgpr_write_b32 a{AONE+k}, v{vTmp}")
    vPoC = 45
    common_setup(vPoC)
    e(f"s_lshl_b32 s{sT}, s{sMB}, 4\ns_lshl_b32 s{sT2}, s{sW}, 2\ns_add_u32 s{sT}, s{sT}, s{sT2}")
    e(f"v_lshrrev_b32 v{vTmp+7}, 3, v{vI}\nv_add_u32 v{vTmp+7}, s{sT}, v{vTmp+7}\nv_lshlrev_b32 v{vGs}, 7, v{vTmp+7}\nv_bfe_u32 v{vTmp+7}, v{vI}, 1, 2\nv_lshl_add_u32 v{vGs}, v{vTmp+7}, 4, v{vGs}\nv_add_u32 v{vGs}, {F0}, v{vGs}")
    e(f"v_bfe_u32 v{vTmp+6}, v{vL}, 4, 1\nv_mul_u32_u24 v{vHs}, 49152, v{vTmp+6}\nv_lshl_add_u32 v{vHs}, v{vR}, 8, v{vHs}")
    e(f"v_and_b32 v{vTmp+6}, 15, v{vL}\nv_lshl_add_u32 v{vHs}, v{vTmp+6}, 4, v{vHs}")
    e(f"s_lshl_b32 s{sT}, s{sMB}, 3\ns_lshl_b32 s{sT2}, s{sW}, 1\ns_add_u32 s{sT}, s{sT}, s{sT2}\ns_mul_i32 s{sT}, s{sT}, 49152\n"
      f"s_mul_i32 s{sT2}, s{sFT}, 3072\ns_add_u32 s{sT}, s{sT}, s{sT2}\ns_add_u32 s{sHB}, s{sT}, {H0}")
    e(f"v_mov_b32 v{vC2}, 0xbdd2d3e8\nv_mov_b32 v{vC2+1}, 0xbdd2d3e8\nv_mov_b32 v{vC1}, 0xc0135761\nv_mov_b32 v{vC1+1}, 0xc0135761\nv_mov_b32 v{vOne}, 1.0\nv_mov_b32 v{vOne+1}, 1.0")
    e(f"v_mov_b32 v{BU+2}, 0\nv_mov_b32 v{BU+3}, 0")
    if not P["sideL"]:
        side_addr2()
    NBUF = 12
    fr, xt = {}, {}
    nfr = [0]

    def xreg(c, j):
        return f"v[{XFR+4*j}:{XFR+4*j+3}]" if c % 2 == 0 else f"a[{XFA+4*j}:{XFA+4*j+3}]"

    def tr_issue(n, t):
        c, j = divmod(n, 4)
        r = FBA + 4 * (nfr[0] % NBUF)
        nfr[0] += 1
        for h in range(2):
            tok = g.ds(f"ds_read_b64_tr_b16 a[{r+2*h}:{r+2*h+1}], v{vT+j} offset:{(c % 6)*12288 + t*64 + h*768}")
        fr[(n, t)] = (r, tok)

    def open_chunk(c):
        if c:
            g.wait(lg=xt[(c - 1, 3)])
        e("s_barrier")
        stamp(1 + c, f"open{c}")
        for j in range(4):
            xt[(c, j)] = g.ds(f"ds_read_b128 {xreg(c, j)}, v{vXr+j} offset:{(c % 5)*4096}")

    def g_load():
        return f"buffer_load_dwordx4 v[{GS}:{GS+3}], v{vGs}, s[{SWS}:{SWS+3}], 0 offen sc1"

    def g_check():
        e(f"v_xor_b32 v{vF}, s{sN}, v{GS}\nv_xor_b32 v{vF+1}, s{sN}, v{GS+3}\nv_or_b32 v{vF}, v{vF}, v{vF+1}\nv_cmp_eq_u32 vcc, 0, v{vF}\ns_nop 1\ns_cmp_eq_u64 vcc, -1")

    TS = vTmp + 14
    if P.get("early"):
        do_repack()
        stamp(25, "repacked")
        do_stats()
        stamp(26, "stats_done")
    stamp(28, "C_ready")
    open_chunk(0)
    for n in (0, 1):
        for t in range(3):
            tr_issue(n, t)
    for n in range(40):
        c, j = divmod(n, 4)
        if j == 2 and c + 1 < 10:
            open_chunk(c + 1)
        for t in range(3):
            r, tok = fr[(n, t)]
            g.wait(lg=max(tok, xt[(c, j)]))
            cin = f"v[{ACC+16*t}:{ACC+16*t+15}]" if n else "0"
            if j == 0 and P.get("s4", 1):
                cs = f"a[{ACSA+4*t}:{ACSA+4*t+3}]" if c else "0"
                e(f"v_mfma_f32_4x4x4_16b_bf16 a[{ACSA+4*t}:{ACSA+4*t+3}], a[{AONE}:{AONE+1}], a[{r}:{r+1}], {cs}")
            elif j == 0:
                cs = f"a[{ACSA+16*t}:{ACSA+16*t+15}]" if c else "0"
                e(f"v_mfma_f32_32x32x16_bf16 a[{ACSA+16*t}:{ACSA+16*t+15}], a[{AONE}:{AONE+3}], a[{r}:{r+3}], {cs}")
            if P.get("fake16"):
                for u in range(2):
                    d = ACC + 16*t + 4*u + 8*(n % 2)
                    e(f"v_mfma_f32_16x16x32_bf16 v[{d}:{d+3}], a[{r}:{r+3}], {xreg(c, j)}, v[{d}:{d+3}]")
            else:
                e(f"v_mfma_f32_32x32x16_bf16 v[{ACC+16*t}:{ACC+16*t+15}], a[{r}:{r+3}], {xreg(c, j)}, {cin}")
            if n + 2 < 40:
                tr_issue(n + 2, t)
            if j == 0 and P.get("s4", 1):
                e(f"v_mfma_f32_4x4x4_16b_bf16 a[{ACSA+4*t}:{ACSA+4*t+3}], a[{AONE}:{AONE+1}], a[{r+2}:{r+3}], a[{ACSA+4*t}:{ACSA+4*t+3}]")
            if P["sideL"]:
                if n == 16 and t == 0:
                    st["nt"] = g.vmem(nonce_load())
                if n == 24 and t == 0:
                    nonce_spin(st["nt"])
            elif n == P["rp_at"] and t == 2 and not P.get("early"):
                do_repack()
            if n == P["ss_at"] and t == 2 and not P["sideL"]:
                if not P.get("early"):
                    do_stats()
                send_stats()
            if n == P["cp_at"] and t == 0 and not P["sideL"]:
                publish(B_P, st["ps"])
            if n == 37 and t == 0:
                st["wpt"] = g.vmem(f"buffer_load_dwordx2 v[{vF}:{vF+1}], v{vPoC}, s[{SWS}:{SWS+3}], 0 offen sc1")
            if n == 20 and t == 0:
                e(f"v_lshlrev_b32 v{vTmp+8}, 1, v{vI}")
                for tt in range(3):
                    st["b1"] = g.vmem(f"buffer_load_ushort v{vB1+tt}, v{vTmp+8}, s[{SB1}:{SB1+3}], s{sC1} offen offset:{tt*64}")
            if n == 28 and t == 0:
                st["gs"] = g.vmem(g_load())
            if n == 36 and t == 0:
                spin(g_check, lambda: e(g_load()), st["gs"])
                e(f"v_and_b32 v{TS}, 1, v{vL}\nv_cmp_eq_u32 vcc, 1, v{TS}\ns_nop 1\nv_cndmask_b32 v{TS}, v{GS+1}, v{GS+2}, vcc")
                e(f"v_xor_b32 v{TS}, 0x8000, v{TS}")
                e(f"v_and_b32 v{vR2}, 0xffff0000, v{TS}\nv_rcp_f32 v{vR2}, v{vR2}")
                e(f"v_and_b32 v{TS+1}, 0xffff, v{TS}\nv_lshl_or_b32 v{TS+1}, v{TS+1}, 16, v{TS+1}")
                e(f"v_cmp_gt_u32 vcc, 32, v{vL}\nv_mov_b32 v{vR2+1}, v{vR2}\ns_nop 0")
                e(f"v_cndmask_b32 v{BU}, 0, v{TS+1}, vcc\nv_cndmask_b32 v{BU+1}, 0, v{TS}, vcc")
            if n == 37 and t == 2:
                g.nop(6)
                e(f"s_lshl_b32 s{sT}, s{sW}, 3\ns_add_u32 s{sT}, s{sT}, {LDS_STAGE}\nv_lshl_add_u32 v{vTmp+8}, v{vI}, 5, s{sT}\nv_lshl_add_u32 v{vTmp+8}, v{vR}, 2, v{vTmp+8}")
                for tt in range(3):
                    sw = g.ds(f"ds_write_b32 v{vTmp+8}, a{ACSA+(4 if P.get('s4', 1) else 16)*tt} offset:{tt*1024}")
            if n == 38 and t == 2:
                g.wait(lg=sw)
                e("s_barrier")
                stamp(11, "sbar")
                e(f"v_lshlrev_b32 v{vTmp+8}, 5, v{vI}\nv_lshl_add_u32 v{vTmp+8}, v{vR}, 4, v{vTmp+8}\nv_add_u32 v{vTmp+8}, {LDS_STAGE}, v{vTmp+8}")
                SR = XFR
                for tt in range(3):
                    sr = g.ds(f"ds_read_b128 v[{SR+4*tt}:{SR+4*tt+3}], v{vTmp+8} offset:{tt*1024}")
    g.wait(vm=st["b1"], lg=sr)
    AU = vTmp
    for tt in range(3):
        s0 = SR + 4 * tt
        a = AU + 4 * tt
        e(f"v_add_f32 v{s0}, v{s0}, v{s0+1}\nv_add_f32 v{s0+2}, v{s0+2}, v{s0+3}\nv_add_f32 v{s0}, v{s0}, v{s0+2}")
        e(f"v_mov_b32 v{s0+1}, v{s0}\ns_nop 1\nv_permlane32_swap_b32 v{s0}, v{s0+1}\ns_nop 1\nv_add_f32 v{s0}, v{s0}, v{s0+1}")
        if not P.get("s4", 1):
            e(f"v_mul_f32 v{s0}, 0.5, v{s0}")
        e(f"v_and_b32 v{s0+1}, 0xffff0000, v{s0}\nv_sub_f32 v{s0}, v{s0}, v{s0+1}")
        e(f"v_and_b32 v{s0+2}, 0xffff0000, v{s0}\nv_sub_f32 v{s0}, v{s0}, v{s0+2}")
        e(f"v_lshrrev_b32 v{s0+1}, 16, v{s0+1}\nv_or_b32 v{a}, v{s0+1}, v{s0+2}")
        e(f"v_lshrrev_b32 v{s0}, 16, v{s0}\nv_lshl_or_b32 v{a+1}, v{vB1+tt}, 16, v{s0}")
        e(f"v_mov_b32 v{a+2}, 0\nv_mov_b32 v{a+3}, 0\ns_nop 1")
        e(f"v_mfma_f32_32x32x16_bf16 v[{ACC+16*tt}:{ACC+16*tt+15}], v[{a}:{a+3}], v[{BU}:{BU+3}], v[{ACC+16*tt}:{ACC+16*tt+15}]")
    wpt = st["wpt"]
    stamp(12, "gemm1_done/Lw2issued")
    G = XFR
    wl = w2_loads(vPoC, wpt) if P["cw_early"] else None
    for t in range(3):
        base = ACC + 16 * t
        for half in range(2):
            prs = range(4 * half, 4 * half + 4)
            Z = {pr: base + 2 * pr for pr in prs}
            Tq = {pr: G + 2 * (pr % 8) for pr in prs}
            for pr in prs:
                e(f"v_pk_mul_f32 v[{Z[pr]}:{Z[pr]+1}], v[{Z[pr]}:{Z[pr]+1}], v[{vR2}:{vR2+1}]")
            for pr in prs:
                e(f"v_pk_mul_f32 v[{Tq[pr]}:{Tq[pr]+1}], v[{Z[pr]}:{Z[pr]+1}], v[{Z[pr]}:{Z[pr]+1}]")
            for pr in prs:
                e(f"v_pk_fma_f32 v[{Tq[pr]}:{Tq[pr]+1}], v[{Tq[pr]}:{Tq[pr]+1}], v[{vC2}:{vC2+1}], v[{vC1}:{vC1+1}]")
            for pr in prs:
                e(f"v_pk_mul_f32 v[{Tq[pr]}:{Tq[pr]+1}], v[{Tq[pr]}:{Tq[pr]+1}], v[{Z[pr]}:{Z[pr]+1}]")
            for pr in prs:
                e(f"v_exp_f32 v{Tq[pr]}, v{Tq[pr]}\nv_exp_f32 v{Tq[pr]+1}, v{Tq[pr]+1}")
            for pr in prs:
                e(f"v_pk_add_f32 v[{Tq[pr]}:{Tq[pr]+1}], v[{Tq[pr]}:{Tq[pr]+1}], v[{vOne}:{vOne+1}]")
            for pr in prs:
                e(f"v_rcp_f32 v{Tq[pr]}, v{Tq[pr]}\nv_rcp_f32 v{Tq[pr]+1}, v{Tq[pr]+1}")
            for pr in prs:
                e(f"v_pk_mul_f32 v[{Tq[pr]}:{Tq[pr]+1}], v[{Tq[pr]}:{Tq[pr]+1}], v[{Z[pr]}:{Z[pr]+1}]")
            for pr in prs:
                e(f"v_cvt_pk_bf16_f32 v{base+8*half+(pr%4)}, v{Tq[pr]}, v{Tq[pr]+1}")
            o = base + 8 * half
            htok = g.vmem(f"buffer_store_dwordx4 v[{o}:{o+3}], v{vHs}, s[{SWS}:{SWS+3}], s{sHB} offen offset:{t*1024+half*512} sc1")
            for _ in range(P["cw_early"]):
                wl.pop(0)()
    stamp(13, "gelu_done")
    if wl is None:
        wl = w2_loads(vPoC, wpt)
    for _ in range(6):
        wl.pop(0)()
    publish(B_P | B_H, htok)
    stamp(14, "h_pub")
    e("s_barrier")
    stamp(15, "deadbar")
    while wl:
        wl.pop(0)()

    g.label("L_join")
    if P.get("prio") in (1, 2):
        e("s_setprio 0")
    g.vm_done = 0
    g.lg_done = g.lg
    base_vm = g.vm
    ACC2 = 48
    HB = [f"v[{r}:{r+3}]" for r in (24, 28, 32, 36, 40, 44)] + ["a[120:123]", "a[124:127]"]
    vB2o, vRd, vOo = 12, 13, 14
    vRW = 16
    hb_next = [0]
    htoks = {}

    def h_poll():
        return f"buffer_load_dwordx2 v[{vF}:{vF+1}], v{vPh}, s[{SWS}:{SWS+3}], 0 offen sc1"

    def h_load(sg, i):
        r = HB[hb_next[0] % len(HB)]
        hb_next[0] += 1
        e(f"s_add_u32 s{sT}, s{sPH+sg}, s{sMI+i}")
        htoks[(sg, i)] = (r, g.vmem(f"buffer_load_dwordx4 {r}, v{vL16}, s[{SWS}:{SWS+3}], s{sT} offen sc1"))

    started = set()

    def mm(sg, i):
        r, tok = htoks[(sg, i)]
        g.wait(vm=tok)
        for jj in range(5):
            c = ACC2 + 20 * i + 4 * jj
            w = wreg[(sg, jj)]
            cin = f"v[{c}:{c+3}]" if (i, jj) in started else "0"
            started.add((i, jj))
            e(f"v_mfma_f32_16x16x32_bf16 v[{c}:{c+3}], a[{w}:{w+3}], {r}, {cin}")

    stamp(16, "join")
    tk = g.vmem(h_poll())
    for i in range(4):
        e(f"s_add_u32 s{sT}, s{sW}, {i+1}\ns_and_b32 s{sT}, s{sT}, 3\ns_mul_i32 s{sT2}, s{sT}, {5*7*1024}\ns_sub_u32 s{sT}, s{sW}, s{sT}\ns_sub_u32 s{sT}, s{sT}, 1")
        for d in range(2):
            e(f"s_sub_u32 s{sT3}, s{sT}, {4*d}\ns_and_b32 s{sT3}, s{sT3}, 7\ns_lshl_b32 s{sT3}, s{sT3}, 10\ns_add_u32 s{sT3}, s{sT3}, s{sT2}\nv_add_u32 v{vRW+2*i+d}, s{sT3}, v{vL16}")
    e(f"s_mul_i32 s{sT}, s{sP4}, {5*7*1024}\nv_add_u32 v{vRd}, s{sT}, v{vL16}")
    e(f"v_lshrrev_b32 v{vB2o}, 4, v{vL}\nv_lshlrev_b32 v{vB2o}, 3, v{vB2o}\ns_mul_i32 s{sK8}, s{sNT}, 160")
    e(f"v_and_b32 v{vOo}, 15, v{vL}\nv_mul_u32_u24 v{vOo}, 1280, v{vOo}\nv_add_u32 v{vOo}, v{vOo}, v{vB2o}")
    e(f"s_lshl_b32 s{sT}, s{sMT}, 6\ns_lshl_b32 s{sT3}, s{sP4}, 4\ns_add_u32 s{sT}, s{sT}, s{sT3}\ns_mul_i32 s{sT}, s{sT}, 1280\ns_add_u32 s{sHB}, s{sT}, s{sK8}")
    spin(lambda: flag_eval([vF, vF + 1], B_H), lambda: e(h_poll()), tk)
    stamp(17, "h_flag_ok")
    LAST = P["last"]
    order = [(sg, i) for sg in range(6 - LAST) for i in range(4)] + [(sg, i) for i in range(4) for sg in range(6 - LAST, 6)]
    HA = min(P["ha"], len(HB) - 1)
    for o in order[:HA]:
        h_load(*o)
    for k, o in enumerate(order):
        mm(*o)
        if k + HA < len(order):
            h_load(*order[k + HA])
        if k in (0, 7, 15):
            stamp(18 + (k + 1) // 8, f"g2_{k}")
        kk = k - 4 * (6 - LAST)
        if kk >= LAST:
            i, p = divmod(kk, LAST)
            for jj in [jj for jj in range(5) if jj * LAST // 5 == p]:
                c = ACC2 + 20 * (i - 1) + 4 * jj
                g.ds(f"ds_write_b128 v{vRW+2*(i-1)+(1 if jj >= 3 else 0)}, v[{c}:{c+3}] offset:{jj*7168}")
    stamp(21, "gemm2_done")
    C3 = ACC2 + 60
    e(f"s_cmp_lt_u32 s{sW}, 4\ns_cbranch_scc1 L_tail0")
    sv = (g.vm, g.vm_done, g.lg, g.lg_done)
    for cls in (1, 0):
        if cls == 0:
            g.label("L_tail0")
            g.vm, g.vm_done, g.lg, g.lg_done = sv
        own = (0, 1, 2) if cls == 0 else (3, 4)
        oth = (3, 4) if cls == 0 else (0, 1, 2)
        BT = 24
        for k, jj in enumerate(own):
            b2tok = g.vmem(f"buffer_load_dwordx2 v[{BT+2*k}:{BT+2*k+1}], v{vB2o}, s[{SB2}:{SB2+3}], s{sK8} offen offset:{jj*32}")
        g.nop(6)
        for jj in oth:
            c = C3 + 4 * jj
            g.ds(f"ds_write_b128 v{vRW+6+(1 if jj >= 3 else 0)}, v[{c}:{c+3}] offset:{jj*7168}")
        g.wait(lg=g.lg)
        e("s_barrier")
        stamp(22, "redbar")
        R = ACC2
        todo = [(jj, s7) for jj in own for s7 in range(7)]
        rt = {}
        nb = 14
        for k, (jj, s7) in enumerate(todo[:nb]):
            rt[k] = g.ds(f"ds_read_b128 v[{R+4*k}:{R+4*k+3}], v{vRd} offset:{jj*7168 + s7*1024}")
        g.wait(vm=b2tok)
        for k, jj in enumerate(own):
            c = C3 + 4 * jj
            T4 = 32
            e(f"v_lshlrev_b32 v{T4}, 16, v{BT+2*k}\nv_and_b32 v{T4+1}, 0xffff0000, v{BT+2*k}\nv_lshlrev_b32 v{T4+2}, 16, v{BT+2*k+1}\nv_and_b32 v{T4+3}, 0xffff0000, v{BT+2*k+1}")
            e(f"v_pk_add_f32 v[{c}:{c+1}], v[{c}:{c+1}], v[{T4}:{T4+1}]\nv_pk_add_f32 v[{c+2}:{c+3}], v[{c+2}:{c+3}], v[{T4+2}:{T4+3}]")
        for k, (jj, s7) in enumerate(todo):
            c = C3 + 4 * jj
            b = R + 4 * (k % nb)
            g.wait(lg=rt[k])
            e(f"v_pk_add_f32 v[{c}:{c+1}], v[{c}:{c+1}], v[{b}:{b+1}]\nv_pk_add_f32 v[{c+2}:{c+3}], v[{c+2}:{c+3}], v[{b+2}:{b+3}]")
            if k + nb < len(todo):
                j2, s2 = todo[k + nb]
                rt[k + nb] = g.ds(f"ds_read_b128 v[{b}:{b+3}], v{vRd} offset:{j2*7168 + s2*1024}")
            if s7 == 6:
                e(f"v_cvt_pk_bf16_f32 v{c}, v{c}, v{c+1}\nv_cvt_pk_bf16_f32 v{c+1}, v{c+2}, v{c+3}")
                g.vmem(f"buffer_store_dwordx2 v[{c}:{c+1}], v{vOo}, s[{SO}:{SO+3}], s{sHB} offen offset:{jj*32}")
        if cls == 1:
            e("s_branch L_fin")
    g.label("L_fin")
    if diag:
        stamp(23, "out_issued")
        e("s_waitcnt vmcnt(0)")
        stamp(24, "end")
        e("s_memrealtime s[100:101]\ns_waitcnt lgkmcnt(0)\nv_writelane_b32 v0, s100, 63")
        e(f"s_lshl_b32 s{sT}, s2, 2\ns_add_u32 s{sT}, s{sT}, s{sP4}\ns_lshr_b32 s{sT2}, s{sW}, 2\ns_lshl_b32 s{sT2}, s{sT2}, 10\ns_add_u32 s{sT}, s{sT}, s{sT2}\ns_lshl_b32 s{sT}, s{sT}, 8\ns_add_u32 s{sT}, s{sT}, {T0}")
        names[0] = "entry"
        open("stampnames.txt", "w").write("\n".join(names.get(i, "-") for i in range(max(names) + 1)))
        e(f"v_lshlrev_b32 v{vF}, 2, v{vL}")
        e(f"buffer_store_dword v0, v{vF}, s[{SWS}:{SWS+3}], s{sT} offen")
    g.label("L_end")
    e("s_endpgm")
    out += g.L
    out += ['.section .rodata,"a"', ".p2align 6", f".amdhsa_kernel {NAME}",
            "  .amdhsa_next_free_vgpr 256", "  .amdhsa_next_free_sgpr 102", "  .amdhsa_accum_offset 128",
            "  .amdhsa_group_segment_fixed_size 0", "  .amdhsa_kernarg_size 64", "  .amdhsa_user_sgpr_count 2",
            "  .amdhsa_user_sgpr_kernarg_segment_ptr 1", "  .amdhsa_system_sgpr_workgroup_id_x 1", ".end_amdhsa_kernel"]
    return "\n".join(out) + "\n"


if __name__ == "__main__":
    diag = "--diag" in sys.argv
    path = [a for a in sys.argv[1:] if not a.startswith("--")]
    path = path[0] if path else "standalone__mixer_channel_mlp__prompt.s"
    P = {}
    for a in sys.argv[1:]:
        if a.startswith("--p:"):
            k, v = a[4:].split("=")
            P[k] = tuple(int(x) for x in v.split(",")) if "," in v else int(v)
    open(path, "w").write(generate(diag, P))
    print("wrote", path)
```

```python
import sys
from gen import Gen, NAME

W0 = 0
H0 = 4 << 20
F0 = 12 << 20
T0 = 17 << 20
WS_BYTES = 18 << 20

LDS_W1 = 0
LDS_X = 73728
LDS_STAGE = 155648
LDS_BYTES = 163840

SPIN_MAX = 60000
B_P, B_H = 1, 2

DEF = dict(rot=2, xnt=1, last=2, wp_at=7, wc_at=8, lw=5, ha=8, cw_early=0, rp_at=1, ss_at=5, cp_at=9, pf_at=(99, 99), sideL=0, l_rp=1, l_st=2, l_pub=4)


def generate(diag=False, P=None):
    P = dict(DEF, **(P or {}))
    g = Gen(diag)
    e = g.e
    SX, SW1, SB1, SW2, SB2, SO, SD, SWS = 4, 8, 12, 16, 20, 24, 28, 32
    sW, sP4 = 36, 37
    sMB, sFT, sQ, sMT, sNT, sJ, sRC = 38, 39, 40, 41, 42, 43, 44
    sN = 45
    sT, sT2, sT3 = 46, 47, 48
    sCNT = 49
    sEX = 50
    sMI = 52
    sLX, sXB, sHB, sIDX = 56, 57, 58, 59
    sC1, sCB, sS2, sWA, sWB, sWC, sWD = 60, 61, 62, 63, 64, 65, 66
    sLW, sW1o, sRX, sONE, sK8 = 67, 68, 69, 70, 71
    sPW = 76
    sPH = 82
    sU1, sU2 = 88, 89
    vL, vL16, vR, vI, vZ = 1, 2, 3, 4, 5
    vFl, vPh = 6, 7
    vF = 8
    vTmp = 12
    vT = 32
    vXr = 36
    vHs, vGs = 40, 41
    vB1 = 42
    vC2, vC1, vOne, vR2 = 46, 48, 50, 52
    XFR = 56
    ACC = 80
    XFR = 56
    GS = 72
    BU = 76
    FBA = 0
    ACSA = 48
    XFA = 96
    AONE = 112
    vXd = 32
    vW1 = 36
    vPo, vXo, vW2o, vP, vPf = 39, 40, 41, 42, 43
    XR = 44
    XF = 56
    A0, A1, A2, A3, S0 = 76, 77, 78, 79, 80
    vMS = 84
    G4 = 86
    PF = 92

    hdr = open("standalone__mixer_channel_mlp__prompt.s.ref").read().split("\n")
    head = []
    for ln in hdr:
        if ln.startswith("; @launch"):
            head.append(f"; @launch grid=(256,1,1) block=(512,1,1) lds={LDS_BYTES}")
            break
        head.append(ln)
    out = head + ['.amdgcn_target "amdgcn-amd-amdhsa--gfx950"', ".text", f".globl {NAME}", ".p2align 8",
                  f".type {NAME},@function", f"{NAME}:"]
    NT = " nt" if P["xnt"] else ""
    XP = " nt" if P.get("xp") else ""
    WP = " nt" if P.get("wp") else ""

    e("s_cmp_ge_u32 s2, 256\ns_cbranch_scc1 L_end")
    if diag:
        e("s_memtime s[98:99]\ns_memrealtime s[100:101]")
    e("s_load_dwordx16 s[76:91], s[0:1], 0")
    e(f"v_and_b32 v{vL}, 63, v0\nv_lshrrev_b32 v{vTmp}, 6, v0\nv_lshlrev_b32 v{vL16}, 4, v{vL}")
    e(f"v_readfirstlane_b32 s{sW}, v{vTmp}")
    e(f"s_and_b32 s{sT}, s2, 7\ns_lshr_b32 s{sIDX}, s2, 3")
    e(f"s_lshr_b32 s{sT2}, s{sT}, 1\ns_and_b32 s{sT3}, s{sT}, 1")
    e(f"s_lshr_b32 s{sRC}, s{sIDX}, 3\ns_lshl_b32 s{sMB}, s{sT2}, 2\ns_add_u32 s{sMB}, s{sMB}, s{sRC}")
    e(f"s_and_b32 s{sT}, s{sIDX}, 7\ns_lshl_b32 s{sFT}, s{sT3}, 3\ns_add_u32 s{sFT}, s{sFT}, s{sT}")
    e(f"s_mul_i32 s{sRC}, s{sRC}, 3\ns_add_u32 s{sRC}, s{sRC}, s{sT}\ns_cmp_ge_u32 s{sRC}, 10\ns_cselect_b32 s{sT}, 10, 0\ns_sub_u32 s{sRC}, s{sRC}, s{sT}")
    if P.get("rot") == 1:
        e(f"s_mov_b32 s{sRC}, 0")
    if P.get("rot") == 3:
        e(f"s_mul_i32 s{sT}, s{sRC}, 86\ns_lshr_b32 s{sT}, s{sT}, 8\ns_mul_i32 s{sT}, s{sT}, 3\ns_sub_u32 s{sRC}, s{sRC}, s{sT}\ns_mul_i32 s{sRC}, s{sRC}, 3")
    if P.get("rot") == 4:
        e(f"s_and_b32 s{sRC}, s{sRC}, 3\ns_mul_i32 s{sRC}, s{sRC}, 5\ns_lshr_b32 s{sRC}, s{sRC}, 1")
    if P.get("rot") == 5:
        e(f"s_and_b32 s{sRC}, s{sRC}, 1")
    if P.get("rot") == 2:
        e(f"s_and_b32 s{sRC}, s{sRC}, 1\ns_mul_i32 s{sRC}, s{sRC}, 5")
    e(f"s_lshl_b32 s{sQ}, s{sMB}, 4\ns_add_u32 s{sQ}, s{sQ}, s{sFT}")
    e(f"s_lshr_b32 s{sJ}, s{sIDX}, 2\ns_lshl_b32 s{sMT}, s{sT2}, 3\ns_add_u32 s{sMT}, s{sMT}, s{sJ}")
    e(f"s_and_b32 s{sNT}, s{sIDX}, 3\ns_lshl_b32 s{sT3}, s{sT3}, 2\ns_add_u32 s{sNT}, s{sNT}, s{sT3}")
    e(f"s_and_b32 s{sP4}, s{sW}, 3\nv_lshrrev_b32 v{vR}, 5, v{vL}\nv_and_b32 v{vI}, 31, v{vL}\nv_mov_b32 v{vZ}, 0")
    e(f"s_mul_i32 s{sLX}, s{sP4}, 20480\ns_add_u32 s{sLX}, s{sLX}, {LDS_X}\ns_mul_i32 s{sC1}, s{sFT}, 192")

    names = {}

    def stamp(i, name):
        from gen import LITE
        if diag and not LITE[0]:
            names[i] = name
            e(f"s_memrealtime s[94:95]\ns_waitcnt lgkmcnt(0)\nv_writelane_b32 v0, s94, {i}")
            g.lg_done = g.lg

    def srd(r, k, nbytes):
        e(f"s_mov_b32 s{r}, s{76+2*k}\ns_mov_b32 s{r+1}, s{77+2*k}\ns_mov_b32 s{r+2}, {nbytes}\ns_mov_b32 s{r+3}, 0x00020000")

    def all_srds(order):
        tab = {0: (SX, 2621440), 1: (SW1, 1966080), 2: (SB1, 3072), 3: (SW2, 1966080), 4: (SB2, 1280), 5: (SO, 2621440), 6: (SD, 256), 7: (SWS, WS_BYTES)}
        for k in order:
            srd(tab[k][0], k, tab[k][1])

    def spin(check_emit, load_emit, tok):
        g.wait(vm=tok)
        if P.get("noside"):
            check_emit()
            return
        ok = g.newlab("ok")
        retry = g.newlab("retry")
        check_emit()
        e(f"s_cbranch_scc1 {ok}")
        e(f"s_mov_b32 s{sCNT}, {SPIN_MAX}")
        g.label(retry)
        e(f"s_sub_u32 s{sCNT}, s{sCNT}, 1\ns_cmp_eq_u32 s{sCNT}, 0\ns_cbranch_scc1 {ok}")
        load_emit()
        e("s_waitcnt vmcnt(0)")
        check_emit()
        e(f"s_cbranch_scc0 {retry}")
        g.label(ok)

    def publish(bits, tok):
        e(f"s_or_b32 s{sT}, s{sN}, {bits}\nv_mov_b32 v{vTmp+19}, s{sT}")
        g.wait(vm=tok)
        e(f"s_mov_b64 exec, 1")
        g.vmem(f"buffer_store_dword v{vTmp+19}, v{vFl}, s[{SWS}:{SWS+3}], 0 offen sc1")
        e(f"s_mov_b64 exec, -1")

    def flag_eval(regs, bit):
        m = 0xfffffffc | bit
        e(f"s_or_b32 s{sT}, s{sN}, {bit}")
        for r in regs:
            e(f"v_xor_b32 v{r}, s{sT}, v{r}")
        for r in regs[1:]:
            e(f"v_or_b32 v{regs[0]}, v{regs[0]}, v{r}")
        e(f"v_and_b32 v{regs[0]}, {m:#x}, v{regs[0]}\nv_cmp_eq_u32 vcc, 0, v{regs[0]}\ns_nop 1\ns_cmp_eq_u64 vcc, -1")

    def nonce_load():
        return f"buffer_load_dword v{vF}, v{vZ}, s[{SD}:{SD+3}], 0 offen sc1"

    def nonce_spin(tok):
        spin(lambda: e(f"v_readfirstlane_b32 s{sN}, v{vF}\ns_nop 3\ns_cmp_lg_u32 s{sN}, 0"), lambda: e(nonce_load()), tok)

    RHO = {0: f"s_mul_i32 s{sCNT}, s{sJ}, 3\ns_lshr_b32 s{sCNT}, s{sCNT}, 2", 1: f"s_mov_b32 s{sCNT}, 0", 2: f"s_and_b32 s{sCNT}, s{sJ}, 1\ns_mul_i32 s{sCNT}, s{sCNT}, 3",
           3: f"s_mul_i32 s{sCNT}, s{sJ}, 3\ns_lshr_b32 s{sCNT}, s{sCNT}, 2\ns_and_b32 s{sT}, s{sIDX}, 1\ns_mul_i32 s{sT}, s{sT}, 3\ns_add_u32 s{sCNT}, s{sCNT}, s{sT}\ns_cmp_ge_u32 s{sCNT}, 6\ns_cselect_b32 s{sT}, 6, 0\ns_sub_u32 s{sCNT}, s{sCNT}, s{sT}",
           4: f"s_xor_b32 s{sCNT}, s{sJ}, s{sIDX}\ns_and_b32 s{sCNT}, s{sCNT}, 1\ns_mul_i32 s{sCNT}, s{sCNT}, 3",
           5: f"s_mul_i32 s{sCNT}, s{sJ}, 3\ns_lshr_b32 s{sCNT}, s{sCNT}, 2\ns_and_b32 s{sT}, s{sIDX}, 1\ns_mul_i32 s{sT}, s{sT}, 2\ns_add_u32 s{sCNT}, s{sCNT}, s{sT}\ns_cmp_ge_u32 s{sCNT}, 6\ns_cselect_b32 s{sT}, 6, 0\ns_sub_u32 s{sCNT}, s{sCNT}, s{sT}"}[P.get("rho", 0)]

    def common_setup(vpo):
        e(f"s_lshl_b32 s{sT}, s{sQ}, 7\ns_lshl_b32 s{sT2}, s{sW}, 2\ns_add_u32 s{sT}, s{sT}, s{sT2}\ns_add_u32 s{sT}, s{sT}, {F0+64}\nv_mov_b32 v{vFl}, s{sT}")
        e(f"{RHO}\ns_mul_i32 s{sU1}, s{sW}, 6\ns_mul_i32 s{sU2}, s{sNT}, 48\ns_add_u32 s{sU2}, s{sU2}, s{sU1}")
        for sg in range(6):
            e(f"s_add_u32 s{sT}, s{sCNT}, s{sU1}\ns_lshl_b32 s{sPH+sg}, s{sT}, 10\ns_add_u32 s{sT}, s{sCNT}, s{sU2}\ns_mul_i32 s{sPW+sg}, s{sT}, 5120\n"
              f"s_add_u32 s{sCNT}, s{sCNT}, 1\ns_cmp_eq_u32 s{sCNT}, 6\ns_cselect_b32 s{sCNT}, 0, s{sCNT}")
        for i in range(4):
            e(f"s_add_u32 s{sT}, s{sW}, {i+1}\ns_and_b32 s{sT}, s{sT}, 3\ns_lshl_b32 s{sT2}, s{sMT}, 2\ns_add_u32 s{sT}, s{sT}, s{sT2}\n"
              f"s_mul_i32 s{sT}, s{sT}, 49152\ns_add_u32 s{sMI+i}, s{sT}, {H0}")
        e(f"v_cmp_le_u32 vcc, 6, v{vL}\ns_mul_i32 s{sT}, s{sNT}, 5\ns_nop 0\nv_cndmask_b32 v{vTmp+7}, 0, 1, vcc")
        e(f"v_lshl_add_u32 v{vTmp+6}, v{vTmp+7}, 2, s{sT}\nv_lshrrev_b32 v{vTmp+6}, 3, v{vTmp+6}\nv_mul_u32_u24 v{vTmp+6}, 48, v{vTmp+6}")
        e(f"v_mul_u32_u24 v{vTmp+7}, 6, v{vTmp+7}\nv_sub_u32 v{vTmp+7}, v{vL}, v{vTmp+7}\nv_add3_u32 v{vTmp+6}, v{vTmp+6}, v{vTmp+7}, s{sU1}")
        e(f"v_cmp_gt_u32 vcc, 12, v{vL}\nv_readfirstlane_b32 s{sT}, v{vTmp+6}\ns_nop 1\nv_mov_b32 v{vTmp+7}, s{sT}\nv_cndmask_b32 v{vpo}, v{vTmp+7}, v{vTmp+6}, vcc")
        e(f"v_lshlrev_b32 v{vpo}, 7, v{vpo}\nv_add_u32 v{vpo}, {F0+64+(16 if P['sideL'] else 0)}, v{vpo}")
        e(f"s_lshl_b32 s{sT}, s{sMB}, 4\ns_lshl_b32 s{sT2}, s{sW}, 1\ns_add_u32 s{sT}, s{sT}, s{sT2}\nv_and_b32 v{vTmp+7}, 1, v{vL}\nv_add_u32 v{vTmp+7}, s{sT}, v{vTmp+7}")
        e(f"s_and_b32 s{sT2}, s{sMT}, 1\ns_lshl_b32 s{sT2}, s{sT2}, 3\ns_add_u32 s{sT2}, s{sT2}, {F0+64}\nv_lshlrev_b32 v{vPh}, 7, v{vTmp+7}\nv_add_u32 v{vPh}, s{sT2}, v{vPh}")

    F4 = [vF, vF + 1, vF + 2, vF + 3]
    worder = [(sg, jj) for sg in range(6) for jj in range(5)]
    wreg = {k: 4 * i for i, k in enumerate(worder)}

    def w2_loads(vpo, tokp=None):
        wp = f"buffer_load_dwordx2 v[{vF}:{vF+1}], v{vpo}, s[{SWS}:{SWS+3}], 0 offen sc1"
        if tokp is None:
            tokp = g.vmem(wp)
        spin(lambda: flag_eval(F4[:2], B_P), lambda: e(wp), tokp)
        ops = []
        for (sg, jj) in worder:
            def f(sg=sg, jj=jj):
                r = wreg[(sg, jj)]
                if jj < 4:
                    so, imm = f"s{sPW+sg}", jj * 1024
                else:
                    e(f"s_add_u32 s{sT}, s{sPW+sg}, 4096")
                    so, imm = f"s{sT}", 0
                g.vmem(f"buffer_load_dwordx4 a[{r}:{r+3}], v{vL16}, s[{SWS}:{SWS+3}], {so} offen offset:{imm} sc1")
            ops.append(f)
        return ops

    cXo, cW2o, cP = 54, 55, 30
    sWS4 = (sWA, sWB, 72, 73)
    sSA, sSB = 74, 75
    st = {}

    def side_addr1():
        e(f"v_mul_u32_u24 v{cXo}, 1280, v{vR}\nv_lshl_add_u32 v{cXo}, v{vI}, 3, v{cXo}")
        e(f"s_lshl_b32 s{sT}, s{sQ}, 3\ns_lshl_b32 s{sT2}, s{sP4}, 1\ns_add_u32 s{sT}, s{sT}, s{sT2}\ns_mul_i32 s{sSA}, s{sT}, 1280")
        e(f"s_mul_i32 s{sCB}, s{sQ}, 1366\ns_lshr_b32 s{sCB}, s{sCB}, 16\ns_mul_i32 s{sT3}, s{sCB}, 48\ns_sub_u32 s{sS2}, s{sQ}, s{sT3}")
        e(f"v_lshrrev_b32 v{cW2o}, 3, v{vL}\nv_mul_u32_u24 v{cW2o}, 1280, v{cW2o}\nv_and_b32 v{vTmp+6}, 7, v{vL}\nv_lshl_add_u32 v{cW2o}, v{vTmp+6}, 4, v{cW2o}")
        e(f"s_mul_i32 s{sSB}, s{sS2}, {32*1280}\ns_lshl_b32 s{sT2}, s{sCB}, 8\ns_add_u32 s{sSB}, s{sSB}, s{sT2}\ns_lshl_b32 s{sT2}, s{sP4}, 7\ns_add_u32 s{sSB}, s{sSB}, s{sT2}")
        e(f"s_cmp_ge_u32 s{sQ}, 240\ns_cselect_b32 s{sK8}, 1, 0\ns_lshr_b32 s{sT}, s{sP4}, 1\ns_or_b32 s{sK8}, s{sK8}, s{sT}")

    def side_loads():
        lab = g.newlab("nononce")
        e(f"s_or_b32 s{sT}, s2, s{sP4}\ns_cmp_lg_u32 s{sT}, 0\ns_cbranch_scc1 {lab}")
        e(f"s_memrealtime s[{sEX}:{sEX+1}]\ns_waitcnt lgkmcnt(0)")
        e(f"s_lshl_b32 s{sT}, s{sEX}, 2\ns_or_b32 s{sT}, s{sT}, 0x80000000\nv_mov_b32 v{vTmp+4}, s{sT}")
        e(f"s_mov_b64 exec, 1")
        e(f"buffer_store_dword v{vTmp+4}, v{vZ}, s[{SD}:{SD+3}], 0 offen sc1")
        e(f"s_mov_b64 exec, -1")
        g.label(lab)
        lab_np = g.newlab("nopiece")
        e(f"s_cmp_lg_u32 s{sK8}, 0\ns_cbranch_scc1 {lab_np}")
        e(f"s_lshl_b32 s{sT2}, s{sP4}, 12\ns_add_u32 m0, s{sT2}, {LDS_STAGE}")
        for d in range(4):
            e(f"s_add_u32 m0, m0, 1024\ns_add_u32 s{sSB}, s{sSB}, {8*1280}" if d else "s_nop 0")
            e(f"buffer_load_dwordx4 v{cW2o}, s[{SW2}:{SW2+3}], s{sSB} offen{NT} lds")
        g.label(lab_np)
        for j in range(5):
            st["x"] = g.vmem(f"buffer_load_dwordx2 a[{116+2*j}:{117+2*j}], v{cXo}, s[{SX}:{SX+3}], s{sSA} offen offset:{256*j}")

    def side_addr2():
        e(f"v_lshlrev_b32 v{cP}, 11, v{vR}\nv_bfe_u32 v{vTmp+6}, v{vL}, 4, 1\nv_lshl_add_u32 v{cP}, v{vTmp+6}, 9, v{cP}")
        e(f"v_bfe_u32 v{vTmp+6}, v{vL}, 2, 2\nv_lshl_add_u32 v{cP}, v{vTmp+6}, 7, v{cP}\nv_and_b32 v{vTmp+6}, 3, v{vL}\nv_lshl_add_u32 v{cP}, v{vTmp+6}, 3, v{cP}")
        e(f"s_and_b32 s{sT}, s{sP4}, 1\ns_lshl_b32 s{sT}, s{sT}, 12\ns_add_u32 s{sT}, s{sT}, {LDS_STAGE}\nv_add_u32 v{cP}, s{sT}, v{cP}\ns_mov_b32 s{sONE}, 0x3f803f80")
        wsoff = []
        for ee in range(4):
            wsoff.append(f"s_lshl_b32 s{sT}, s{sCB}, 3\ns_lshl_b32 s{sT2}, s{sP4}, 2\ns_add_u32 s{sT}, s{sT}, s{sT2}\ns_add_u32 s{sT}, s{sT}, {ee}\n"
              f"s_mul_i32 s{sT2}, s{sT}, 13108\ns_lshr_b32 s{sT2}, s{sT2}, 16\ns_mul_i32 s{sT3}, s{sT2}, 5\ns_sub_u32 s{sT}, s{sT}, s{sT3}\n"
              f"s_mul_i32 s{sT2}, s{sT2}, 48\ns_add_u32 s{sT2}, s{sT2}, s{sS2}\ns_mul_i32 s{sT2}, s{sT2}, 5\ns_add_u32 s{sT}, s{sT}, s{sT2}\n"
              f"s_lshl_b32 s{sT}, s{sT}, 10\ns_cmp_lg_u32 s{sK8}, 0\ns_cselect_b32 s{sWS4[ee]}, {WS_BYTES}, s{sT}")
        for x_ in wsoff:
            e(x_)


    def reduce32(a, t, fill):
        def pad():
            e(fill.pop(0) if fill else "s_nop 1")
        for r in (8, 4, 2, 1):
            pad()
            e(f"v_add_f32_dpp v{a}, v{a}, v{a} row_ror:{r} row_mask:0xf bank_mask:0xf")
        e(f"v_mov_b32 v{t}, v{a}")
        pad()
        e(f"v_permlane16_swap_b32 v{a}, v{t}")
        pad()
        e(f"v_add_f32 v{a}, v{a}, v{t}")

    RW = 116

    def do_repack():
        if P.get("noside"):
            st["ps"] = g.vm
            st["nt"] = g.vmem(nonce_load())
            return
        g.wait(vm=st["x"])
        for rnd in range(2):
            for ee in range(2):
                for h in range(2):
                    t = g.ds(f"ds_read_b64_tr_b16 v[{vTmp+4*ee+2*h}:{vTmp+4*ee+2*h+1}], v{cP} offset:{(2*rnd+ee)*32 + h*1024}")
            g.wait(lg=t)
            for ee in range(2):
                st["ps"] = g.vmem(f"buffer_store_dwordx4 v[{vTmp+4*ee}:{vTmp+4*ee+3}], v{vL16}, s[{SWS}:{SWS+3}], s{sWS4[2*rnd+ee]} offen sc1")
            if rnd == 0:
                g.nop(2)
        if not P["sideL"]:
            st["nt"] = g.vmem(nonce_load())

    def do_stats():
        if P.get("noside"):
            return
        X = vTmp
        a0, a1, a2, t0, t1, s0, s1 = vTmp + 10, vTmp + 11, vTmp + 12, vTmp + 13, vTmp + 14, vTmp + 15, vTmp + 16
        g.wait(vm=st["x"])
        for j in range(10):
            e(f"v_accvgpr_read_b32 v{X+j}, a{RW+j}")
        for j in range(10):
            e(f"v_lshlrev_b32 v{t0}, 16, v{X+j}\nv_and_b32 v{t1}, 0xffff0000, v{X+j}")
            e(f"v_add_f32 v{a0}, v{a0}, v{t0}\nv_add_f32 v{a1}, v{a1}, v{t1}" if j else f"v_mov_b32 v{a0}, v{t0}\nv_mov_b32 v{a1}, v{t1}")
        e(f"v_add_f32 v{a0}, v{a0}, v{a1}")
        reduce32(a0, a1, [])
        e(f"v_mul_f32 v{a0}, 0x3acccccd, v{a0}")
        e(f"v_cvt_pk_bf16_f32 v{a2}, v{a0}, v{a0}\nv_lshlrev_b32 v{a2}, 16, v{a2}")
        e(f"v_sub_f32 v{a0}, v{a0}, v{a2}")
        for j in range(10):
            e(f"v_lshlrev_b32 v{t0}, 16, v{X+j}\nv_and_b32 v{t1}, 0xffff0000, v{X+j}\nv_sub_f32 v{t0}, v{t0}, v{a2}\nv_sub_f32 v{t1}, v{t1}, v{a2}")
            e(f"v_fmac_f32 v{s0}, v{t0}, v{t0}\nv_fmac_f32 v{s1}, v{t1}, v{t1}" if j else f"v_mul_f32 v{s0}, v{t0}, v{t0}\nv_mul_f32 v{s1}, v{t1}, v{t1}")
        e(f"v_add_f32 v{s0}, v{s0}, v{s1}")
        reduce32(s0, s1, [])
        e(f"v_mul_f32 v{s0}, 0x3acccccd, v{s0}")
        e(f"v_fma_f32 v{s0}, -v{a0}, v{a0}, v{s0}\nv_max_f32 v{s0}, 0, v{s0}")
        e(f"v_cvt_pk_bf16_f32 v{s0}, v{s0}, v{s0}\nv_lshlrev_b32 v{s0}, 16, v{s0}")
        e(f"v_add_f32 v{s0}, 0x3727c5ac, v{s0}")
        e(f"v_cvt_pk_bf16_f32 v{s0}, v{s0}, v{s0}\nv_lshlrev_b32 v{s0}, 16, v{s0}")
        e(f"v_sqrt_f32 v{s0}, v{s0}\ns_nop 0")
        e(f"v_cvt_pk_bf16_f32 v{GS}, v{a2}, v{s0}")

    def send_stats(sp=True):
        if sp:
            nonce_spin(st["nt"])
        g4 = vTmp + 10
        e(f"v_readlane_b32 s{sT}, v{GS}, 32\nv_mov_b32 v{g4}, s{sN}\nv_mov_b32 v{g4+1}, v{GS}\nv_mov_b32 v{g4+3}, s{sN}\nv_mov_b32 v{g4+2}, s{sT}")
        e(f"s_lshl_b32 s{sT}, s{sQ}, 7\ns_lshl_b32 s{sT2}, s{sP4}, 4\ns_add_u32 s{sT}, s{sT}, s{sT2}\ns_add_u32 s{sT}, s{sT}, {F0}\nv_mov_b32 v{g4+4}, s{sT}")
        e(f"s_mov_b64 exec, 1")
        g.vmem(f"buffer_store_dwordx4 v[{g4}:{g4+3}], v{g4+4}, s[{SWS}:{SWS+3}], 0 offen sc1")
        e(f"s_mov_b64 exec, -1")

    e(f"s_cmp_lt_u32 s{sW}, 4\ns_cbranch_scc1 L_cpath")
    e(f"v_lshrrev_b32 v{vTmp+6}, 4, v{vL}\nv_bfe_u32 v{vTmp+7}, v{vL}, 3, 1\nv_and_b32 v{vTmp+8}, 7, v{vL}")
    for d in range(2):
        e(f"v_add_u32 v{vTmp+9}, {4*d}, v{vTmp+6}")
        e(f"v_xor_b32 v{vTmp+10}, v{vTmp+8}, v{vTmp+9}\nv_lshl_add_u32 v{vTmp+9}, v{vTmp+7}, 3, v{vTmp+9}")
        e(f"v_mul_u32_u24 v{vTmp+9}, 1280, v{vTmp+9}\nv_lshl_add_u32 v{vXd+d}, v{vTmp+10}, 4, v{vTmp+9}\nv_add_u32 v{vXd+d+2}, {16*1280}, v{vXd+d}")
    e(f"s_lshl_b32 s{sXB}, s{sMB}, 2\ns_add_u32 s{sXB}, s{sXB}, s{sP4}\ns_mul_i32 s{sXB}, s{sXB}, {32*1280}\ns_mul_i32 s{sLW}, s{sP4}, 3072")
    for i in range(3):
        e(f"v_add_u32 v{vTmp+6}, {64*i}, v{vL}\nv_mul_u32_u24 v{vTmp+7}, 5462, v{vTmp+6}\nv_lshrrev_b32 v{vTmp+7}, 16, v{vTmp+7}")
        e(f"v_mul_u32_u24 v{vTmp+8}, 12, v{vTmp+7}\nv_sub_u32 v{vTmp+8}, v{vTmp+6}, v{vTmp+8}")
        e(f"v_mul_u32_u24 v{vTmp+7}, 3072, v{vTmp+7}\nv_lshl_add_u32 v{vW1+i}, v{vTmp+8}, 4, v{vTmp+7}")
    e(f"s_mul_i32 s{sT}, s{sP4}, {16*3072}\ns_add_u32 s{sW1o}, s{sC1}, s{sT}")
    e("s_waitcnt lgkmcnt(0)")
    if diag:
        e("v_writelane_b32 v0, s100, 62\nv_writelane_b32 v0, s100, 0")
    if P.get("prio") in (2, 3):
        e("s_setprio 1")
    all_srds((0, 1))
    if P.get("lin"):
        for k in range(4):
            if P["lin"] & 1:
                e(f"v_add_u32 v{vXd+k}, {k*1024}, v{vL16}")
        for k in range(3):
            if P["lin"] & 2:
                e(f"v_add_u32 v{vW1+k}, {k*1024}, v{vL16}")
    stamp(29, "L_first")
    ctok = {}

    def chunk_dmas(c):
        e(f"s_lshl_b32 s{sWC}, s{sRC}, 7\ns_add_u32 s{sWC}, s{sWC}, s{sXB}")
        e(f"s_mul_i32 s{sWD}, s{sRC}, {64*3072}\ns_add_u32 s{sWD}, s{sWD}, s{sW1o}")
        for k in range(4):
            e(f"s_add_u32 m0, s{sLX}, {(c % 5)*4096 + k*1024}")
            e(f"s_add_u32 s{sRC}, s{sRC}, 1" if k == 0 else "s_nop 0")
            g.vmem(f"buffer_load_dwordx4 v{vXd+k}, s[{SX}:{SX+3}], s{sWC} offen{XP} lds")
            if k < 3:
                e(f"s_add_u32 m0, s{sLW}, {LDS_W1 + (c % 6)*12288 + k*1024}")
                e(f"s_cmp_eq_u32 s{sRC}, 10\ns_cselect_b32 s{sRC}, 0, s{sRC}" if k == 0 else "s_nop 0")
                g.vmem(f"buffer_load_dwordx4 v{vW1+k}, s[{SW1}:{SW1+3}], s{sWD} offen{WP} lds")
        ctok[c] = g.vm

    if P.get("ldelay"):
        all_srds((3, 6, 7, 2, 4, 5))
        common_setup(vPo)
    chunk_dmas(0)
    if not P.get("c1late"):
        chunk_dmas(1)
    if P["sideL"]:
        all_srds((3, 6, 7, 2, 4, 5))
        side_addr1()
        side_loads()
        side_addr2()
    wl = []
    for c in range(10):
        if c == 0:
            stamp(27, "L_issued")
        g.wait(vm=ctok[c])
        if c == 0:
            stamp(28, "L_data0")
        e("s_barrier")
        stamp(1 + c, f"open{c}")
        if c == 0 and P.get("c1late"):
            chunk_dmas(1)
        if c + 2 < 10:
            chunk_dmas(c + 2)
        if c == 0 and not P.get("ldelay") and not P["sideL"]:
            all_srds((3, 6, 7, 2, 4, 5))
        if P["sideL"]:
            if c == P["l_rp"]:
                do_repack()
            if c == P["l_st"]:
                do_stats()
            if c == max(3, P["l_st"]):
                st["ss"] = True
            if c == P["l_pub"]:
                publish(B_P, st["ps"])
        if c == 1 and not P.get("ldelay"):
            common_setup(vPo)
        if c == 2:
            e(f"s_sub_u32 s{sT}, s{sJ}, s{sW}\ns_mul_i32 s{sT}, s{sT}, {6*128}\nv_add_u32 v{vPf}, s{sT}, v{vPo}")
            e(f"s_mul_i32 s{sT}, s{sNT}, 48\ns_mul_i32 s{sT2}, s{sJ}, 6\ns_add_u32 s{sT}, s{sT}, s{sT2}\ns_mul_i32 s{sT}, s{sT}, 5120\ns_mul_i32 s{sT2}, s{sP4}, 7680\ns_add_u32 s{sRX}, s{sT}, s{sT2}")
            st["nt"] = g.vmem(nonce_load())
        if c == 3:
            nonce_spin(st["nt"])
        if st.get("ss") is True:
            st["ss"] = False
            send_stats(False)
        if c in P["pf_at"]:
            g.wait(vm=st["pf"])
            lab = g.newlab("nopf")
            flag_eval([vF + 2, vF + 3], B_P)
            e(f"s_cbranch_scc0 {lab}")
            e(f"s_cmp_eq_u32 s{sRX}, -1\ns_cbranch_scc1 {lab}")
            for k in range(8):
                if k == 4:
                    e(f"s_add_u32 s{sRX}, s{sRX}, 4096")
                if k < 7:
                    e(f"buffer_load_dwordx4 v[{64+4*k}:{67+4*k}], v{vL16}, s[{SWS}:{SWS+3}], s{sRX} offen offset:{(k%4)*1024} sc1")
                else:
                    e(f"buffer_load_dwordx4 v[{64+4*k}:{67+4*k}], v{vL16}, s[{SWS}:{SWS+3}], s{sRX} offen offset:{2*1024+512} sc1")
            e(f"s_mov_b32 s{sRX}, -1")
            g.label(lab)
        if c + 1 in P["pf_at"]:
            st["pf"] = g.vmem(f"buffer_load_dwordx2 v[{vF+2}:{vF+3}], v{vPf}, s[{SWS}:{SWS+3}], 0 offen sc1")
        if c == P["wp_at"]:
            st["wp"] = g.vmem(f"buffer_load_dwordx2 v[{vF}:{vF+1}], v{vPo}, s[{SWS}:{SWS+3}], 0 offen sc1")
        if c == P["wc_at"]:
            wl = w2_loads(vPo, st["wp"])
        if c >= P["wc_at"]:
            for _ in range(P["lw"]):
                wl.pop(0)()
    e("s_barrier")
    stamp(11, "sbar")
    while wl:
        wl.pop(0)()
    stamp(12, "gemm1_done/Lw2issued")
    e("s_barrier")
    stamp(15, "deadbar")
    e("s_branch L_join")

    g.label("L_cpath")
    if P.get("prio") == 1:
        e("s_setprio 1")
    g.vm_done = g.vm
    g.lg_done = g.lg
    if not P["sideL"]:
        side_addr1()
    e("s_waitcnt lgkmcnt(0)")
    if diag:
        e("v_writelane_b32 v0, s100, 62\nv_writelane_b32 v0, s100, 0")
    all_srds((0, 3, 6))
    if not P["sideL"]:
        side_loads()
    all_srds((1, 7, 2, 4, 5))
    e(f"v_lshlrev_b32 v{vTmp+7}, 3, v{vR}\nv_bfe_u32 v{vTmp+6}, v{vL}, 2, 2\nv_add_u32 v{vTmp+7}, v{vTmp+7}, v{vTmp+6}")
    e(f"v_mul_u32_u24 v{vTmp+7}, 192, v{vTmp+7}\nv_bfe_u32 v{vTmp+6}, v{vL}, 4, 1\nv_lshl_add_u32 v{vTmp+7}, v{vTmp+6}, 5, v{vTmp+7}")
    e(f"v_and_b32 v{vTmp+6}, 3, v{vL}\nv_lshl_add_u32 v{vTmp+7}, v{vTmp+6}, 3, v{vTmp+7}")
    e(f"v_and_b32 v{vTmp+8}, 7, v{vL}\nv_bfe_u32 v{vTmp+6}, v{vL}, 4, 1\nv_lshl_add_u32 v{vTmp+9}, v{vTmp+6}, 3, v{vTmp+8}\nv_lshlrev_b32 v{vTmp+9}, 8, v{vTmp+9}")
    e(f"v_bfe_u32 v{vTmp+6}, v{vL}, 3, 1\nv_lshl_add_u32 v{vTmp+9}, v{vTmp+6}, 7, v{vTmp+9}\nv_add_u32 v{vTmp+9}, s{sLX}, v{vTmp+9}")
    for j in range(4):
        e(f"s_add_u32 s{sT}, s{sW}, {j}\ns_and_b32 s{sT}, s{sT}, 3\ns_mul_i32 s{sT2}, s{sT}, 3072\nv_add_u32 v{vT+j}, s{sT2}, v{vTmp+7}")
        e(f"s_lshl_b32 s{sT}, s{sT}, 1\nv_add_u32 v{vTmp+6}, s{sT}, v{vR}\nv_xor_b32 v{vTmp+6}, v{vTmp+6}, v{vTmp+8}\nv_lshl_add_u32 v{vXr+j}, v{vTmp+6}, 4, v{vTmp+9}")
    e(f"v_mov_b32 v{vTmp}, 0x3f803f80")
    for k in range(4):
        e(f"v_accvgpr_write_b32 a{AONE+k}, v{vTmp}")
    vPoC = 45
    common_setup(vPoC)
    e(f"s_lshl_b32 s{sT}, s{sMB}, 4\ns_lshl_b32 s{sT2}, s{sW}, 2\ns_add_u32 s{sT}, s{sT}, s{sT2}")
    e(f"v_lshrrev_b32 v{vTmp+7}, 3, v{vI}\nv_add_u32 v{vTmp+7}, s{sT}, v{vTmp+7}\nv_lshlrev_b32 v{vGs}, 7, v{vTmp+7}\nv_bfe_u32 v{vTmp+7}, v{vI}, 1, 2\nv_lshl_add_u32 v{vGs}, v{vTmp+7}, 4, v{vGs}\nv_add_u32 v{vGs}, {F0}, v{vGs}")
    e(f"v_bfe_u32 v{vTmp+6}, v{vL}, 4, 1\nv_mul_u32_u24 v{vHs}, 49152, v{vTmp+6}\nv_lshl_add_u32 v{vHs}, v{vR}, 8, v{vHs}")
    e(f"v_and_b32 v{vTmp+6}, 15, v{vL}\nv_lshl_add_u32 v{vHs}, v{vTmp+6}, 4, v{vHs}")
    e(f"s_lshl_b32 s{sT}, s{sMB}, 3\ns_lshl_b32 s{sT2}, s{sW}, 1\ns_add_u32 s{sT}, s{sT}, s{sT2}\ns_mul_i32 s{sT}, s{sT}, 49152\n"
      f"s_mul_i32 s{sT2}, s{sFT}, 3072\ns_add_u32 s{sT}, s{sT}, s{sT2}\ns_add_u32 s{sHB}, s{sT}, {H0}")
    e(f"v_mov_b32 v{vC2}, 0xbdd2d3e8\nv_mov_b32 v{vC2+1}, 0xbdd2d3e8\nv_mov_b32 v{vC1}, 0xc0135761\nv_mov_b32 v{vC1+1}, 0xc0135761\nv_mov_b32 v{vOne}, 1.0\nv_mov_b32 v{vOne+1}, 1.0")
    e(f"v_mov_b32 v{BU+2}, 0\nv_mov_b32 v{BU+3}, 0")
    if not P["sideL"]:
        side_addr2()
    NBUF = 12
    fr, xt = {}, {}
    nfr = [0]

    def xreg(c, j):
        return f"v[{XFR+4*j}:{XFR+4*j+3}]" if c % 2 == 0 else f"a[{XFA+4*j}:{XFA+4*j+3}]"

    def tr_issue(n, t):
        c, j = divmod(n, 4)
        r = FBA + 4 * (nfr[0] % NBUF)
        nfr[0] += 1
        for h in range(2):
            tok = g.ds(f"ds_read_b64_tr_b16 a[{r+2*h}:{r+2*h+1}], v{vT+j} offset:{(c % 6)*12288 + t*64 + h*768}")
        fr[(n, t)] = (r, tok)

    def open_chunk(c):
        if c:
            g.wait(lg=xt[(c - 1, 3)])
        e("s_barrier")
        stamp(1 + c, f"open{c}")
        for j in range(4):
            xt[(c, j)] = g.ds(f"ds_read_b128 {xreg(c, j)}, v{vXr+j} offset:{(c % 5)*4096}")

    def g_load():
        return f"buffer_load_dwordx4 v[{GS}:{GS+3}], v{vGs}, s[{SWS}:{SWS+3}], 0 offen sc1"

    def g_check():
        e(f"v_xor_b32 v{vF}, s{sN}, v{GS}\nv_xor_b32 v{vF+1}, s{sN}, v{GS+3}\nv_or_b32 v{vF}, v{vF}, v{vF+1}\nv_cmp_eq_u32 vcc, 0, v{vF}\ns_nop 1\ns_cmp_eq_u64 vcc, -1")

    TS = vTmp + 14
    if P.get("early"):
        do_repack()
        stamp(25, "repacked")
        do_stats()
        stamp(26, "stats_done")
    if P.get("touch"):
        vD = vTmp + 17
        e(f"s_lshl_b32 s{sT}, s{sMT}, 6\ns_mul_i32 s{sT}, s{sT}, 1280")
        e(f"buffer_load_dword v{vD}, v{vZ}, s[{SO}:{SO+3}], s{sT} offen")
        if P["touch"] >= 2:
            e(f"buffer_load_dword v{vD}, v{vZ}, s[{SWS}:{SWS+3}], s{sHB} offen sc1")
            e(f"buffer_load_dword v{vD}, v{vZ}, s[{SWS}:{SWS+3}], s{sPW} offen sc1")
            e(f"buffer_load_dword v{vD}, v{vFl}, s[{SWS}:{SWS+3}], 0 offen sc1")
            e(f"buffer_load_dword v{vD}, v{vZ}, s[{SB1}:{SB1+3}], 0 offen")
            e(f"buffer_load_dword v{vD}, v{vZ}, s[{SB2}:{SB2+3}], 0 offen")
    stamp(28, "C_ready")
    open_chunk(0)
    for n in (0, 1):
        for t in range(3):
            tr_issue(n, t)
    for n in range(40):
        c, j = divmod(n, 4)
        if j == 2 and c + 1 < 10:
            open_chunk(c + 1)
        for t in range(3):
            r, tok = fr[(n, t)]
            g.wait(lg=max(tok, xt[(c, j)]))
            cin = f"v[{ACC+16*t}:{ACC+16*t+15}]" if n else "0"
            if j == 0 and P.get("s4", 1):
                cs = f"a[{ACSA+4*t}:{ACSA+4*t+3}]" if c else "0"
                e(f"v_mfma_f32_4x4x4_16b_bf16 a[{ACSA+4*t}:{ACSA+4*t+3}], a[{AONE}:{AONE+1}], a[{r}:{r+1}], {cs}")
            elif j == 0:
                cs = f"a[{ACSA+16*t}:{ACSA+16*t+15}]" if c else "0"
                e(f"v_mfma_f32_32x32x16_bf16 a[{ACSA+16*t}:{ACSA+16*t+15}], a[{AONE}:{AONE+3}], a[{r}:{r+3}], {cs}")
            if P.get("fake16"):
                for u in range(2):
                    d = ACC + 16*t + 4*u + 8*(n % 2)
                    e(f"v_mfma_f32_16x16x32_bf16 v[{d}:{d+3}], a[{r}:{r+3}], {xreg(c, j)}, v[{d}:{d+3}]")
            else:
                e(f"v_mfma_f32_32x32x16_bf16 v[{ACC+16*t}:{ACC+16*t+15}], a[{r}:{r+3}], {xreg(c, j)}, {cin}")
            if n + 2 < 40:
                tr_issue(n + 2, t)
            if j == 0 and P.get("s4", 1):
                e(f"v_mfma_f32_4x4x4_16b_bf16 a[{ACSA+4*t}:{ACSA+4*t+3}], a[{AONE}:{AONE+1}], a[{r+2}:{r+3}], a[{ACSA+4*t}:{ACSA+4*t+3}]")
            if P["sideL"]:
                if n == 16 and t == 0:
                    st["nt"] = g.vmem(nonce_load())
                if n == 24 and t == 0:
                    nonce_spin(st["nt"])
            elif n == P["rp_at"] and t == 2 and not P.get("early"):
                do_repack()
            if n == P["ss_at"] and t == 2 and not P["sideL"]:
                if not P.get("early"):
                    do_stats()
                send_stats()
            if n == P["cp_at"] and t == 0 and not P["sideL"]:
                publish(B_P, st["ps"])
            if n == 37 and t == 0:
                st["wpt"] = g.vmem(f"buffer_load_dwordx2 v[{vF}:{vF+1}], v{vPoC}, s[{SWS}:{SWS+3}], 0 offen sc1")
            if n == 20 and t == 0:
                e(f"v_lshlrev_b32 v{vTmp+8}, 1, v{vI}")
                for tt in range(3):
                    st["b1"] = g.vmem(f"buffer_load_ushort v{vB1+tt}, v{vTmp+8}, s[{SB1}:{SB1+3}], s{sC1} offen offset:{tt*64}")
            if n == 28 and t == 0:
                st["gs"] = g.vmem(g_load())
            if n == 36 and t == 0:
                spin(g_check, lambda: e(g_load()), st["gs"])
                e(f"v_and_b32 v{TS}, 1, v{vL}\nv_cmp_eq_u32 vcc, 1, v{TS}\ns_nop 1\nv_cndmask_b32 v{TS}, v{GS+1}, v{GS+2}, vcc")
                e(f"v_xor_b32 v{TS}, 0x8000, v{TS}")
                e(f"v_and_b32 v{vR2}, 0xffff0000, v{TS}\nv_rcp_f32 v{vR2}, v{vR2}")
                e(f"v_and_b32 v{TS+1}, 0xffff, v{TS}\nv_lshl_or_b32 v{TS+1}, v{TS+1}, 16, v{TS+1}")
                e(f"v_cmp_gt_u32 vcc, 32, v{vL}\nv_mov_b32 v{vR2+1}, v{vR2}\ns_nop 0")
                e(f"v_cndmask_b32 v{BU}, 0, v{TS+1}, vcc\nv_cndmask_b32 v{BU+1}, 0, v{TS}, vcc")
            if n == 37 and t == 2:
                g.nop(6)
                e(f"s_lshl_b32 s{sT}, s{sW}, 3\ns_add_u32 s{sT}, s{sT}, {LDS_STAGE}\nv_lshl_add_u32 v{vTmp+8}, v{vI}, 5, s{sT}\nv_lshl_add_u32 v{vTmp+8}, v{vR}, 2, v{vTmp+8}")
                for tt in range(3):
                    sw = g.ds(f"ds_write_b32 v{vTmp+8}, a{ACSA+(4 if P.get('s4', 1) else 16)*tt} offset:{tt*1024}")
            if n == 38 and t == 2:
                g.wait(lg=sw)
                e("s_barrier")
                stamp(11, "sbar")
                e(f"v_lshlrev_b32 v{vTmp+8}, 5, v{vI}\nv_lshl_add_u32 v{vTmp+8}, v{vR}, 4, v{vTmp+8}\nv_add_u32 v{vTmp+8}, {LDS_STAGE}, v{vTmp+8}")
                SR = XFR
                for tt in range(3):
                    sr = g.ds(f"ds_read_b128 v[{SR+4*tt}:{SR+4*tt+3}], v{vTmp+8} offset:{tt*1024}")
    g.wait(vm=st["b1"], lg=sr)
    AU = vTmp
    for tt in range(3):
        s0 = SR + 4 * tt
        a = AU + 4 * tt
        e(f"v_add_f32 v{s0}, v{s0}, v{s0+1}\nv_add_f32 v{s0+2}, v{s0+2}, v{s0+3}\nv_add_f32 v{s0}, v{s0}, v{s0+2}")
        e(f"v_mov_b32 v{s0+1}, v{s0}\ns_nop 1\nv_permlane32_swap_b32 v{s0}, v{s0+1}\ns_nop 1\nv_add_f32 v{s0}, v{s0}, v{s0+1}")
        if not P.get("s4", 1):
            e(f"v_mul_f32 v{s0}, 0.5, v{s0}")
        e(f"v_and_b32 v{s0+1}, 0xffff0000, v{s0}\nv_sub_f32 v{s0}, v{s0}, v{s0+1}")
        e(f"v_and_b32 v{s0+2}, 0xffff0000, v{s0}\nv_sub_f32 v{s0}, v{s0}, v{s0+2}")
        e(f"v_lshrrev_b32 v{s0+1}, 16, v{s0+1}\nv_or_b32 v{a}, v{s0+1}, v{s0+2}")
        e(f"v_lshrrev_b32 v{s0}, 16, v{s0}\nv_lshl_or_b32 v{a+1}, v{vB1+tt}, 16, v{s0}")
        e(f"v_mov_b32 v{a+2}, 0\nv_mov_b32 v{a+3}, 0\ns_nop 1")
        e(f"v_mfma_f32_32x32x16_bf16 v[{ACC+16*tt}:{ACC+16*tt+15}], v[{a}:{a+3}], v[{BU}:{BU+3}], v[{ACC+16*tt}:{ACC+16*tt+15}]")
    wpt = st["wpt"]
    stamp(12, "gemm1_done/Lw2issued")
    G = XFR
    wl = w2_loads(vPoC, wpt) if P["cw_early"] else None
    for t in range(3):
        base = ACC + 16 * t
        for half in range(2):
            prs = range(4 * half, 4 * half + 4)
            Z = {pr: base + 2 * pr for pr in prs}
            Tq = {pr: G + 2 * (pr % 8) for pr in prs}
            for pr in prs:
                e(f"v_pk_mul_f32 v[{Z[pr]}:{Z[pr]+1}], v[{Z[pr]}:{Z[pr]+1}], v[{vR2}:{vR2+1}]")
            for pr in prs:
                e(f"v_pk_mul_f32 v[{Tq[pr]}:{Tq[pr]+1}], v[{Z[pr]}:{Z[pr]+1}], v[{Z[pr]}:{Z[pr]+1}]")
            for pr in prs:
                e(f"v_pk_fma_f32 v[{Tq[pr]}:{Tq[pr]+1}], v[{Tq[pr]}:{Tq[pr]+1}], v[{vC2}:{vC2+1}], v[{vC1}:{vC1+1}]")
            for pr in prs:
                e(f"v_pk_mul_f32 v[{Tq[pr]}:{Tq[pr]+1}], v[{Tq[pr]}:{Tq[pr]+1}], v[{Z[pr]}:{Z[pr]+1}]")
            for pr in prs:
                e(f"v_exp_f32 v{Tq[pr]}, v{Tq[pr]}\nv_exp_f32 v{Tq[pr]+1}, v{Tq[pr]+1}")
            for pr in prs:
                e(f"v_pk_add_f32 v[{Tq[pr]}:{Tq[pr]+1}], v[{Tq[pr]}:{Tq[pr]+1}], v[{vOne}:{vOne+1}]")
            for pr in prs:
                e(f"v_rcp_f32 v{Tq[pr]}, v{Tq[pr]}\nv_rcp_f32 v{Tq[pr]+1}, v{Tq[pr]+1}")
            for pr in prs:
                e(f"v_pk_mul_f32 v[{Tq[pr]}:{Tq[pr]+1}], v[{Tq[pr]}:{Tq[pr]+1}], v[{Z[pr]}:{Z[pr]+1}]")
            for pr in prs:
                e(f"v_cvt_pk_bf16_f32 v{base+8*half+(pr%4)}, v{Tq[pr]}, v{Tq[pr]+1}")
            o = base + 8 * half
            htok = g.vmem(f"buffer_store_dwordx4 v[{o}:{o+3}], v{vHs}, s[{SWS}:{SWS+3}], s{sHB} offen offset:{t*1024+half*512} sc1")
            for _ in range(P["cw_early"]):
                wl.pop(0)()
    stamp(13, "gelu_done")
    if wl is None:
        wl = w2_loads(vPoC, wpt)
    for _ in range(6):
        wl.pop(0)()
    publish(B_P | B_H, htok)
    stamp(14, "h_pub")
    e("s_barrier")
    stamp(15, "deadbar")
    while wl:
        wl.pop(0)()

    g.label("L_join")
    if P.get("prio") in (1, 2):
        e("s_setprio 0")
    g.vm_done = 0
    g.lg_done = g.lg
    base_vm = g.vm
    ACC2 = 48
    HB = [f"v[{r}:{r+3}]" for r in (24, 28, 32, 36, 40, 44)] + ["a[120:123]", "a[124:127]"]
    vB2o, vRd, vOo = 12, 13, 14
    vRW = 16
    hb_next = [0]
    htoks = {}

    def h_poll():
        return f"buffer_load_dwordx2 v[{vF}:{vF+1}], v{vPh}, s[{SWS}:{SWS+3}], 0 offen sc1"

    def h_load(sg, i):
        r = HB[hb_next[0] % len(HB)]
        hb_next[0] += 1
        e(f"s_add_u32 s{sT}, s{sPH+sg}, s{sMI+i}")
        htoks[(sg, i)] = (r, g.vmem(f"buffer_load_dwordx4 {r}, v{vL16}, s[{SWS}:{SWS+3}], s{sT} offen sc1"))

    started = set()

    def mm(sg, i):
        r, tok = htoks[(sg, i)]
        g.wait(vm=tok)
        for jj in range(5):
            c = ACC2 + 20 * i + 4 * jj
            w = wreg[(sg, jj)]
            cin = f"v[{c}:{c+3}]" if (i, jj) in started else "0"
            started.add((i, jj))
            e(f"v_mfma_f32_16x16x32_bf16 v[{c}:{c+3}], a[{w}:{w+3}], {r}, {cin}")

    stamp(16, "join")
    tk = g.vmem(h_poll())
    for i in range(4):
        e(f"s_add_u32 s{sT}, s{sW}, {i+1}\ns_and_b32 s{sT}, s{sT}, 3\ns_mul_i32 s{sT2}, s{sT}, {5*7*1024}\ns_sub_u32 s{sT}, s{sW}, s{sT}\ns_sub_u32 s{sT}, s{sT}, 1")
        for d in range(2):
            e(f"s_sub_u32 s{sT3}, s{sT}, {4*d}\ns_and_b32 s{sT3}, s{sT3}, 7\ns_lshl_b32 s{sT3}, s{sT3}, 10\ns_add_u32 s{sT3}, s{sT3}, s{sT2}\nv_add_u32 v{vRW+2*i+d}, s{sT3}, v{vL16}")
    e(f"s_mul_i32 s{sT}, s{sP4}, {5*7*1024}\nv_add_u32 v{vRd}, s{sT}, v{vL16}")
    e(f"v_lshrrev_b32 v{vB2o}, 4, v{vL}\nv_lshlrev_b32 v{vB2o}, 3, v{vB2o}\ns_mul_i32 s{sK8}, s{sNT}, 160")
    e(f"v_and_b32 v{vOo}, 15, v{vL}\nv_mul_u32_u24 v{vOo}, 1280, v{vOo}\nv_add_u32 v{vOo}, v{vOo}, v{vB2o}")
    e(f"s_lshl_b32 s{sT}, s{sMT}, 6\ns_lshl_b32 s{sT3}, s{sP4}, 4\ns_add_u32 s{sT}, s{sT}, s{sT3}\ns_mul_i32 s{sT}, s{sT}, 1280\ns_add_u32 s{sHB}, s{sT}, s{sK8}")
    spin(lambda: flag_eval([vF, vF + 1], B_H), lambda: e(h_poll()), tk)
    stamp(17, "h_flag_ok")
    LAST = P["last"]
    order = [(sg, i) for sg in range(6 - LAST) for i in range(4)] + [(sg, i) for i in range(4) for sg in range(6 - LAST, 6)]
    HA = min(P["ha"], len(HB) - 1)
    for o in order[:HA]:
        h_load(*o)
    for k, o in enumerate(order):
        mm(*o)
        if k + HA < len(order):
            h_load(*order[k + HA])
        if k in (0, 7, 15):
            stamp(18 + (k + 1) // 8, f"g2_{k}")
        kk = k - 4 * (6 - LAST)
        if kk >= LAST:
            i, p = divmod(kk, LAST)
            for jj in [jj for jj in range(5) if jj * LAST // 5 == p]:
                c = ACC2 + 20 * (i - 1) + 4 * jj
                g.ds(f"ds_write_b128 v{vRW+2*(i-1)+(1 if jj >= 3 else 0)}, v[{c}:{c+3}] offset:{jj*7168}")
    stamp(21, "gemm2_done")
    C3 = ACC2 + 60
    e(f"s_cmp_lt_u32 s{sW}, 4\ns_cbranch_scc1 L_tail0")
    sv = (g.vm, g.vm_done, g.lg, g.lg_done)
    for cls in (1, 0):
        if cls == 0:
            g.label("L_tail0")
            g.vm, g.vm_done, g.lg, g.lg_done = sv
        own = (0, 1, 2) if cls == 0 else (3, 4)
        oth = (3, 4) if cls == 0 else (0, 1, 2)
        BT = 24
        for k, jj in enumerate(own):
            b2tok = g.vmem(f"buffer_load_dwordx2 v[{BT+2*k}:{BT+2*k+1}], v{vB2o}, s[{SB2}:{SB2+3}], s{sK8} offen offset:{jj*32}")
        g.nop(6)
        for jj in oth:
            c = C3 + 4 * jj
            g.ds(f"ds_write_b128 v{vRW+6+(1 if jj >= 3 else 0)}, v[{c}:{c+3}] offset:{jj*7168}")
        g.wait(lg=g.lg)
        e("s_barrier")
        stamp(22, "redbar")
        R = ACC2
        todo = [(jj, s7) for jj in own for s7 in range(7)]
        rt = {}
        nb = 14
        for k, (jj, s7) in enumerate(todo[:nb]):
            rt[k] = g.ds(f"ds_read_b128 v[{R+4*k}:{R+4*k+3}], v{vRd} offset:{jj*7168 + s7*1024}")
        g.wait(vm=b2tok)
        for k, jj in enumerate(own):
            c = C3 + 4 * jj
            T4 = 32
            e(f"v_lshlrev_b32 v{T4}, 16, v{BT+2*k}\nv_and_b32 v{T4+1}, 0xffff0000, v{BT+2*k}\nv_lshlrev_b32 v{T4+2}, 16, v{BT+2*k+1}\nv_and_b32 v{T4+3}, 0xffff0000, v{BT+2*k+1}")
            e(f"v_pk_add_f32 v[{c}:{c+1}], v[{c}:{c+1}], v[{T4}:{T4+1}]\nv_pk_add_f32 v[{c+2}:{c+3}], v[{c+2}:{c+3}], v[{T4+2}:{T4+3}]")
        for k, (jj, s7) in enumerate(todo):
            c = C3 + 4 * jj
            b = R + 4 * (k % nb)
            g.wait(lg=rt[k])
            e(f"v_pk_add_f32 v[{c}:{c+1}], v[{c}:{c+1}], v[{b}:{b+1}]\nv_pk_add_f32 v[{c+2}:{c+3}], v[{c+2}:{c+3}], v[{b+2}:{b+3}]")
            if k + nb < len(todo):
                j2, s2 = todo[k + nb]
                rt[k + nb] = g.ds(f"ds_read_b128 v[{b}:{b+3}], v{vRd} offset:{j2*7168 + s2*1024}")
            if s7 == 6:
                e(f"v_cvt_pk_bf16_f32 v{c}, v{c}, v{c+1}\nv_cvt_pk_bf16_f32 v{c+1}, v{c+2}, v{c+3}")
                g.vmem(f"buffer_store_dwordx2 v[{c}:{c+1}], v{vOo}, s[{SO}:{SO+3}], s{sHB} offen offset:{jj*32}")
        if cls == 1:
            e("s_branch L_fin")
    g.label("L_fin")
    if diag:
        stamp(23, "out_issued")
        e("s_waitcnt vmcnt(0)")
        stamp(24, "end")
        e("s_memrealtime s[100:101]\ns_waitcnt lgkmcnt(0)\nv_writelane_b32 v0, s100, 63")
        e(f"s_lshl_b32 s{sT}, s2, 2\ns_add_u32 s{sT}, s{sT}, s{sP4}\ns_lshr_b32 s{sT2}, s{sW}, 2\ns_lshl_b32 s{sT2}, s{sT2}, 10\ns_add_u32 s{sT}, s{sT}, s{sT2}\ns_lshl_b32 s{sT}, s{sT}, 8\ns_add_u32 s{sT}, s{sT}, {T0}")
        names[0] = "entry"
        open("stampnames.txt", "w").write("\n".join(names.get(i, "-") for i in range(max(names) + 1)))
        e(f"v_lshlrev_b32 v{vF}, 2, v{vL}")
        e(f"buffer_store_dword v0, v{vF}, s[{SWS}:{SWS+3}], s{sT} offen")
    g.label("L_end")
    e("s_endpgm")
    out += g.L
    out += ['.section .rodata,"a"', ".p2align 6", f".amdhsa_kernel {NAME}",
            "  .amdhsa_next_free_vgpr 256", "  .amdhsa_next_free_sgpr 102", "  .amdhsa_accum_offset 128",
            "  .amdhsa_group_segment_fixed_size 0", "  .amdhsa_kernarg_size 64", "  .amdhsa_user_sgpr_count 2",
            "  .amdhsa_user_sgpr_kernarg_segment_ptr 1", "  .amdhsa_system_sgpr_workgroup_id_x 1", ".end_amdhsa_kernel"]
    return "\n".join(out) + "\n"


if __name__ == "__main__":
    diag = "--diag" in sys.argv
    path = [a for a in sys.argv[1:] if not a.startswith("--")]
    path = path[0] if path else "standalone__mixer_channel_mlp__prompt.s"
    P = {}
    for a in sys.argv[1:]:
        if a.startswith("--p:"):
            k, v = a[4:].split("=")
            P[k] = tuple(int(x) for x in v.split(",")) if "," in v else int(v)
    open(path, "w").write(generate(diag, P))
    print("wrote", path)
```
